```python
import torch

def _softmax(x, axis=-1):
    return torch.softmax(x, dim=axis)
def _gelu(x):
    return torch.nn.functional.gelu(x, approximate="tanh")
def _silu(x):
    return torch.nn.functional.silu(x)
def _sigmoid(x):
    return torch.sigmoid(x)
def _layernorm(x, axis=-1, eps=1e-5):
    m = x.mean(dim=axis, keepdim=True)
    v = x.var(dim=axis, keepdim=True, unbiased=False)
    return (x - m) / torch.sqrt(v + eps)
def _scatter_add(tgt, idx, src, axis=0):
    return tgt.clone().index_add_(axis, idx, src)
def _segment_sum(src, seg, n):
    out = torch.zeros((n,) + src.shape[1:], dtype=src.dtype)
    return out.index_add_(0, seg, src)
def _pad(x, pw):
    flat = tuple(v for pair in reversed(pw) for v in pair)
    return torch.nn.functional.pad(x, flat)

kernel_name = 'parallel_sum__ssm_conv_s4__moe_arch_mod__prompt'

def setup_inputs():

    _w = (lambda a: (lambda t: t.to(torch.bfloat16) if t.is_floating_point() else t)(torch.as_tensor(a)))
    def _A_setup():
        B, L, D, N = 1, 2048, 512, 128
        A_re = -(lambda _x: torch.exp(torch.as_tensor(_x)))((lambda *s: torch.randn(*s, dtype=torch.bfloat16) * 3.2)(D, N))
        A_im = torch.pi * (lambda *s: torch.randn(*s, dtype=torch.bfloat16) * 0.1)(D, N)
        B_re = (lambda *s: torch.randn(*s, dtype=torch.bfloat16) * 0.4)(D, N)
        B_im = (lambda *s: torch.randn(*s, dtype=torch.bfloat16) * 0.4)(D, N)
        C_re = (lambda *s: torch.randn(*s, dtype=torch.bfloat16) * 0.4)(D, N)
        C_im = (lambda *s: torch.randn(*s, dtype=torch.bfloat16) * 0.4)(D, N)
        log_dt = (lambda *s: torch.randn(*s, dtype=torch.bfloat16) * 0.1)(D) * 0.5 - 4.0
        Dskip = (lambda *s: torch.randn(*s, dtype=torch.bfloat16) * 0.1)(D)
        return {
            "u": _w((lambda *s: torch.randn(*s, dtype=torch.bfloat16) * 0.05)(B, L, D)),
            "A_re": _w(A_re),
            "A_im": _w(A_im),
            "B_re": _w(B_re),
            "B_im": _w(B_im),
            "C_re": _w(C_re),
            "C_im": _w(C_im),
            "log_dt": _w(log_dt),
            "Dskip": _w(Dskip),
        }
    _A_in = _A_setup()

    def _B_setup():
        B, S, D, F, C = 1, 2048, 512, 1792, 1
        return {
            "x": _w((lambda *s: torch.randn(*s, dtype=torch.bfloat16) * 0.05)(B, S, D)),
            "w_r": _w((lambda *s: torch.randn(*s, dtype=torch.bfloat16) * 0.05)(D)),
            "w_gate": _w((lambda *s: torch.randn(*s, dtype=torch.bfloat16) * 0.05)(D, F)),
            "w_up": _w((lambda *s: torch.randn(*s, dtype=torch.bfloat16) * 0.05)(D, F)),
            "w_down": _w((lambda *s: torch.randn(*s, dtype=torch.bfloat16) * 0.05)(F, D)),
        }
    _B_in = _B_setup()

    return {
        "A_u": _A_in["u"],
        "A_A_re": _A_in["A_re"],
        "A_A_im": _A_in["A_im"],
        "A_B_re": _A_in["B_re"],
        "A_B_im": _A_in["B_im"],
        "A_C_re": _A_in["C_re"],
        "A_C_im": _A_in["C_im"],
        "A_log_dt": _A_in["log_dt"],
        "A_Dskip": _A_in["Dskip"],
        "B_x": _B_in["x"],
        "B_w_r": _B_in["w_r"],
        "B_w_gate": _B_in["w_gate"],
        "B_w_up": _B_in["w_up"],
        "B_w_down": _B_in["w_down"],
    }

def reference(A_u, A_A_re, A_A_im, A_B_re, A_B_im, A_C_re, A_C_im, A_log_dt, A_Dskip, B_x, B_w_r, B_w_gate, B_w_up, B_w_down):
    def _A_ref(u, A_re, A_im, B_re, B_im, C_re, C_im, log_dt, Dskip):
        Bsz, L, D = u.shape
        dt = torch.exp(log_dt)[:, None]
        A = A_re + 1j * A_im
        Bc = B_re + 1j * B_im
        Cc = C_re + 1j * C_im
        logdA = dt * A
        dB = dt * Bc
        l = (lambda x, dt: x.to(dt))(torch.arange(L), A_re.dtype)
        P = torch.exp(logdA[:, :, None] * l[None, None, :])
        K = torch.einsum("dn,dnl,dn->dl", Cc, P, dB).real
        L2 = 2 * L
        Kp = _pad(K, ((0, 0), (0, L)))
        up = (lambda x, *d: x.permute(*d))(u, 0, 2, 1)
        up = _pad(up, ((0, 0), (0, 0), (0, L)))
        Kf = (lambda x, axes=(-2,-1): torch.fft.rfft2(x.float(), dim=axes))(Kp[:, None, :], axes=(-2, -1))
        Uf = (lambda x, axes=(-2,-1): torch.fft.rfft2(x.float(), dim=axes))(up[:, :, None, :], axes=(-2, -1))
        Yf = Uf * Kf[None, :, :, :]
        y = (lambda x, s, axes=(-2,-1): torch.fft.irfft2(x, s=s, dim=axes).to(torch.bfloat16))(Yf, (1, L2), axes=(-2, -1))[:, :, 0, :L]
        y = (lambda x, *d: x.permute(*d))(y, 0, 2, 1) + u * Dskip[None, None, :]
        return y

    def _B_ref(x, w_r, w_gate, w_up, w_down):
        B, S, D = x.shape
        C = 1
        r = x @ w_r
        idx = torch.argsort(-r, axis=-1)[:, :C]
        idx_e = (lambda x, n, axis: torch.repeat_interleave(x, n, dim=axis))(idx.reshape(B, C, 1), D, axis=2)
        x_sel = (lambda x, i, axis: torch.take_along_dim(x, i, dim=axis))(x, idx_e, axis=1)
        g = _silu(x_sel @ w_gate)
        u = x_sel @ w_up
        y = (g * u) @ w_down
        r_sel = _sigmoid((lambda x, i, axis: torch.take_along_dim(x, i, dim=axis))(r, idx, axis=1))
        y = y * r_sel.reshape(B, C, 1)
        b_off = (torch.arange(B) * S).reshape(B, 1)
        flat_idx = (idx + b_off).reshape(B * C)
        zero = (x * 0.0).reshape(B * S, D)
        upd = _scatter_add(zero, flat_idx, y.reshape(B * C, D), axis=0)
        return x + upd.reshape(B, S, D)

    x = A_u
    xn = _layernorm(x, axis=-1)
    return x + _A_ref(xn, A_A_re, A_A_im, A_B_re, A_B_im, A_C_re, A_C_im, A_log_dt, A_Dskip) + _B_ref(xn, B_w_r, B_w_gate, B_w_up, B_w_down)
```

```python
import re

TRANS = ("v_exp_f32", "v_log_f32", "v_rcp_f32", "v_rsq_f32", "v_sqrt_f32", "v_sin_f32", "v_cos_f32")
MODRE = re.compile(r"\b(op_sel|op_sel_hi|neg_lo|neg_hi|quad_perm):\[[^\]]*\]")

def regs_of(tok):
    tok = tok.strip()
    tok = tok.lstrip("-")
    if tok.startswith("abs(") and tok.endswith(")"): tok = tok[4:-1]
    if tok.startswith("|") and tok.endswith("|"): tok = tok[1:-1]
    m = re.fullmatch(r"([vsa])(\d+)", tok)
    if m: return {(m.group(1), int(m.group(2)))}
    m = re.fullmatch(r"([vsa])\[(\d+):(\d+)\]", tok)
    if m: return {(m.group(1), i) for i in range(int(m.group(2)), int(m.group(3)) + 1)}
    if tok == "vcc": return {("s", "vcc")}
    if tok in ("exec", "exec_lo", "exec_hi"): return {("s", "exec")}
    if tok == "m0": return {("s", "m0")}
    return set()

class Ins:
    def __init__(self, text):
        self.text = text
        t = MODRE.sub("", text).strip()
        parts = t.split(None, 1)
        self.mn = mn = parts[0]
        ops = []
        if len(parts) > 1:
            for o in parts[1].split(","):
                o = o.strip()
                if o: ops.append(o.split()[0])
        self.ops = ops
        R = [regs_of(o) for o in ops]
        self.dst, self.src = set(), set()
        self.kind = "other"
        self.states = 1
        self.srcC = set(); self.srcAB = set(); self.data = set()
        if mn == "s_nop":
            self.kind = "nop"; self.states = int(ops[0], 0) + 1
        elif mn.startswith("v_mfma"):
            self.kind = "mfma"; self.dst = R[0]; self.srcAB = R[1] | R[2]; self.srcC = R[3]; self.src = self.srcAB | self.srcC
            self.passes = 8 if "32x32" in mn else 4
        elif mn.startswith("v_"):
            self.kind = "valu"
            if mn.startswith("v_permlane"):
                self.dst = R[0] | R[1]; self.src = R[0] | R[1]
            else:
                self.dst = R[0]
                for r in R[1:]: self.src |= r
                if mn.startswith(("v_fmac", "v_dot2c", "v_writelane")) or "_dpp" in mn: self.src |= R[0]
                if mn.startswith("v_cndmask") and len(ops) == 3: self.src.add(("s", "vcc"))
            self.trans = mn.replace("_e32", "").replace("_e64", "") in TRANS
            self.dpp = "_dpp" in mn
            self.dl = mn.startswith("v_dot")
        elif mn.startswith("ds_"):
            self.kind = "ds"
            if mn.startswith("ds_read") or "_rtn" in mn or "permute" in mn:
                self.dst = R[0]
                for r in R[1:]: self.src |= r
                if "d16" in mn: self.src |= R[0]
            else:
                for r in R: self.src |= r
            if "addtid" in mn: self.src.add(("s", "m0"))
        elif mn.startswith(("global_", "buffer_")):
            self.kind = "vmem"
            if "_lds" in mn:
                for r in R: self.src |= r
                self.src.add(("s", "m0"))
            elif "load" in mn:
                self.dst = R[0]
                for r in R[1:]: self.src |= r
            else:
                for r in R: self.src |= r
                if mn.endswith(("x3", "x4")): self.data = R[1] if mn.startswith("global") else R[0]
        elif mn.startswith(("s_load", "s_memtime", "s_memrealtime")):
            self.kind = "smem"; self.dst = R[0]
            for r in R[1:]: self.src |= r
        elif mn.startswith(("s_waitcnt", "s_barrier", "s_sleep", "s_setprio", "s_endpgm", "s_branch", "s_cbranch")):
            self.kind = "ctl"
        elif mn.startswith("s_"):
            self.kind = "salu"
            if mn.startswith(("s_cmp", "s_bitcmp")):
                for r in R: self.src |= r
            else:
                self.dst = R[0]
                for r in R[1:]: self.src |= r
                if "saveexec" in mn: self.dst = self.dst | {("s", "exec")}; self.src.add(("s", "exec"))
        else:
            raise ValueError("unknown instr " + text)

def need(p, c):
    n = 0
    V = lambda s: {r for r in s if r[0] in "va"}
    S = lambda s: {r for r in s if r[0] == "s"}
    if p.kind == "valu":
        pv, ps = V(p.dst), S(p.dst)
        if c.kind == "mfma" and pv & c.src: n = max(n, 2)
        if c.kind == "valu":
            if p.trans and not c.trans and pv & c.src: n = max(n, 1)
            if c.dpp and pv & c.src: n = max(n, 2)
            if c.mn.startswith("v_permlane") and pv & c.src: n = max(n, 2)
            if c.mn.startswith(("v_readlane", "v_readfirstlane")) and pv & c.src: n = max(n, 1)
            if ps & c.src: n = max(n, 4 if c.mn.startswith(("v_readlane", "v_writelane")) else 2)
            if p.dl and pv & (c.src | c.dst):
                same_c = c.mn == p.mn and not (pv & (regs_of(c.ops[1]) | regs_of(c.ops[2])))
                if not same_c: n = max(n, 3)
        if p.dl and c.kind in ("mfma", "ds", "vmem") and pv & c.src: n = max(n, 3)
        if c.kind == "vmem" and ps & c.src: n = max(n, 5)
        if c.kind == "ds" and p.trans and pv & c.src: n = max(n, 1)
        if c.kind == "vmem" and p.trans and pv & c.src: n = max(n, 1)
    if p.kind == "mfma":
        big = p.passes == 8
        if c.kind == "mfma":
            if p.dst & c.srcAB: n = max(n, 12 if big else 8)
            if p.dst & c.srcC and not (p.dst == c.srcC and p.mn == c.mn): n = max(n, 10 if big else 6)
            if p.dst & c.dst and not (p.dst & c.srcC): n = max(n, 10 if big else 6)
        elif c.kind in ("valu", "ds", "vmem"):
            if p.dst & (c.src | c.dst): n = max(n, 12 if big else 8)
            if c.kind == "valu" and p.srcC & c.dst: n = max(n, 7 if big else 3)
    if p.kind == "vmem" and p.data and c.kind == "valu" and p.data & c.dst: n = max(n, 2)
    if p.kind == "vmem" and p.data and c.kind in ("ds", "vmem", "mfma") and p.data & c.dst: n = max(n, 1)
    if p.kind == "salu" and ("s", "m0") in p.dst and ("s", "m0") in c.src and c.kind in ("ds", "vmem"): n = max(n, 1)
    return n

class Asm:
    def __init__(self):
        self.out = []
        self.hist = []
        self.vmq = []
        self.dsq = []
        self.smem = set()
        self.smem_any = False
        self.nops = 0
        self.lbl = 0
    def raw(self, s): self.out.append(s)
    def comment(self, s): self.out.append("    ; " + s)
    def label(self, name):
        self.out.append(name + ":")
    def newlabel(self, p="L"):
        self.lbl += 1; return f"{p}_{self.lbl}"
    def reset(self):
        self.vmq = []; self.dsq = []; self.smem = set(); self.smem_any = False
    def _emit(self, ins):
        self.out.append("    " + ins.text)
        self.hist.append(ins)
        if len(self.hist) > 24: self.hist.pop(0)
    def wait(self, vm=None, lgkm=None):
        t = "s_waitcnt"
        if vm is not None:
            t += f" vmcnt({vm})"
            if len(self.vmq) > vm: self.vmq = self.vmq[len(self.vmq) - vm:] if vm else []
        if lgkm is not None:
            t += f" lgkmcnt({lgkm})"
            if lgkm == 0: self.dsq = []; self.smem = set(); self.smem_any = False
            else:
                assert not self.smem_any, "counted lgkm wait with smem outstanding"
                if len(self.dsq) > lgkm: self.dsq = self.dsq[len(self.dsq) - lgkm:]
        self._emit(Ins(t))
    def __call__(self, text):
        for line in text.strip().split("\n"):
            line = line.split(";")[0].strip()
            if line: self.one(line)
    def one(self, text):
        ins = Ins(text)
        if ins.mn == "s_waitcnt":
            vm = re.search(r"vmcnt\((\d+)\)", text); lg = re.search(r"lgkmcnt\((\d+)\)", text)
            return self.wait(int(vm.group(1)) if vm else None, int(lg.group(1)) if lg else None)
        touched = ins.src | ins.dst
        vm = lg = None
        for i, d in enumerate(self.vmq):
            if d & touched: vm = len(self.vmq) - 1 - i
        for i, d in enumerate(self.dsq):
            if d & touched: lg = len(self.dsq) - 1 - i
        if self.smem & touched or (lg is not None and self.smem_any): lg = 0
        if lg is not None and lg > 15: lg = None if False else 15
        if vm is not None or lg is not None: self.wait(vm, lg)
        dist = 0; req = 0
        for p in reversed(self.hist):
            r = need(p, ins) - dist
            if r > req: req = r
            dist += p.states
            if dist >= 20: break
        if req > 0:
            self.nops += req
            while req > 0:
                k = min(req, 16); self._emit(Ins(f"s_nop {k-1}")); req -= k
        self._emit(ins)
        if ins.kind == "vmem": self.vmq.append(set(ins.dst))
        elif ins.kind == "ds": self.dsq.append(set(ins.dst))
        elif ins.kind == "smem": self.smem |= ins.dst; self.smem_any = True
    def text(self): return "\n".join(self.out) + "\n"

def vr(a, n=1): return f"v{a}" if n == 1 else f"v[{a}:{a+n-1}]"
def sr(a, n=1): return f"s{a}" if n == 1 else f"s[{a}:{a+n-1}]"
```

```python
import sys, struct
from asmlib import Asm, vr, sr

NAME = "parallel_sum__ssm_conv_s4__moe_arch_mod__prompt_kernel"
OPT = dict(STAMPS=0, FULL=1, DBG=0, POLLMAX=200000)
for a in sys.argv[2:]:
    k, v = a.split("="); OPT[k] = int(v, 0)
STAMPS, FULL, DBG = OPT["STAMPS"], OPT["FULL"], OPT["DBG"]

WS_ROUT, WS_STAT, WS_PART, WS_XT, WS_STAMP, WS_DBG = 0x1000, 0x2000, 0x10000, 0x100000, 0x400000, 0x500000
ROWP = 272; KT_SZ = 56 * ROWP
L_KT = 0
L_KW = L_KT + 4 * KT_SZ
KW_T2A, KW_T2B, KW_T3, KW_A = 0, 256, 512, 832
KW_B = KW_A + 1212
L_U = L_KW + 4 * 4096; USTR = 4640
L_LNI = L_U + 4 * USTR; LNP = 1088
L_WG = L_LNI + 8 * LNP
L_WU = L_WG + 16384 + 128
L_MISC = L_WU + 16384
M_CNT, M_KEY, M_RT, M_W, M_U, M_T, M_SV, M_SAVE, M_INV, M_DUMMY = 0, 4, 8, 16, 20, 32, 48, 64, 80, 128
LDS_SIZE = L_MISC + M_DUMMY + 256 + 128
assert L_MISC % 16 == 0 and L_U % 16 == 0 and L_LNI % 16 == 0 and L_WG % 16 == 0

sX, sARE, sAIM, sBRE, sBIM, sCRE, sCIM, sLDT, sDSK, sBX, sWR, sWG, sWU, sWD, sOUT, sDBG, sWS = [4 + 2 * i for i in range(17)]
sTAG, sWAVE, sCG, sHS, sFFN, sUNIT = 38, 39, 40, 41, 42, 43
sPC = 44
sT = 46
sST = 72
P = lambda r: sr(r, 2)

a = Asm()
def stamp(k):
    if STAMPS:
        a(f"s_memrealtime s[88:89]"); a.wait(lgkm=0); a(f"s_mov_b32 s{sST+k}, s88")
def stamp_flush():
    if STAMPS:
        a.wait(vm=0, lgkm=0)
        a("s_memrealtime s[88:89]"); a.wait(lgkm=0); a(f"s_mov_b32 s{sST+15}, s88")
        a("s_mov_b64 exec, -1")
        a(f"v_mov_b32 v2, 0")
        for k in range(16): a(f"v_writelane_b32 v2, s{sST+k}, {k}")
        a(f"s_lshl_b32 s{sT}, s2, 3\n s_add_u32 s{sT}, s{sT}, s{sWAVE}\n s_lshl_b32 s{sT}, s{sT}, 6\n s_add_u32 s{sT}, s{sT}, {WS_STAMP}")
        a(f"v_and_b32 v3, 63, v0\n v_lshlrev_b32 v3, 2, v3\n v_add_u32 v3, s{sT}, v3")
        a("s_mov_b64 exec, 0xffff")
        a(f"global_store_dword v3, v2, {P(sWS)}")
def endpgm():
    stamp_flush(); a("s_endpgm")

def lds_spin(vtmp, vaddr, off, want, width=1, sdst=None):
    L, Dn = a.newlabel("spin"), a.newlabel("spun")
    sd = sdst if sdst is not None else sT
    a.wait(lgkm=0)
    a(f"s_mov_b32 s{sT+1}, 0")
    a.label(L)
    a(f"ds_read_b{32*width} {vr(vtmp, width)}, v{vaddr} offset:{off}")
    a.wait(lgkm=0)
    a(f"v_readfirstlane_b32 s{sd}, v{vtmp}")
    a(f"s_add_u32 s{sT+1}, s{sT+1}, 1")
    a(f"s_cmp_eq_u32 s{sd}, {want}")
    a(f"s_cbranch_scc1 {Dn}")
    a(f"s_cmp_lt_u32 s{sT+1}, {OPT['POLLMAX']*16}")
    a("s_sleep 1")
    a(f"s_cbranch_scc1 {L}")
    a.label(Dn)

a.raw(f"""; Single persistent launch: 256 workgroups (one per CU) x 8 waves.
; @launch grid=(256,1,1) block=(512,1,1) lds={LDS_SIZE}
.amdgcn_target "amdgcn-amd-amdhsa--gfx950"
.text
.globl {NAME}
.p2align 8
.type {NAME},@function
{NAME}:""")
a(f"""
s_cmp_ge_u32 s2, 0x100
s_cbranch_scc1 L_exit
s_load_dwordx16 s[4:19], s[0:1], 0
s_load_dwordx16 s[20:35], s[0:1], 64
s_load_dwordx2 s[36:37], s[0:1], 128
""")
if STAMPS:
    a("s_memrealtime s[88:89]")
    for k in range(16): a(f"s_mov_b32 s{sST+k}, 0")
a(f"""
s_getpc_b64 {P(sPC)}
""")
a.label("L_pc")
a(f"""
v_lshrrev_b32 v2, 6, v0
v_and_b32 v1, 63, v0
v_readfirstlane_b32 s{sWAVE}, v2
s_and_b32 s{sT}, s2, 7
s_lshr_b32 s{sT+1}, s2, 3
s_lshl_b32 s{sCG}, s{sT}, 4
s_and_b32 s{sT+2}, s{sT+1}, 15
s_add_u32 s{sCG}, s{sCG}, s{sT+2}
s_lshr_b32 s{sHS}, s{sT+1}, 4
s_cmp_lt_u32 s{sWAVE}, 4
s_cbranch_scc1 L_conv
""")

XA, XB, WR = 4, 8, 12
WD, WDP, WF = 64, 96, 128
a(f"""
s_setprio 3
s_sub_u32 s{sUNIT}, s{sWAVE}, 4
s_lshl_b32 s{sT+3}, s2, 13
s_lshl_b32 s{sT+4}, s{sUNIT}, 11
s_add_u32 s{sT+3}, s{sT+3}, s{sT+4}
v_lshlrev_b32 v2, 4, v1
v_add_u32 v3, s{sT+3}, v2
s_lshr_b32 s{sT+5}, s{sT+1}, 2
s_lshl_b32 s{sT+5}, s{sT+5}, 3
s_add_u32 s{sT+5}, s{sT+5}, s{sT}
s_and_b32 s{sT+6}, s{sT+1}, 3
s_lshl_b32 s{sT+7}, s{sT+5}, 2
s_add_u32 s{sT+7}, s{sT+7}, s{sT+6}
s_cmp_lt_u32 s{sT+5}, 28
s_cselect_b32 s{sFFN}, 1, 0
s_cmp_lt_u32 s{sUNIT}, 2
s_cselect_b32 s{sFFN}, s{sFFN}, 0
s_cmp_lg_u32 s{sUNIT}, 3
s_cbranch_scc1 L_noinit
v_lshlrev_b32 v16, 2, v1
v_add_u32 v16, {L_MISC}, v16
v_mov_b32 v17, 0
ds_write_b32 v16, v17
""")
a.label("L_noinit")
a.wait(lgkm=0)
if STAMPS: a(f"s_mov_b32 s{sST}, s88")
a(f"""
s_load_dword s{sTAG}, {P(sWS)}, 0
global_load_dwordx4 {vr(XA,4)}, v3, {P(sX)}
global_load_dwordx4 {vr(XB,4)}, v3, {P(sX)} offset:1024
global_load_dwordx4 {vr(WR,4)}, v2, {P(sWR)}
""")
a(f"""
s_cmp_lt_u32 s{sUNIT}, 2
s_cbranch_scc1 L_nopf
s_lshl_b32 s{sT+8}, s{sUNIT}, 14
s_sub_u32 s{sT+8}, s{sT+8}, 0x8000
v_lshlrev_b32 v16, 7, v1
v_add_u32 v16, s{sT+8}, v16
v_min_u32 v17, L_end-L_pc-4, v16
v_add_u32 v16, 0x2000, v16
v_min_u32 v16, L_end-L_pc-4, v16
global_load_dword v254, v17, {P(sPC)}
global_load_dword v255, v16, {P(sPC)}
s_branch L_noffn0
""")
a.label("L_nopf")
a(f"""
s_cmp_eq_u32 s{sFFN}, 0
s_cbranch_scc1 L_noffn0
s_cmp_eq_u32 s{sUNIT}, 0
s_cselect_b32 s{sT+8}, s{sWG}, s{sWU}
s_cselect_b32 s{sT+9}, s{sWG+1}, s{sWU+1}
s_mul_i32 s{sT+10}, s{sUNIT}, {L_WU-L_WG}
s_add_u32 m0, s{sT+10}, {L_WG}
v_lshrrev_b32 v16, 1, v1
v_mul_u32_u24 v16, 3584, v16
v_and_b32 v17, 1, v1
v_lshl_add_u32 v16, v17, 4, v16
s_lshl_b32 s{sT+11}, s{sT+7}, 5
v_add_u32 v16, s{sT+11}, v16
s_mov_b32 s{sT+11}, 16
""")
a.label("L_dma")
a(f"""
global_load_lds_dwordx4 v16, {P(sT+8)}
v_add_u32 v16, {32*3584}, v16
s_add_u32 m0, m0, 1024
s_sub_u32 s{sT+11}, s{sT+11}, 1
s_cmp_lg_u32 s{sT+11}, 0
s_cbranch_scc1 L_dma
s_lshl_b32 s{sT+11}, s{sT+7}, 1
s_add_u32 s{sT+11}, s{sT+11}, s{sUNIT}
s_lshl_b32 s{sT+12}, s{sT+11}, 13
s_add_u32 s{sT+12}, s{sT+12}, 4096
v_add_u32 v16, s{sT+12}, v2
""")
sPU = sT + 11
for f in range(8):
    a(f"global_load_dwordx4 {vr(WD+4*f,4)}, v16, {P(sWD)} offset:{f*1024-4096}")
a.label("L_noffn0")
a.reset()
vFL, vMI, vTK, vC9, vMK = 52, 53, 54, 55, 56
a(f"""
v_mov_b32 v{vMI}, {L_MISC}
v_lshlrev_b32 v16, 2, v1
v_add_u32 v17, {L_MISC+M_DUMMY}, v16
v_add_u32 v{vFL}, s{sUNIT}, v{vMI}
v_cmp_eq_u32 vcc, 0, v1
s_lshl_b32 s{sT+8}, s2, 3
s_lshl_b32 s{sT+9}, s{sUNIT}, 1
s_add_u32 s{sT+8}, s{sT+8}, s{sT+9}
v_cndmask_b32 v{vFL}, v17, v{vFL}, vcc
s_sub_u32 s{sT+9}, 2047, s{sT+8}
v_lshrrev_b32 v18, 5, v1
v_sub_u32 v{vTK}, s{sT+9}, v18
v_mov_b32 v{vC9}, 0x3b000000
v_mov_b32 v{vMK}, 0xfff8fff8
""")
sROW = sT + 8
vSA, vIW, vTR, vXS = 57, 58, 59, 60
a(f"""
v_add_u32 v{vSA}, s{sROW}, v18
v_lshlrev_b32 v{vSA}, 3, v{vSA}
v_add_u32 v{vSA}, {WS_STAT}, v{vSA}
s_mul_i32 s{sT+10}, s{sUNIT}, {2*LNP}
s_add_u32 s{sT+10}, s{sT+10}, {L_LNI}
v_add_u32 v{vIW}, s{sT+10}, v2
v_bfe_u32 v16, v1, 2, 2
v_mul_u32_u24 v16, {LNP}, v16
v_lshrrev_b32 v17, 4, v1
v_lshl_add_u32 v16, v17, 5, v16
v_and_b32 v17, 3, v1
v_lshl_add_u32 v16, v17, 3, v16
s_lshl_b32 s{sT+10}, s{sUNIT}, 8
s_add_u32 s{sT+10}, s{sT+10}, {L_LNI}
v_add_u32 v{vTR}, s{sT+10}, v16
""")
if FULL:
    a(f"""
    v_lshrrev_b32 v16, 3, v1
    v_lshlrev_b32 v16, 15, v16
    v_and_b32 v17, 7, v1
    v_lshl_add_u32 v16, v17, 4, v16
    s_lshl_b32 s{sT+10}, s{sUNIT}, 19
    s_lshl_b32 s{sT+12}, s2, 7
    """)
else:
    a(f"""
    v_lshrrev_b32 v16, 2, v1
    v_lshlrev_b32 v16, 14, v16
    v_and_b32 v17, 3, v1
    v_lshl_add_u32 v16, v17, 4, v16
    s_lshl_b32 s{sT+10}, s{sUNIT}, 19
    s_lshl_b32 s{sT+12}, s2, 6
    """)
a(f"""
s_add_u32 s{sT+10}, s{sT+10}, s{sT+12}
s_add_u32 s{sT+10}, s{sT+10}, {WS_XT}
v_add_u32 v{vXS}, s{sT+10}, v16
v_add_u32 v{vXS+1}, 0x40000, v{vXS}
""")
sC9, sC1, sTGA, sTGB, sTLO, sTHI = sT + 13, sT + 14, sT + 15, sT + 16, sT + 17, sT + 18
a(f"s_mov_b32 s{sC9}, 0x3b003b00\n s_mov_b32 s{sC1}, 0x3f803f80")
a("s_barrier")
a.wait(lgkm=0)
a(f"""
s_add_u32 s{sTAG}, s{sTAG}, 1
s_mul_i32 s{sT+10}, s{sUNIT}, 6
s_lshr_b32 s{sTGB}, s{sTAG}, s{sT+10}
s_and_b32 s{sTGA}, s{sTGB}, 7
s_mul_i32 s{sTGA}, s{sTGA}, 0x10001
s_bfe_u32 s{sTGB}, s{sTGB}, 0x30003
s_mul_i32 s{sTGB}, s{sTGB}, 0x10001
s_and_b32 s{sTLO}, s{sTAG}, 0xffff
s_lshr_b32 s{sTHI}, s{sTAG}, 16
""")
a(f"s_cmp_eq_u32 s{sFFN}, 0\n s_cbranch_scc1 L_w2")
a("s_waitcnt vmcnt(24)\n s_branch L_w3")
a.label("L_w2")
a(f"s_cmp_lt_u32 s{sUNIT}, 2\n s_cbranch_scc1 L_w4")
a("s_waitcnt vmcnt(2)\n s_branch L_w3")
a.label("L_w4")
a("s_waitcnt vmcnt(0)")
a.label("L_w3")
a.reset()
stamp(1)
A1, B1, A2, B2, A3, B3, Wv, W2 = 16, 17, 18, 19, 20, 21, 22, 23
for i in range(4):
    z = lambda r: "0" if i == 0 else f"v{r}"
    a(f"""
    v_dot2_f32_bf16 v{A1}, v{XA+i}, s{sC9}, {z(A1)}
    v_dot2_f32_bf16 v{B1}, v{XB+i}, s{sC9}, {z(B1)}
    v_dot2_f32_bf16 v{A2}, v{XA+i}, v{XA+i}, {z(A2)}
    v_dot2_f32_bf16 v{B2}, v{XB+i}, v{XB+i}, {z(B2)}
    v_dot2_f32_bf16 v{Wv}, v{WR+i}, s{sC1}, {z(Wv)}
    v_dot2_f32_bf16 v{A3}, v{XA+i}, v{WR+i}, {z(A3)}
    v_dot2_f32_bf16 v{B3}, v{XB+i}, v{WR+i}, {z(B3)}
    """)
UX = 36
def unpack(i):
    src = XA + i
    a(f"v_lshlrev_b32 v{UX+2*i}, 16, v{src}\n v_and_b32 v{UX+2*i+1}, 0xffff0000, v{src}")
a(f"v_mov_b32 v{W2}, v{Wv}")
a(f"v_permlane32_swap_b32 v{A1}, v{B1}\n v_permlane32_swap_b32 v{A2}, v{B2}")
a(f"v_add_f32 v{A1}, v{A1}, v{B1}")
a(f"v_permlane32_swap_b32 v{A3}, v{B3}\n v_permlane32_swap_b32 v{Wv}, v{W2}")
a(f"v_add_f32 v{A2}, v{A2}, v{B2}\n v_add_f32 v{A3}, v{A3}, v{B3}\n v_add_f32 v{Wv}, v{Wv}, v{W2}")
for st in ("row_shr:1", "row_shr:2", "row_shr:4", "row_shr:8"):
    for r in (A1, A2, A3, Wv):
        a(f"v_add_f32_dpp v{r}, v{r}, v{r} {st} row_mask:0xf bank_mask:0xf bound_ctrl:0")
for r in (A1, A2, A3, Wv):
    a(f"v_add_f32_dpp v{r}, v{r}, v{r} row_bcast:15 row_mask:0xa bank_mask:0xf")
MB, SB, RS, NM, T0, T1, KEY = 24, 25, 26, 27, 28, 29, 30
a(f"""
v_mul_f32 v{T0}, v{A2}, v{vC9}
v_fma_f32 v{T0}, -v{A1}, v{A1}, v{T0}
v_max_f32 v{T0}, 0, v{T0}
v_cvt_pk_bf16_f32 v{T1}, v{A1}, v{T0}
v_and_b32 v{T0}, 0xffff0000, v{T1}
v_lshlrev_b32 v{MB}, 16, v{T1}
v_add_f32 v{T0}, 0x3727c5ac, v{T0}
v_cvt_pk_bf16_f32 v{T0}, v{T0}, v{T0}
v_lshlrev_b32 v{T0}, 16, v{T0}
v_sqrt_f32 v{T0}, v{T0}
v_fma_f32 v{KEY}, -v{MB}, v{Wv}, v{A3}
v_cvt_pk_bf16_f32 v{T0}, v{T0}, v{T0}
v_lshlrev_b32 v{SB}, 16, v{T0}
v_rcp_f32 v{RS}, v{SB}
v_or_b32 v{T0}, s{sTLO}, v{MB}
v_mul_f32 v{KEY}, v{KEY}, v{RS}
v_mul_f32 v{NM}, -v{MB}, v{RS}
v_ashrrev_i32 v31, 31, v{KEY}
v_or_b32 v{T1}, s{sTHI}, v{SB}
v_or_b32 v31, 0x80000000, v31
v_xor_b32 v{KEY}, v{KEY}, v31
v_and_b32 v{KEY}, 0xfffff800, v{KEY}
v_or_b32 v{KEY}, v{KEY}, v{vTK}
s_mov_b32 exec_lo, 0x80000000
s_mov_b32 exec_hi, 0x80000000
ds_max_u32 v{vMI}, v{KEY} offset:{M_KEY}
global_store_dwordx2 v{vSA}, {vr(T0,2)}, {P(sWS)} sc1
s_mov_b64 exec, -1
""")
sRA, sRB = sT + 20, sT + 22
a(f"""
v_readlane_b32 s{sRA}, v{RS}, 31
v_readlane_b32 s{sRA+1}, v{NM}, 31
v_readlane_b32 s{sRB}, v{RS}, 63
v_readlane_b32 s{sRB+1}, v{NM}, 63
""")
for i in range(8): unpack(i)
for i in range(8):
    s_ = sRA if i < 4 else sRB
    a(f"v_pk_fma_f32 {vr(UX+2*i,2)}, {vr(UX+2*i,2)}, {P(s_)}, {P(s_)} op_sel:[0,0,1] op_sel_hi:[1,0,1]")
for i in range(8): a(f"v_cvt_pk_f16_f32 v{XA+i}, v{UX+2*i}, v{UX+2*i+1}")
for i in range(8): a(f"v_add_u32 v{XA+i}, 0x40004, v{XA+i}")
for i in range(4): a(f"v_and_or_b32 v{XA+i}, v{XA+i}, v{vMK}, s{sTGA}")
a(f"ds_write_b128 v{vIW}, {vr(XA,4)}")
for i in range(4): a(f"v_and_or_b32 v{XB+i}, v{XB+i}, v{vMK}, s{sTGB}")
a(f"ds_write_b128 v{vIW}, {vr(XB,4)} offset:{LNP}")
a(f"v_mov_b32 v16, 1")
a(f"ds_write_b8 v{vFL}, v16 offset:{M_CNT}")
stamp(2)
lds_spin(18, vMI, M_CNT, 0x01010101, width=2)
for b in range(2):
    a(f"ds_read_b64_tr_b16 {vr(XA+4*b,2)}, v{vTR} offset:{128*b}")
    a(f"ds_read_b64_tr_b16 {vr(XA+4*b+2,2)}, v{vTR} offset:{128*b+4*LNP}")
a(f"s_cmp_lg_u32 s{sUNIT}, 0\n s_cbranch_scc1 L_norout")
a(f"""
s_lshl_b32 s{sT}, s2, 3
s_add_u32 s{sT}, s{sT}, {WS_ROUT}
v_mov_b32 v20, s{sT}
v_mov_b32 v22, v19
v_mov_b32 v23, s{sTAG}
s_mov_b64 exec, 1
global_store_dwordx2 v20, v[22:23], {P(sWS)} sc1
s_mov_b64 exec, -1
""")
a.label("L_norout")
a(f"global_store_dwordx4 v{vXS}, {vr(XA,4)}, {P(sWS)} sc1")
a(f"global_store_dwordx4 v{vXS+1}, {vr(XB,4)}, {P(sWS)} sc1")
stamp(3)
a(f"s_cmp_ge_u32 s{sUNIT}, 2\n s_cbranch_scc1 L_xt")
a(f"s_cmp_eq_u32 s{sFFN}, 1\n s_cbranch_scc1 L_ffnprep")
a(f"s_cmp_eq_u32 s{sUNIT}, 0\n s_cbranch_scc1 L_rpoll")
endpgm()
a.label("L_ffnprep")
a.reset()
pairs = [(0, 2), (4, 6), (1, 3), (5, 7)]
a(f"""
s_mov_b32 s{sT+2}, 0x05040100
s_mov_b32 s{sT+3}, 0x07060302
v_bfe_u32 v16, v1, 2, 2
v_lshrrev_b32 v17, 4, v1
v_lshl_add_u32 v16, v17, 3, v16
v_lshlrev_b32 v16, 5, v16
v_and_b32 v17, 1, v1
v_lshl_add_u32 v16, v17, 3, v16
v_bfe_u32 v17, v1, 1, 1
v_mul_u32_u24 v17, {L_WU-L_WG}, v17
s_lshl_b32 s{sT+4}, s{sUNIT}, 4
s_add_u32 s{sT+4}, s{sT+4}, {L_WG}
v_add3_u32 v20, v16, v17, s{sT+4}
v_mov_b32 v16, 1
""")
a("s_waitcnt vmcnt(2)")
a(f"ds_write_b8 v{vFL}, v16 offset:{M_W}")
for pi, (fa, fb) in enumerate(pairs):
    for c in range(4):
        a(f"v_perm_b32 v{WDP+8*pi+2*c}, v{WD+4*fb+c}, v{WD+4*fa+c}, s{sT+2}")
        a(f"v_perm_b32 v{WDP+8*pi+2*c+1}, v{WD+4*fb+c}, v{WD+4*fa+c}, s{sT+3}")
lds_spin(18, vMI, M_W, 0x0101)
for ks in range(16):
    for hh in range(2):
        a(f"ds_read_b64_tr_b16 {vr(WF+4*ks+2*hh,2)}, v20 offset:{ks*1024+hh*128}")
stamp(4)
a.label("L_rpoll")
a.wait(lgkm=0)
a.reset()
sKEY, sIDX = sT + 4, sT + 5
a(f"""
v_add_u32 v20, {WS_ROUT}, v2
v_and_b32 v21, 15, v1
v_lshlrev_b32 v21, 6, v21
v_lshrrev_b32 v22, 4, v1
v_lshl_add_u32 v21, v22, 4, v21
s_mov_b32 s{sT+1}, 0
""")
a.label("L_rp1")
a(f"""
global_load_dwordx4 v[24:27], v20, {P(sWS)} sc1
global_load_dwordx4 v[28:31], v20, {P(sWS)} offset:1024 sc1
s_add_u32 s{sT+1}, s{sT+1}, 1
""")
a.wait(vm=0)
a(f"""
v_xor_b32 v25, s{sTAG}, v25
v_xor_b32 v27, s{sTAG}, v27
v_xor_b32 v29, s{sTAG}, v29
v_xor_b32 v31, s{sTAG}, v31
v_max3_u32 v24, v24, v26, v28
v_or3_b32 v25, v25, v27, v29
v_max_u32 v24, v24, v30
v_or_b32 v25, v25, v31
v_cmp_ne_u32 vcc, 0, v25
s_cbranch_vccz L_rp2
s_cmp_lt_u32 s{sT+1}, {OPT['POLLMAX']}
s_cbranch_scc1 L_rp1
""")
a.label("L_rp2")
for st in ("row_shr:1", "row_shr:2", "row_shr:4", "row_shr:8"):
    a(f"v_max_u32_dpp v24, v24, v24 {st} row_mask:0xf bank_mask:0xf bound_ctrl:0")
a("v_max_u32_dpp v24, v24, v24 row_bcast:15 row_mask:0xa bank_mask:0xf")
a("v_max_u32_dpp v24, v24, v24 row_bcast:31 row_mask:0xc bank_mask:0xf")
a(f"""
v_readlane_b32 s{sKEY}, v24, 63
s_and_b32 s{sIDX}, s{sKEY}, 0x7ff
s_sub_u32 s{sIDX}, 2047, s{sIDX}
s_lshl_b32 s{sT+6}, s{sIDX}, 10
s_lshl_b32 s{sT+7}, s{sIDX}, 3
s_add_u32 s{sT+7}, s{sT+7}, {WS_STAT}
v_add_u32 v21, s{sT+6}, v21
v_mov_b32 v22, s{sT+7}
s_cmp_eq_u32 s{sFFN}, 0
s_cbranch_scc1 L_rp3
global_load_dwordx4 v[24:27], v21, {P(sX)}
global_load_dwordx2 v[28:29], v22, {P(sWS)} sc1
""")
a.label("L_rp3")
a(f"""
s_cmp_lg_u32 s{sUNIT}, 0
s_cbranch_scc1 L_rp4
v_mov_b32 v30, 1
v_mov_b32 v31, s{sIDX}
s_mov_b64 exec, 1
ds_write_b64 v{vMI}, v[30:31] offset:{M_RT}
s_cmp_lg_u32 s2, 0
s_cbranch_scc1 L_rp5
v_mov_b32 v30, 0
v_mov_b32 v31, s{sTAG}
global_store_dword v30, v31, {P(sWS)} sc1
""")
a.label("L_rp5")
a("s_mov_b64 exec, -1")
a.label("L_rp4")
stamp(5)
a(f"s_cmp_eq_u32 s{sFFN}, 0\n s_cbranch_scc1 L_hop2")
a.reset()
a(f"s_mov_b32 s{sT+1}, 0")
a.label("L_st1")
a.wait(vm=0)
a(f"""
v_xor_b32 v28, s{sTLO}, v28
v_xor_b32 v29, s{sTHI}, v29
v_or_b32 v30, v28, v29
v_and_b32 v30, 0xffff, v30
v_cmp_ne_u32 vcc, 0, v30
s_cbranch_vccz L_st2
s_add_u32 s{sT+1}, s{sT+1}, 1
s_cmp_ge_u32 s{sT+1}, {OPT['POLLMAX']}
s_cbranch_scc1 L_st2
global_load_dwordx2 v[28:29], v22, {P(sWS)} sc1
s_branch L_st1
""")
a.label("L_st2")
a.reset()
stamp(6)
a(f"v_rcp_f32 v32, v29")
for i in range(4):
    a(f"v_lshlrev_b32 v{UX+2*i}, 16, v{24+i}\n v_and_b32 v{UX+2*i+1}, 0xffff0000, v{24+i}")
a(f"v_mul_f32 v33, -v28, v32")
for i in range(4):
    a(f"v_pk_fma_f32 {vr(UX+2*i,2)}, {vr(UX+2*i,2)}, v[32:33], v[32:33] op_sel:[0,0,1] op_sel_hi:[1,0,1]")
for i in range(4): a(f"v_cvt_pk_bf16_f32 v{24+i}, v{UX+2*i}, v{UX+2*i+1}")
BB = [44, 48]; DG = 32
def bc(ks):
    for i in range(4):
        a(f"v_mov_b32_dpp v{BB[ks&1]+i}, v{24+i} row_newbcast:{ks} row_mask:0xf bank_mask:0xf")
bc(0)
for ks in range(16):
    if ks < 15: bc(ks + 1)
    a(f"v_mfma_f32_16x16x32_bf16 {vr(DG,4)}, {vr(WF+4*ks,4)}, {vr(BB[ks&1],4)}, {'0' if ks == 0 else vr(DG,4)}")
sTB = sT + 6
a(f"""
s_lshr_b32 s{sTB+1}, s{sTAG}, 8
s_lshr_b32 s{sTB+2}, s{sTAG}, 16
s_lshr_b32 s{sTB+3}, s{sTAG}, 24
s_lshl_b32 s{sT}, s{sPU}, 11
s_add_u32 s{sT}, s{sT}, {WS_PART}
v_lshlrev_b32 v20, 5, v1
v_add_u32 v20, s{sT}, v20
v_mov_b32 v21, 0xff
v_permlane32_swap_b32 v{DG}, v{DG+1}
v_permlane32_swap_b32 v{DG+2}, v{DG+3}
v_mul_f32 v36, 0xbfb8aa3b, v{DG}
v_mul_f32 v37, 0xbfb8aa3b, v{DG+2}
v_exp_f32 v36, v36
v_exp_f32 v37, v37
v_mul_f32 v{DG}, v{DG}, v{DG+1}
v_add_f32 v36, 1.0, v36
v_add_f32 v37, 1.0, v37
v_rcp_f32 v36, v36
v_rcp_f32 v37, v37
v_mul_f32 v{DG+2}, v{DG+2}, v{DG+3}
v_mul_f32 v36, v36, v{DG}
v_mul_f32 v37, v37, v{DG+2}
v_cvt_pk_bf16_f32 v36, v36, v37
""")
sH = sT + 13
for pi in range(4): a(f"v_readlane_b32 s{sH+pi}, v36, {16*pi}")
Y = 40
for pi in range(4):
    for c in range(8):
        a(f"v_dot2_f32_bf16 v{Y+c}, v{WDP+8*pi+c}, s{sH+pi}, {'0' if pi == 0 else 'v%d' % (Y+c)}")
for c in range(8):
    a(f"v_bfi_b32 v{Y+c}, v21, s{sTAG if c % 4 == 0 else sTB + c % 4}, v{Y+c}")
    if c == 3: a(f"global_store_dwordx4 v20, {vr(Y,4)}, {P(sWS)} sc1")
a(f"global_store_dwordx4 v20, {vr(Y+4,4)}, {P(sWS)} offset:16 sc1")
stamp(7)
a(f"s_cmp_eq_u32 s{sUNIT}, 0\n s_cbranch_scc1 L_hop2")
endpgm()
a.label("L_hop2")
a.reset()
a(f"""
s_lshr_b32 s{sT}, s{sIDX}, 8
s_add_u32 s{sT}, s{sT}, 6
s_and_b32 s{sT}, s{sT}, 7
s_lshr_b32 s{sT}, s{sT}, 2
s_xor_b32 s{sT}, s{sT}, 1
s_cmp_eq_u32 s{sT}, s{sHS}
s_cbranch_scc1 L_h1
""")
endpgm()
a.label("L_h1")
a(f"""
s_and_b32 s{sTB}, s{sTAG}, 0xff
s_bfe_u32 s{sTB+1}, s{sTAG}, 0x80008
s_bfe_u32 s{sTB+2}, s{sTAG}, 0x80010
s_lshr_b32 s{sTB+3}, s{sTAG}, 24
s_lshl_b32 s{sT}, s{sCG}, 4
s_add_u32 s{sT}, s{sT}, {WS_PART}
v_lshlrev_b32 v20, 11, v1
v_add_u32 v20, s{sT}, v20
v_add_u32 v21, 0x20000, v20
v_add_u32 v22, 0x40000, v20
v_add_u32 v23, 0x60000, v20
v_mov_b32 v36, s{sTB}
v_mov_b32 v37, s{sTB+1}
v_mov_b32 v38, s{sTB+2}
v_mov_b32 v39, s{sTB+3}
s_and_b32 s{sT}, s{sKEY}, 0xfffff800
s_xor_b32 s{sT+2}, s{sT}, 0x80000000
s_not_b32 s{sT+3}, s{sT}
s_bitcmp1_b32 s{sT}, 31
s_cselect_b32 s{sT}, s{sT+2}, s{sT+3}
v_mov_b32 v44, s{sT}
v_mul_f32 v44, 0xbfb8aa3b, v44
v_exp_f32 v44, v44
s_mov_b32 s{sT+1}, 0
v_add_f32 v44, 1.0, v44
v_rcp_f32 v44, v44
s_lshl_b32 s{sT}, s{sIDX}, 10
s_lshl_b32 s{sT+2}, s{sCG}, 3
s_add_u32 s{sT}, s{sT}, s{sT+2}
v_lshrrev_b32 v45, 4, v1
v_and_b32 v46, 1, v45
v_lshrrev_b32 v45, 1, v45
v_lshl_add_u32 v45, v46, 1, v45
v_lshl_add_u32 v46, v45, 2, v{vMI}
v_lshl_add_u32 v45, v45, 1, s{sT}
""")
a.label("L_h2")
a(f"""
global_load_dwordx4 v[24:27], v20, {P(sWS)} sc1
global_load_dwordx4 v[28:31], v21, {P(sWS)} sc1
global_load_dwordx4 v[32:35], v22, {P(sWS)} sc1
s_mov_b32 exec_hi, 0
global_load_dwordx4 v[36:39], v23, {P(sWS)} sc1
s_mov_b32 exec_hi, -1
s_add_u32 s{sT+1}, s{sT+1}, 1
""")
a.wait(vm=0)
for i in range(4):
    a(f"v_xor_b32 v{40+i}, v{24+i}, v{28+i}")
for i in range(4):
    a(f"v_xor_b32 v{48+i}, v{32+i}, v{36+i}")
for i in range(4):
    a(f"v_xor_b32 v{52+i}, s{sTB+i}, v{24+i}" if False else f"v_xor_b32 v{16 + i}, s{sTB+i}, v{24+i}")
a(f"""
v_or3_b32 v40, v40, v41, v42
v_or3_b32 v48, v48, v49, v50
v_or3_b32 v16, v16, v17, v18
v_xor_b32 v41, v24, v32
v_xor_b32 v42, v25, v33
v_xor_b32 v49, v26, v34
v_xor_b32 v50, v27, v35
v_or3_b32 v40, v40, v43, v48
v_or3_b32 v16, v16, v19, v51
v_or3_b32 v41, v41, v42, v49
v_or3_b32 v40, v40, v16, v50
v_or_b32 v40, v40, v41
v_and_b32 v40, 0xff, v40
v_cmp_ne_u32 vcc, 0, v40
s_cbranch_vccz L_h3
s_cmp_lt_u32 s{sT+1}, {OPT['POLLMAX']}
s_cbranch_scc1 L_h2
""")
a.label("L_h3")
stamp(8)
a(f"""
v_pk_add_f32 v[24:25], v[24:25], v[28:29]
v_pk_add_f32 v[26:27], v[26:27], v[30:31]
v_pk_add_f32 v[32:33], v[32:33], v[36:37]
v_pk_add_f32 v[34:35], v[34:35], v[38:39]
v_pk_add_f32 v[24:25], v[24:25], v[32:33]
v_pk_add_f32 v[26:27], v[26:27], v[34:35]
v_permlane32_swap_b32 v24, v25
v_permlane32_swap_b32 v26, v27
v_add_f32 v24, v24, v25
v_add_f32 v26, v26, v27
v_permlane16_swap_b32 v24, v26
v_add_f32 v24, v24, v26
""")
for st in ("row_shr:1", "row_shr:2", "row_shr:4", "row_shr:8"):
    a(f"v_add_f32_dpp v24, v24, v24 {st} row_mask:0xf bank_mask:0xf bound_ctrl:0")
lds_spin(18, vMI, M_SV, 1)
a(f"""
ds_read_b32 v25, v46 offset:{M_SAVE}
v_fma_f32 v25, v24, v44, v25
v_cvt_pk_bf16_f32 v25, v25, v25
s_mov_b32 exec_lo, 0x80008000
s_mov_b32 exec_hi, 0x80008000
global_store_short v45, v25, {P(sOUT)}
""")
stamp(9)
endpgm()
a.label("L_xt")
a.reset()
XT, ST = 64, 96
sE = sT + 2
sJ = sT + 6
a(f"s_sub_u32 s{sUNIT}, s{sUNIT}, 2")
for i in range(4):
    a(f"""
    s_bfe_u32 s{sE+i}, s{sTAG}, {0x30000 + 6*i}
    s_bfe_u32 s{sT}, s{sTAG}, {0x30000 + 6*i + 3}
    s_lshl_b32 s{sT}, s{sT}, 16
    s_or_b32 s{sE+i}, s{sE+i}, s{sT}
    """)
a(f"""
s_cmp_eq_u32 s{sHS}, 0
s_cselect_b32 s{sJ}, 0, 512
s_cselect_b32 s{sJ+2}, 512, 0
s_add_u32 s{sJ+1}, s{sJ}, 256
s_add_u32 s{sJ+2}, s{sJ+2}, 1024
s_add_u32 s{sJ+3}, s{sJ+2}, 256
""")
if FULL:
    a(f"""
    s_lshr_b32 s{sT}, s{sCG}, 1
    s_lshl_b32 s{sT}, s{sT}, 15
    s_and_b32 s{sT+1}, s{sCG}, 1
    s_lshl_b32 s{sT+1}, s{sT+1}, 6
    s_add_u32 s{sT}, s{sT}, s{sT+1}
    s_lshl_b32 s{sT+1}, s{sUNIT}, 11
    s_add_u32 s{sT}, s{sT}, s{sT+1}
    s_add_u32 s{sT}, s{sT}, {WS_XT + 4096}
    v_lshrrev_b32 v16, 2, v1
    v_lshlrev_b32 v16, 7, v16
    v_and_b32 v17, 3, v1
    v_lshl_add_u32 v16, v17, 4, v16
    v_add_u32 v20, s{sT}, v16
    v_add_u32 v21, 0x2000, v20
    v_add_u32 v22, 0x4000, v20
    v_add_u32 v23, 0x6000, v20
    """)
    xtaddr = lambda i: (20 + i // 2, (i % 2) * 4096 - 4096)
else:
    a(f"""
    s_lshl_b32 s{sT}, s{sCG}, 14
    s_lshl_b32 s{sT+1}, s{sUNIT}, 10
    s_add_u32 s{sT}, s{sT}, s{sT+1}
    s_add_u32 s{sT}, s{sT}, {WS_XT + 4096}
    v_add_u32 v20, s{sT}, v2
    v_add_u32 v21, 0x2000, v20
    """)
    xtaddr = lambda i: (20 + i // 4, (i % 4) * 2048 - 4096)
vUW, vTOK, vSTA, vYR, vUR, vOA = 24, 25, 26, 27, 28, 29
a(f"""
v_and_b32 v17, 3, v1
v_mul_u32_u24 v17, {USTR}, v17
v_lshrrev_b32 v16, 2, v1
v_lshl_add_u32 v17, v16, 4, v17
s_lshl_b32 s{sT}, s{sUNIT}, 8
s_add_u32 s{sT}, s{sT}, {L_U + 512}
v_add_u32 v{vUW}, s{sT}, v17
s_lshl_b32 s{sT}, s{sUNIT}, 6
v_add_u32 v{vTOK}, s{sT}, v1
v_lshlrev_b32 v{vSTA}, 3, v{vTOK}
v_add_u32 v{vSTA}, {WS_STAT}, v{vSTA}
v_lshlrev_b32 v{vYR}, 2, v{vTOK}
v_lshlrev_b32 v{vUR}, 1, v{vTOK}
v_add_u32 v{vUR}, {L_U + 512}, v{vUR}
s_lshl_b32 s{sT}, s{sCG}, 3
v_lshl_add_u32 v{vOA}, v{vTOK}, 10, s{sT}
v_subrev_u32 v{vFL}, 2, v{vFL}
""")
for q in range(4):
    a(f"s_lshl_b32 s{sT}, s{sJ+q}, 3\n v_add_u32 v{30+q}, s{sT}, v{vSTA}")
lds_spin(18, vMI, M_RT, 1, width=2)
sIDX2 = sT + 10
a(f"v_readfirstlane_b32 s{sIDX2}, v19")
stamp(4)
a(f"s_mov_b32 s{sT+1}, 0")
a.label("L_x1")
for i in range(8):
    r, o = xtaddr(i)
    a(f"global_load_dwordx4 {vr(XT+4*i,4)}, v{r}, {P(sWS)} offset:{o} sc1")
for i in range(8):
    a(f"global_load_dwordx2 {vr(ST+2*i,2)}, v{30+i//2}, {P(sWS)} offset:{(i%2)*1024} sc1")
a(f"s_add_u32 s{sT+1}, s{sT+1}, 1")
for i in range(8):
    for j in range(4): a(f"v_xor_b32 v{XT+4*i+j}, s{sE+j}, v{XT+4*i+j}")
    a(f"ds_write_b128 v{vUW}, {vr(XT+4*i,4)} offset:{512*i}")
    if i == 0:
        a(f"v_or3_b32 v16, v{XT}, v{XT+1}, v{XT+2}\n v_mov_b32 v17, v{XT+3}")
    else:
        a(f"v_or3_b32 v16, v16, v{XT+4*i}, v{XT+4*i+1}\n v_or3_b32 v17, v17, v{XT+4*i+2}, v{XT+4*i+3}")
a(f"""
v_or_b32 v16, v16, v17
v_and_b32 v16, 0x70007, v16
v_cmp_ne_u32 vcc, 0, v16
s_cbranch_vccz L_x2
s_cmp_lt_u32 s{sT+1}, {OPT['POLLMAX']}
s_waitcnt vmcnt(0)
s_cbranch_scc1 L_x1
""")
a.label("L_x2")
a(f"v_mov_b32 v16, 1\n ds_write_b8 v{vFL}, v16 offset:{M_U}")
stamp(5)
a(f"s_mov_b32 s{sT+1}, 0")
a.label("L_x3")
a.wait(vm=0)
for i in range(8):
    a(f"v_xor_b32 v{ST+2*i}, s{sTLO}, v{ST+2*i}\n v_xor_b32 v{ST+2*i+1}, s{sTHI}, v{ST+2*i+1}")
    a(f"v_or3_b32 v16, {'0' if i == 0 else 'v16'}, v{ST+2*i}, v{ST+2*i+1}")
a(f"""
v_and_b32 v16, 0xffff, v16
v_cmp_ne_u32 vcc, 0, v16
s_cbranch_vccz L_x4
s_add_u32 s{sT+1}, s{sT+1}, 1
s_cmp_ge_u32 s{sT+1}, {OPT['POLLMAX']}
s_cbranch_scc1 L_x4
""")
for i in range(8):
    a(f"global_load_dwordx2 {vr(ST+2*i,2)}, v{30+i//2}, {P(sWS)} offset:{(i%2)*1024} sc1")
a("s_branch L_x3")
a.label("L_x4")
a.reset()
INV = 36
sOB = sT + 12
for q in range(4):
    lds_spin(18, vMI, M_T + 4 * q, 0x01010101)
    if q == 0: a(f"ds_read_b128 {vr(INV,4)}, v{vMI} offset:{M_INV}")
    a(f"s_lshl_b32 s{sT}, s{sJ+q}, 1\n v_add_u32 v30, s{sT}, v{vUR}")
    a(f"s_lshl_b32 s{sT}, s{sJ+q}, 10\n s_add_u32 s{sOB}, s{sOUT}, s{sT}\n s_addc_u32 s{sOB+1}, s{sOUT+1}, 0")
    a(f"s_sub_u32 s{sT+11}, s{sIDX2}, s{sJ+q}")
    for h in range(2):
        y, u = 112 + 8 * h, 116 + 8 * h
        for c in range(4):
            a(f"ds_read_b32 v{y+c}, v{vYR} offset:{L_KT + c*KT_SZ + q*1024 + h*512}")
            a(f"ds_read_u16_d16 v{u+c}, v30 offset:{c*USTR + h*256}")
    for h in range(2):
        y, u, i = 112 + 8 * h, 116 + 8 * h, 2 * q + h
        for c in range(4):
            a(f"v_fma_mix_f32 v{u+c}, v{u+c}, v{ST+2*i+1}, v{ST+2*i} op_sel_hi:[1,0,0]")
        if h == 1: a(f"s_sub_u32 s{sT+11}, s{sT+11}, 128")
        a(f"v_cmp_ne_u32 vcc, s{sT+11}, v{vTOK}")
        for c in range(4):
            a(f"v_fma_f32 v{y+c}, v{y+c}, v{INV+c}, v{u+c}")
        a(f"v_cvt_pk_bf16_f32 v{u}, v{y}, v{y+1}\n v_cvt_pk_bf16_f32 v{u+1}, v{y+2}, v{y+3}")
        if h == 1: a(f"s_add_u32 s{sOB}, s{sOB}, 0x20000\n s_addc_u32 s{sOB+1}, s{sOB+1}, 0")
        Lk = a.newlabel("nosave")
        a(f"""
        s_mov_b64 exec, vcc
        global_store_dwordx2 v{vOA}, {vr(u,2)}, {P(sOB)}
        s_not_b64 exec, exec
        s_cbranch_execz {Lk}
        v_mov_b32 v16, 1
        ds_write_b128 v{vMI}, {vr(y,4)} offset:{M_SAVE}
        ds_write_b32 v{vMI}, v16 offset:{M_SV}
        """)
        a.label(Lk)
        a("s_mov_b64 exec, -1")
    stamp(6 + q)
endpgm()

a.raw(".p2align 6")
a.label("L_conv")
a.reset()
a.smem_any = True
PRM, BAND = 4, 12
KW, T2, T3, ACC, DT, BX2, BX3, URING = 36, 104, 128, 144, 160, 176, 208, 224
NRING = 6
vKTA, vWA, vWT2, vWT3, vKWB, vT, vKW, vKW0, vU, vCF, vK0, vDmp = 248, 249, 250, 251, 252, 253, 254, 255, 2, 3, 10, 11
sCH, sLD, sDS, sKWB = sT + 2, sT + 3, sT + 4, sT + 5
a(f"""
s_lshl_b32 s{sCH}, s{sCG}, 2
s_add_u32 s{sCH}, s{sCH}, s{sWAVE}
s_lshl_b32 s{sT+6}, s{sCH}, 8
v_lshl_add_u32 v36, v1, 2, s{sT+6}
s_lshr_b32 s{sT+6}, s{sCH}, 1
s_lshl_b32 s{sT+6}, s{sT+6}, 2
v_lshlrev_b32 v37, 4, v1
v_add_u32 v38, L_tab-L_pc, v37
""")
a.wait(lgkm=0)
if STAMPS: a(f"s_mov_b32 s{sST}, s88")
for i, s_ in enumerate((sARE, sAIM, sBRE, sBIM, sCRE, sCIM)):
    a(f"global_load_dword v{PRM+i}, v36, {P(s_)}")
a(f"s_load_dword s{sLD}, {P(sLDT)}, s{sT+6}\n s_load_dword s{sDS}, {P(sDSK)}, s{sT+6}")
a(f"v_add_u32 v39, 4096, v38")
for i in range(6):
    a(f"global_load_dwordx4 {vr(BAND+4*i,4)}, v{38 if i < 4 else 39}, {P(sPC)} offset:{(i%4)*1024}")
a(f"""
s_lshl_b32 s{sKWB}, s{sWAVE}, 12
s_add_u32 s{sKWB}, s{sKWB}, {L_KW}
v_mov_b32 v40, 0
v_mov_b32 v41, 0
v_mov_b32 v42, 0
v_mov_b32 v43, 0
v_add_u32 v39, s{sKWB}, v37
ds_write_b128 v39, v[40:43]
ds_write_b128 v39, v[40:43] offset:1024
ds_write_b128 v39, v[40:43] offset:2048
ds_write_b128 v39, v[40:43] offset:3072
s_mul_i32 s{sT+6}, s{sWAVE}, {USTR}
s_add_u32 s{sT+6}, s{sT+6}, {L_U}
v_lshl_add_u32 v39, v1, 3, s{sT+6}
ds_write_b64 v39, v[40:41]
v_and_b32 v40, 15, v1
v_lshrrev_b32 v41, 4, v1
v_lshlrev_b32 v{vU}, 5, v40
v_lshl_add_u32 v{vU}, v41, 4, v{vU}
v_add_u32 v{vU}, s{sT+6}, v{vU}
s_mul_i32 s{sT+7}, s{sWAVE}, {KT_SZ}
s_mov_b32 m0, s{sT+7}
v_lshlrev_b32 v{vDmp}, 6, v40
v_lshl_add_u32 v{vDmp}, v41, 4, v{vDmp}
v_add_u32 v{vDmp}, s{sT+7}, v{vDmp}
v_and_b32 v42, 31, v1
v_lshrrev_b32 v43, 5, v1
v_mul_u32_u24 v{vKTA}, {ROWP}, v42
v_lshl_add_u32 v{vKTA}, v43, 4, v{vKTA}
v_add_u32 v{vKTA}, s{sT+7}, v{vKTA}
v_mov_b32 v{vKWB}, s{sKWB}
s_add_u32 s{sT+7}, s{sKWB}, {KW_A + 1072}
v_sub_u32 v{vWA}, s{sT+7}, v37
v_and_b32 v44, 1, v1
v_lshlrev_b32 v45, 8, v44
v_lshrrev_b32 v46, 1, v1
v_lshlrev_b32 v46, 2, v46
v_sub_u32 v45, v45, v46
s_add_u32 s{sT+7}, s{sKWB}, {47*4}
v_add_u32 v{vWT2}, s{sT+7}, v45
v_lshrrev_b32 v45, 1, v42
v_lshl_add_u32 v45, v43, 5, v45
v_lshlrev_b32 v45, 2, v45
v_lshlrev_b32 v46, 1, v44
v_sub_u32 v45, v46, v45
s_add_u32 s{sT+7}, s{sKWB}, {KW_T3 + 47*4}
v_add_u32 v{vWT3}, s{sT+7}, v45
v_lshlrev_b32 v45, 2, v41
v_sub_u32 v46, v45, v40
v_lshlrev_b32 v46, 2, v46
s_add_u32 s{sT+7}, s{sKWB}, 60
v_add_u32 v{vT}, s{sT+7}, v46
v_add_u32 v46, 1, v40
v_lshrrev_b32 v46, 1, v46
v_sub_u32 v45, v45, v46
v_lshlrev_b32 v45, 2, v45
v_mul_u32_u24 v46, {KW_B - KW_A}, v44
v_sub_u32 v45, v45, v46
s_add_u32 s{sT+7}, s{sKWB}, {KW_B + 32}
v_add_u32 v{vKW}, s{sT+7}, v45
v_add_u32 v{vKW0}, 64, v{vKW}
v_lshlrev_b32 v45, 2, v1
v_add_u32 v45, {L_MISC + M_DUMMY}, v45
s_add_u32 s{sT+7}, s{sWAVE}, {L_MISC}
v_mov_b32 v46, s{sT+7}
v_cmp_eq_u32 vcc, 0, v1
s_barrier
""")
a.wait(lgkm=0)
DTv, K1, K2, ONE = 74, 75, 76, 77
a(f"""
v_cndmask_b32 v{vCF}, v45, v46, vcc
s_lshl_b32 s{sT+7}, s{sLD}, 16
s_and_b32 s{sLD}, s{sLD}, 0xffff0000
s_lshl_b32 s{sT+8}, s{sDS}, 16
s_and_b32 s{sDS}, s{sDS}, 0xffff0000
s_bitcmp1_b32 s{sCH}, 0
s_cselect_b32 s{sLD}, s{sLD}, s{sT+7}
s_cselect_b32 s{sDS}, s{sDS}, s{sT+8}
v_mov_b32 v{DTv}, s{sLD}
v_mul_f32 v{DTv}, 0x3fb8aa3b, v{DTv}
v_exp_f32 v{DTv}, v{DTv}
v_mov_b32 v{ONE}, 0x3c00
v_cvt_pk_bf16_f32 v{DTv}, v{DTv}, v{DTv}
v_lshlrev_b32 v{DTv}, 16, v{DTv}
v_mul_f32 v{K1}, 0x3fb8aa3b, v{DTv}
v_mul_f32 v{K2}, 0x3e22f983, v{DTv}
v_add_f32 v{vK0}, 1.0, s{sDS}
v_and_b32 v78, 0x7fffffff, v{vK0}
v_cndmask_b32 v{vK0}, 0, v{vK0}, vcc
""")
a("s_waitcnt vmcnt(6)")
stamp(1)
Z = [36, 38]; W = [40, 42]; TB, TC = 44, 46
E1, E2, E8, E256, CUR, TMP, SV = 52, 54, 56, 58, 60, 62, 64
CV = [66, 67, 68, 69]; cvi = [0]
def cmul(d, x, y):
    a(f"v_pk_mul_f32 {vr(TMP,2)}, {vr(x,2)}, {vr(y,2)} op_sel:[0,0] op_sel_hi:[1,0]")
    a(f"v_pk_fma_f32 {vr(d,2)}, {vr(x,2)}, {vr(y,2)}, {vr(TMP,2)} op_sel:[1,1,0] op_sel_hi:[0,1,1] neg_lo:[1,0,0]")
def put(rows, x, neg):
    c = CV[cvi[0] % 4]; cvi[0] += 1
    a(f"v_cvt_pk_f16_f32 v{c}, v{x}, {'-' if neg else ''}v{x+1}")
    for r in rows: a(f"ds_write_addtid_b32 v{c} offset:{r*ROWP}")
def unp(d, src, hi):
    a(f"v_and_b32 v{d}, 0xffff0000, v{src}" if hi else f"v_lshlrev_b32 v{d}, 16, v{src}")
for s_ in range(2):
    unp(TB, PRM + 2, s_); unp(TB + 1, PRM + 3, s_); unp(TC, PRM + 4, s_); unp(TC + 1, PRM + 5, s_)
    unp(Z[s_], PRM, s_); unp(Z[s_] + 1, PRM + 1, s_)
    cmul(W[s_], TB, TC)
    a(f"v_pk_mul_f32 {vr(Z[s_],2)}, {vr(Z[s_],2)}, {vr(K1 - 1 + 1,2) if False else 'v[%d:%d]' % (70, 71)}" if False else
      f"v_mul_f32 v{Z[s_]}, v{Z[s_]}, v{K1}\n v_mul_f32 v{Z[s_]+1}, v{Z[s_]+1}, v{K2}")
SUM = 79
a(f"""
v_add_f32 v{SUM}, |v{W[0]}|, |v{W[0]+1}|
v_add_f32 v70, |v{W[1]}|, |v{W[1]+1}|
v_add_f32 v{SUM}, v{SUM}, v70
""")
red = [f"v_add_f32_dpp v{SUM}, v{SUM}, v{SUM} {st} row_mask:0xf bank_mask:0xf bound_ctrl:0" for st in ("row_shr:1", "row_shr:2", "row_shr:4", "row_shr:8")]
red += [f"v_add_f32_dpp v{SUM}, v{SUM}, v{SUM} row_bcast:15 row_mask:0xa bank_mask:0xf", f"v_add_f32_dpp v{SUM}, v{SUM}, v{SUM} row_bcast:31 row_mask:0xc bank_mask:0xf"]
def evalE(s_, extra):
    zr, zi = Z[s_], Z[s_] + 1
    ex = list(extra)
    def X():
        if ex: a(ex.pop(0))
    for (d, lit) in ((E8, "0x41000000"), (E1, None), (E256, "0x43800000")):
        if lit:
            a(f"v_mul_f32 v70, {lit}, v{zi}"); a(f"v_mul_f32 v72, {lit}, v{zr}"); X()
            a("v_fract_f32 v70, v70"); a("v_exp_f32 v72, v72")
        else:
            a(f"v_fract_f32 v70, v{zi}"); a(f"v_exp_f32 v72, v{zr}")
        a(f"v_cos_f32 v{d}, v70"); a(f"v_sin_f32 v{d+1}, v70"); X()
        a(f"v_pk_mul_f32 {vr(d,2)}, {vr(d,2)}, v[72:73] op_sel_hi:[1,0]"); X()
    while ex: X()
FR = 160
def ktread(kind):
    for k in range(8):
        base = FR + 4 * k + (32 if kind == "B" else 0)
        a(f"ds_read_b128 {vr(base,4)}, v{vKTA} offset:{32*k + (24*ROWP if kind == 'B' else 0)}")
def kmfma(k, first):
    a(f"v_mfma_f32_32x32x16_f16 {vr(ACC,16)}, {vr(FR+4*k,4)}, {vr(FR+32+4*k,4)}, {'0' if first else vr(ACC,16)}")
def qrows(hook):
    a(f"ds_write_addtid_b32 v{ONE} offset:{24*ROWP}")
    put([25], E8, False)
    for j in range(2, 32):
        cmul(CUR, E8 if j == 2 else CUR, E8); put([24 + j], CUR, False); hook(j)
def prows(s_):
    w = W[s_]
    put([0], w, True)
    for e in range(1, 8):
        cmul(CUR, w if e == 1 else CUR, E1); put([e if e < 4 else e + 4], CUR, True)
    cmul(E2, E1, E1)
    cmul(CUR, w, E256); put([4, 5], CUR, True)
    cmul(CUR, CUR, E2); put([6], CUR, True)
    cmul(SV, CUR, E2); put([7, 12, 13], SV, True)
    cmul(CUR, SV, E2); put([14], CUR, True)
    cmul(CUR, CUR, E2); put([15], CUR, True)
    cmul(SV, SV, E256); put([16], SV, True)
    cmul(CUR, CUR, E256); put([17], CUR, True)
    cmul(SV, SV, E256); put([20], SV, True)
    cmul(CUR, CUR, E256); put([21], CUR, True)
    for r in (18, 19, 22, 23):
        cmul(CUR, CUR, E256); put([r], CUR, True)
evalE(0, red)
sSUM = sT + 7
a(f"""
v_readlane_b32 s{sSUM}, v{SUM}, 63
v_fma_f32 v70, v{DTv}, s{sSUM}, v78
v_frexp_exp_i32_f32 v70, v70
v_sub_u32 v71, 14, v70
v_subrev_u32 v70, 14, v70
v_ldexp_f32 v72, v{DTv}, v71
v_ldexp_f32 v{vK0}, v{vK0}, v71
v_ldexp_f32 v70, 1.0, v70
s_lshl_b32 s{sT+8}, s{sWAVE}, 2
s_add_u32 s{sT+8}, s{sT+8}, {L_MISC + M_INV}
v_mov_b32 v71, s{sT+8}
v_pk_mul_f32 {vr(W[0],2)}, {vr(W[0],2)}, v[72:73] op_sel_hi:[1,0]
v_pk_mul_f32 {vr(W[1],2)}, {vr(W[1],2)}, v[72:73] op_sel_hi:[1,0]
s_mov_b64 exec, 1
ds_write_b32 v71, v70
s_mov_b64 exec, -1
""")
qrows(lambda j: None); prows(0)
ktread("A"); ktread("B")
evalE(1, [])
qrows(lambda j: kmfma((j - 2) // 3, j == 2) if (j - 2) % 3 == 0 and j < 26 else None)
ktread("B")
prows(1)
ktread("A")
for k in range(8): kmfma(k, False)
stamp(2)
Q = 60
a(f"""
v_add_f32 v{ACC}, v{ACC}, v{vK0}
v_mov_b32_dpp v36, v{ACC+7} wave_shr:1 row_mask:0xf bank_mask:0xf bound_ctrl:0
v_cvt_pk_f16_f32 v40, v{ACC+7}, v{ACC+6}
v_cvt_pk_f16_f32 v41, v{ACC+5}, v{ACC+4}
v_cvt_pk_f16_f32 v42, v{ACC+3}, v{ACC+2}
v_cvt_pk_f16_f32 v43, v{ACC+1}, v{ACC}
ds_write_b128 v{vWA}, v[40:43]
v_cvt_pk_f16_f32 v44, v{ACC+6}, v{ACC+5}
v_cvt_pk_f16_f32 v45, v{ACC+4}, v{ACC+3}
v_cvt_pk_f16_f32 v46, v{ACC+2}, v{ACC+1}
v_cvt_pk_f16_f32 v47, v{ACC}, v36
ds_write_b128 v{vWA}, v[44:47] offset:{KW_B - KW_A + 4}
v_cvt_pk_f16_f32 v48, v{ACC+7}, v{ACC+7}
v_cvt_pk_f16_f32 v49, 0, v{ACC+7}
v_cvt_pk_f16_f32 v50, v{ACC+8}, v{ACC+9}
v_cvt_pk_f16_f32 v51, v{ACC+10}, v{ACC+11}
v_cvt_pk_f16_f32 v52, v{ACC+9}, v{ACC+9}
s_mov_b32 exec_lo, 0
s_mov_b32 exec_hi, 0x80000000
ds_write_b32 v{vKWB}, v49 offset:{KW_A + 56}
ds_write_b32 v{vKWB}, v48 offset:{KW_A + 60}
ds_write_b32 v{vKWB}, v48 offset:{KW_B + 60}
ds_write_b32 v{vKWB}, v48 offset:{KW_B + 64}
s_mov_b64 exec, -1
ds_write_b32 v{vWT2}, v50
ds_write_b16 v{vWT3}, v51 offset:64
ds_write_b16_d16_hi v{vWT3}, v51
v_readlane_b32 s{sT+8}, v52, 63
""")
for mu in list(range(16, -1, -1)):
    base, o = (vKW0, 240) if mu == 0 else (vKW, 256 - 16 * mu)
    a(f"ds_read2_b32 {vr(KW+4*mu,2)}, v{base} offset0:{o} offset1:{o+1}")
    a(f"ds_read2_b32 {vr(KW+4*mu+2,2)}, v{base} offset0:{o+2} offset1:{o+3}")
    if mu == 16:
        for i in range(4): a(f"v_and_b32 v{BAND+20+i}, s{sT+8}, v{BAND+20+i}")
for ab in range(2):
    for d in range(3):
        o = 64 * ab + 16 * d
        a(f"ds_read2_b32 {vr(T2+12*ab+4*d,2)}, v{vT} offset0:{o} offset1:{o+1}")
        a(f"ds_read2_b32 {vr(T2+12*ab+4*d+2,2)}, v{vT} offset0:{o+2} offset1:{o+3}")
for d in range(4):
    o = 128 + 48 - 16 * d
    a(f"ds_read2_b32 {vr(T3+4*d,2)}, v{vT} offset0:{o} offset1:{o+1}")
    a(f"ds_read2_b32 {vr(T3+4*d+2,2)}, v{vT} offset0:{o+2} offset1:{o+3}")
a(f"v_mov_b32 v{vK0}, {L_MISC}\n v_mov_b32 v{vKWB}, 1")
stamp(3)
lds_spin(ACC, vK0, M_U, 0x0101)
stamp(4)
a(f"s_cmp_eq_u32 s{sHS}, 0\n s_cbranch_scc0 L_convY")

B3A, B5, B3B, B7, B9, SPK = [BAND + 4 * i for i in range(6)]
def conv_stream(tiles, order):
    acc = {J: ACC + 4 * q for q, J in enumerate(tiles)}
    slot = {J: q for q, J in enumerate(tiles)}
    started = set()
    q2 = sorted({m[1] for m in order if m[0] == "box" and m[2] in "ab"})
    frag = {}
    for i, Qb in enumerate(q2):
        frag[(Qb, "a")] = BX2 + 8 * i; frag[(Qb, "b")] = BX2 + 8 * i + 4
    for Qb in range(4): frag[(Qb, "g")] = BX3 + 4 * Qb
    M = []
    for m in order:
        if m[0] == "near": M.append(dict(u=("U", 8 * m[1] - m[2]), J=m[1], A=KW + 4 * m[2]))
        elif m[0] == "sp": M.append(dict(u=("U", 8 * m[1] - 32), J=m[1], A=SPK))
        elif m[0] == "box":
            Qb, t = m[1], m[2]
            lo = {"a": (("U", 8 * Qb), B3A), "b": (("U", 8 * Qb), B3B), "g": (("U", 8 * Qb), B7)}[t]
            hi = {"a": (("U", 8 * Qb), B5), "b": (("W", Qb), B5), "g": (("W", Qb), B9)}[t]
            M.append(dict(u=lo[0], band=lo[1], half=0, f=(Qb, t))); M.append(dict(u=hi[0], band=hi[1], half=1, f=(Qb, t)))
        elif m[0] == "far":
            J, Qb, t = m[1], m[2], m[3]
            Bq = T3 + 4 * (J - 4 - Qb) if t == "g" else T2 + (12 if t == "b" else 0) + 4 * (Qb - (J - 4))
            M.append(dict(J=J, fin=(Qb, t), B=Bq))
    reads = []; cur = {}
    for i, m in enumerate(M):
        if "u" in m:
            k = m["u"]
            if k in cur and i - reads[cur[k]]["last"] <= 24: reads[cur[k]]["last"] = i
            else: cur[k] = len(reads); reads.append(dict(key=k, first=i, last=i))
            m["rd"] = cur[k]
    last_of = {}
    for i, m in enumerate(M):
        if "J" in m: last_of[m["J"]] = i
    free = list(range(NRING)); nextr = 0; pend_cvt = []; pend_dump = []; dtfree = [0, 1]; dtof = {}; done_f = set()
    def issue_read():
        nonlocal nextr
        r = reads[nextr]; r["buf"] = URING + 4 * free.pop(0); nextr += 1
        off = 480 + 64 * r["key"][1] if r["key"][0] == "U" else 464 + 512 * r["key"][1]
        a(f"ds_read_b128 {vr(r['buf'],4)}, v{vU} offset:{off}")
    def do_cvt():
        t, f, j = pend_cvt.pop(0); d = DT + 8 * dtof[f]
        a(f"v_cvt_pk_f16_f32 v{frag[f]+j}, v{d+j}, v{d+4+j}")
        if j == 3: dtfree.append(dtof[f]); done_f.add(f)
    def do_dump():
        t, J = pend_dump.pop(0)
        a(f"ds_write_b128 v{vDmp}, {vr(acc[J],4)} offset:{1024*slot[J]}")
        a(f"ds_write_b8 v{vCF}, v{vKWB} offset:{M_T + 4*slot[J]}")
        stamp(5 + slot[J])
    while free and nextr < len(reads): issue_read()
    for i, m in enumerate(M):
        fill = 0
        if pend_dump and i - pend_dump[0][0] >= 4: do_dump(); fill += 2
        while fill < 2 and pend_cvt and i - pend_cvt[0][0] >= 4: do_cvt(); fill += 1
        while fill < 2 and free and nextr < len(reads): issue_read(); fill += 1
        if "fin" in m:
            while m["fin"] not in done_f: do_cvt()
        if "band" in m and m["half"] == 0:
            while not dtfree: do_cvt()
            dtof[m["f"]] = dtfree.pop(0)
        if "rd" in m:
            while m["rd"] >= nextr:
                assert free, "ring exhausted"
                issue_read()
        if "band" in m:
            d = DT + 8 * dtof[m["f"]] + 4 * m["half"]
            a(f"v_mfma_f32_16x16x32_f16 {vr(d,4)}, {vr(reads[m['rd']]['buf'],4)}, {vr(m['band'],4)}, 0")
            if m["half"] == 1:
                for j in range(4): pend_cvt.append((i, m["f"], j))
        else:
            J = m["J"]; C = vr(acc[J], 4) if J in started else "0"; started.add(J)
            if "fin" in m: a(f"v_mfma_f32_16x16x32_f16 {vr(acc[J],4)}, {vr(frag[m['fin']],4)}, {vr(m['B'],4)}, {C}")
            else: a(f"v_mfma_f32_16x16x32_f16 {vr(acc[J],4)}, {vr(m['A'],4)}, {vr(reads[m['rd']]['buf'],4)}, {C}")
            if last_of[J] == i: pend_dump.append((i, J))
        if "rd" in m and reads[m["rd"]]["last"] == i: free.append((reads[m["rd"]]["buf"] - URING) // 4)
    while pend_dump: do_dump()
    return len(M), len(reads)

def near_at(n, tiles):
    return [("near", J, 8 * J - n) for J in tiles if 0 <= 8 * J - n <= min(16, 8 * J + 7)]
oX = []
extra = {0: [("box", 0, "g")], 8: [("box", 1, "g")]}
for n in range(-7, 9): oX += near_at(n, [0, 1]) + extra.get(n, [])
oX += [("box", 2, "a"), ("sp", 6), ("box", 2, "b"), ("far", 6, 0, "g"), ("far", 7, 0, "g"), ("box", 2, "g"), ("far", 6, 1, "g"), ("far", 7, 1, "g"),
       ("box", 3, "a"), ("sp", 7), ("box", 3, "b"), ("far", 6, 2, "a"), ("far", 6, 2, "b"), ("box", 3, "g")]
extra = {32: [("box", 4, "a"), ("far", 6, 2, "g"), ("far", 7, 2, "g")], 33: [("far", 6, 3, "a"), ("far", 7, 3, "a")], 34: [("far", 6, 3, "b"), ("far", 7, 3, "b")],
         35: [("far", 7, 3, "g")], 36: [("far", 6, 4, "a")], 37: [("far", 7, 4, "a")],
         40: [("box", 5, "a"), ("box", 5, "b")], 41: [("far", 6, 4, "b")], 42: [("far", 7, 4, "b")], 49: [("far", 7, 5, "a")], 50: [("far", 7, 5, "b")]}
for n in range(32, 57):
    oX += near_at(n, [6, 7]) + extra.get(n, [])
    if n == 32: oX += [("box", 4, "b")]
oY = []
extra = {0: [("box", 0, "a"), ("sp", 4), ("box", 0, "b")], 1: [], 2: [], 3: [("far", 2, 0, "a"), ("far", 3, 0, "a"), ("far", 4, 0, "a")],
         4: [("far", 2, 0, "b"), ("far", 3, 0, "b"), ("far", 4, 0, "b")], 5: [("box", 0, "g")],
         8: [("box", 1, "a"), ("sp", 5), ("box", 1, "b")], 9: [("far", 4, 0, "g")], 10: [("far", 5, 0, "g"), ("box", 1, "g")],
         12: [("far", 3, 1, "a")], 13: [("far", 3, 1, "b")], 14: [("far", 4, 1, "a")],
         16: [("box", 2, "a"), ("box", 2, "b")], 17: [("far", 4, 1, "b")], 18: [("far", 5, 1, "a")], 19: [("far", 5, 1, "b")], 20: [("far", 5, 1, "g")],
         21: [("far", 4, 2, "a")], 22: [("far", 4, 2, "b")],
         24: [("box", 3, "a"), ("box", 3, "b")], 28: [("far", 5, 2, "a")], 29: [("far", 5, 2, "b")], 33: [("far", 5, 3, "a")], 34: [("far", 5, 3, "b")]}
for n in range(0, 41): oY += near_at(n, [2, 3, 4, 5]) + extra.get(n, [])
def check(order, tiles):
    want = set()
    for J in tiles:
        for mu in range(min(16, 8 * J + 7) + 1): want.add(("near", J, mu))
        if J >= 4: want.add(("sp", J))
        for d in range(3):
            if J - 4 + d >= 0: want |= {("far", J, J - 4 + d, "a"), ("far", J, J - 4 + d, "b")}
        for d in range(4):
            if J - 4 - d >= 0: want.add(("far", J, J - 4 - d, "g"))
    got = [m for m in order if m[0] != "box"]
    assert len(got) == len(set(got)) and set(got) == want, (want ^ set(got))
    seen = set()
    for m in order:
        if m[0] == "box": seen.add((m[1], m[2]))
        if m[0] == "far": assert (m[2], m[3]) in seen, m
check(oX, [0, 1, 6, 7]); check(oY, [2, 3, 4, 5])
sv = (list(a.vmq), list(a.dsq), list(a.hist))
nx = conv_stream([0, 1, 6, 7], oX)
endpgm()
a.raw(".p2align 3")
a.label("L_convY")
a.vmq, a.dsq, a.hist = sv
ny = conv_stream([2, 3, 4, 5], oY)
endpgm()
a.label("L_exit")
a("s_endpgm")
a.raw(".p2align 7")
a.label("L_tab")
for (start, w, one) in ((11, 3, 0x3c00), (6, 5, 0x3c00), (3, 3, 0x3c00), (5, 7, 0x3c00), (4, 9, 0x3c00), (12, 2, 0xffff)):
    for l in range(64):
        r, s_ = l & 15, l >> 4
        e = [one if r + start <= 8 * s_ + i < r + start + w else 0 for i in range(8)]
        a.raw("    .long " + ", ".join(hex(e[2 * j] | e[2 * j + 1] << 16) for j in range(4)))
a.label("L_end")
a.raw(f""".section .rodata,"a"
.p2align 6
.amdhsa_kernel {NAME}
  .amdhsa_next_free_vgpr 256
  .amdhsa_next_free_sgpr 96
  .amdhsa_accum_offset 256
  .amdhsa_group_segment_fixed_size 0
  .amdhsa_kernarg_size 136
  .amdhsa_user_sgpr_count 2
  .amdhsa_user_sgpr_kernarg_segment_ptr 1
  .amdhsa_system_sgpr_workgroup_id_x 1
  .amdhsa_float_denorm_mode_32 3
.end_amdhsa_kernel""")
open(sys.argv[1], "w").write(a.text())
print("LDS", LDS_SIZE, "nops", a.nops, "X mfma/reads", nx, "Y", ny, file=sys.stderr)
```

```python
import sys, struct
from asmlib import Asm, vr, sr

NAME = "parallel_sum__ssm_conv_s4__moe_arch_mod__prompt_kernel"
OPT = dict(PAD=0, STAMPS=0, FULL=1, DBG=0, POLLMAX=200000)
for a in sys.argv[2:]:
    k, v = a.split("="); OPT[k] = int(v, 0)
STAMPS, FULL, DBG = OPT["STAMPS"], OPT["FULL"], OPT["DBG"]

WS_ROUT, WS_STAT, WS_PART, WS_XT, WS_STAMP, WS_DBG = 0x1000, 0x2000, 0x10000, 0x100000, 0x400000, 0x500000
ROWP = 272; KT_SZ = 56 * ROWP
L_KT = 0
L_KW = L_KT + 4 * KT_SZ
KW_T2A, KW_T2B, KW_T3, KW_A = 0, 256, 512, 832
KW_B = KW_A + 1212
L_U = L_KW + 4 * 4096; USTR = 4640
L_LNI = L_U + 4 * USTR; LNP = 1088
L_WG = L_LNI + 8 * LNP
L_WU = L_WG + 16384 + 128
L_MISC = L_WU + 16384
M_CNT, M_KEY, M_RT, M_W, M_U, M_T, M_SV, M_SAVE, M_INV, M_DUMMY = 0, 4, 8, 16, 20, 32, 48, 64, 80, 128
LDS_SIZE = L_MISC + M_DUMMY + 256 + 128
assert L_MISC % 16 == 0 and L_U % 16 == 0 and L_LNI % 16 == 0 and L_WG % 16 == 0

sX, sARE, sAIM, sBRE, sBIM, sCRE, sCIM, sLDT, sDSK, sBX, sWR, sWG, sWU, sWD, sOUT, sDBG, sWS = [4 + 2 * i for i in range(17)]
sTAG, sWAVE, sCG, sHS, sFFN, sUNIT = 38, 39, 40, 41, 42, 43
sPC = 44
sT = 46
sST = 72
P = lambda r: sr(r, 2)

a = Asm()
def stamp(k):
    if STAMPS:
        a(f"s_memrealtime s[88:89]"); a.wait(lgkm=0); a(f"s_mov_b32 s{sST+k}, s88")
def stamp_flush():
    if STAMPS:
        a.wait(vm=0, lgkm=0)
        a("s_memrealtime s[88:89]"); a.wait(lgkm=0); a(f"s_mov_b32 s{sST+15}, s88")
        a("s_mov_b64 exec, -1")
        a(f"v_mov_b32 v2, 0")
        for k in range(16): a(f"v_writelane_b32 v2, s{sST+k}, {k}")
        a(f"s_lshl_b32 s{sT}, s2, 3\n s_add_u32 s{sT}, s{sT}, s{sWAVE}\n s_lshl_b32 s{sT}, s{sT}, 6\n s_add_u32 s{sT}, s{sT}, {WS_STAMP}")
        a(f"v_and_b32 v3, 63, v0\n v_lshlrev_b32 v3, 2, v3\n v_add_u32 v3, s{sT}, v3")
        a("s_mov_b64 exec, 0xffff")
        a(f"global_store_dword v3, v2, {P(sWS)}")
def endpgm(conv=False):
    if conv and OPT["PAD"]:
        L = a.newlabel("pad"); a.wait(lgkm=0); a.label(L)
        a("s_memrealtime s[88:89]"); a.wait(lgkm=0)
        a(f"s_sub_u32 s88, s88, s90\n s_cmp_lt_u32 s88, {OPT['PAD']}\n s_sleep 2\n s_cbranch_scc1 {L}")
    stamp_flush(); a("s_endpgm")

def lds_spin(vtmp, vaddr, off, want, width=1, sdst=None):
    L, Dn = a.newlabel("spin"), a.newlabel("spun")
    sd = sdst if sdst is not None else sT
    a.wait(lgkm=0)
    a(f"s_mov_b32 s{sT+1}, 0")
    a.label(L)
    a(f"ds_read_b{32*width} {vr(vtmp, width)}, v{vaddr} offset:{off}")
    a.wait(lgkm=0)
    a(f"v_readfirstlane_b32 s{sd}, v{vtmp}")
    a(f"s_add_u32 s{sT+1}, s{sT+1}, 1")
    a(f"s_cmp_eq_u32 s{sd}, {want}")
    a(f"s_cbranch_scc1 {Dn}")
    a(f"s_cmp_lt_u32 s{sT+1}, {OPT['POLLMAX']*16}")
    a("s_sleep 1")
    a(f"s_cbranch_scc1 {L}")
    a.label(Dn)

a.raw(f"""; Single persistent launch: 256 workgroups (one per CU) x 8 waves.
; @launch grid=(256,1,1) block=(512,1,1) lds={LDS_SIZE}
.amdgcn_target "amdgcn-amd-amdhsa--gfx950"
.text
.globl {NAME}
.p2align 8
.type {NAME},@function
{NAME}:""")
a(f"""
s_cmp_ge_u32 s2, 0x100
s_cbranch_scc1 L_exit
s_load_dwordx16 s[4:19], s[0:1], 0
s_load_dwordx16 s[20:35], s[0:1], 64
s_load_dwordx2 s[36:37], s[0:1], 128
""")
if OPT["PAD"]: a("s_memrealtime s[90:91]")
if STAMPS:
    a("s_memrealtime s[88:89]")
    for k in range(16): a(f"s_mov_b32 s{sST+k}, 0")
a(f"""
s_getpc_b64 {P(sPC)}
""")
a.label("L_pc")
a(f"""
v_lshrrev_b32 v2, 6, v0
v_and_b32 v1, 63, v0
v_readfirstlane_b32 s{sWAVE}, v2
s_and_b32 s{sT}, s2, 7
s_lshr_b32 s{sT+1}, s2, 3
s_lshl_b32 s{sCG}, s{sT}, 4
s_and_b32 s{sT+2}, s{sT+1}, 15
s_add_u32 s{sCG}, s{sCG}, s{sT+2}
s_lshr_b32 s{sHS}, s{sT+1}, 4
s_cmp_lt_u32 s{sWAVE}, 4
s_cbranch_scc1 L_conv
""")

XA, XB, WR = 4, 8, 12
WD, WDP, WF = 64, 96, 128
a(f"""
s_setprio 3
s_sub_u32 s{sUNIT}, s{sWAVE}, 4
s_lshl_b32 s{sT+3}, s2, 13
s_lshl_b32 s{sT+4}, s{sUNIT}, 11
s_add_u32 s{sT+3}, s{sT+3}, s{sT+4}
v_lshlrev_b32 v2, 4, v1
v_add_u32 v3, s{sT+3}, v2
s_lshr_b32 s{sT+5}, s{sT+1}, 2
s_lshl_b32 s{sT+5}, s{sT+5}, 3
s_add_u32 s{sT+5}, s{sT+5}, s{sT}
s_and_b32 s{sT+6}, s{sT+1}, 3
s_lshl_b32 s{sT+7}, s{sT+5}, 2
s_add_u32 s{sT+7}, s{sT+7}, s{sT+6}
s_cmp_lt_u32 s{sT+5}, 28
s_cselect_b32 s{sFFN}, 1, 0
s_cmp_lt_u32 s{sUNIT}, 2
s_cselect_b32 s{sFFN}, s{sFFN}, 0
s_cmp_lg_u32 s{sUNIT}, 3
s_cbranch_scc1 L_noinit
v_lshlrev_b32 v16, 2, v1
v_add_u32 v16, {L_MISC}, v16
v_mov_b32 v17, 0
ds_write_b32 v16, v17
""")
a.label("L_noinit")
a.wait(lgkm=0)
if STAMPS: a(f"s_mov_b32 s{sST}, s88")
a(f"""
s_load_dword s{sTAG}, {P(sWS)}, 0
global_load_dwordx4 {vr(XA,4)}, v3, {P(sX)}
global_load_dwordx4 {vr(XB,4)}, v3, {P(sX)} offset:1024
global_load_dwordx4 {vr(WR,4)}, v2, {P(sWR)}
""")
a(f"""
s_cmp_lt_u32 s{sUNIT}, 2
s_cbranch_scc1 L_nopf
s_lshl_b32 s{sT+8}, s{sUNIT}, 14
s_sub_u32 s{sT+8}, s{sT+8}, 0x8000
v_lshlrev_b32 v16, 7, v1
v_add_u32 v16, s{sT+8}, v16
v_min_u32 v17, L_end-L_pc-4, v16
v_add_u32 v16, 0x2000, v16
v_min_u32 v16, L_end-L_pc-4, v16
global_load_dword v254, v17, {P(sPC)}
global_load_dword v255, v16, {P(sPC)}
s_branch L_noffn0
""")
a.label("L_nopf")
a(f"""
s_cmp_eq_u32 s{sFFN}, 0
s_cbranch_scc1 L_noffn0
s_cmp_eq_u32 s{sUNIT}, 0
s_cselect_b32 s{sT+8}, s{sWG}, s{sWU}
s_cselect_b32 s{sT+9}, s{sWG+1}, s{sWU+1}
s_mul_i32 s{sT+10}, s{sUNIT}, {L_WU-L_WG}
s_add_u32 m0, s{sT+10}, {L_WG}
v_lshrrev_b32 v16, 1, v1
v_mul_u32_u24 v16, 3584, v16
v_and_b32 v17, 1, v1
v_lshl_add_u32 v16, v17, 4, v16
s_lshl_b32 s{sT+11}, s{sT+7}, 5
v_add_u32 v16, s{sT+11}, v16
s_mov_b32 s{sT+11}, 16
""")
a.label("L_dma")
a(f"""
global_load_lds_dwordx4 v16, {P(sT+8)}
v_add_u32 v16, {32*3584}, v16
s_add_u32 m0, m0, 1024
s_sub_u32 s{sT+11}, s{sT+11}, 1
s_cmp_lg_u32 s{sT+11}, 0
s_cbranch_scc1 L_dma
s_lshl_b32 s{sT+11}, s{sT+7}, 1
s_add_u32 s{sT+11}, s{sT+11}, s{sUNIT}
s_lshl_b32 s{sT+12}, s{sT+11}, 13
s_add_u32 s{sT+12}, s{sT+12}, 4096
v_add_u32 v16, s{sT+12}, v2
""")
sPU = sT + 11
for f in range(8):
    a(f"global_load_dwordx4 {vr(WD+4*f,4)}, v16, {P(sWD)} offset:{f*1024-4096}")
a.label("L_noffn0")
a.reset()
vFL, vMI, vTK, vC9, vMK = 52, 53, 54, 55, 56
a(f"""
v_mov_b32 v{vMI}, {L_MISC}
v_lshlrev_b32 v16, 2, v1
v_add_u32 v17, {L_MISC+M_DUMMY}, v16
v_add_u32 v{vFL}, s{sUNIT}, v{vMI}
v_cmp_eq_u32 vcc, 0, v1
s_lshl_b32 s{sT+8}, s2, 3
s_lshl_b32 s{sT+9}, s{sUNIT}, 1
s_add_u32 s{sT+8}, s{sT+8}, s{sT+9}
v_cndmask_b32 v{vFL}, v17, v{vFL}, vcc
s_sub_u32 s{sT+9}, 2047, s{sT+8}
v_lshrrev_b32 v18, 5, v1
v_sub_u32 v{vTK}, s{sT+9}, v18
v_mov_b32 v{vC9}, 0x3b000000
v_mov_b32 v{vMK}, 0xfff8fff8
""")
sROW = sT + 8
vSA, vIW, vTR, vXS = 57, 58, 59, 60
a(f"""
v_add_u32 v{vSA}, s{sROW}, v18
v_lshlrev_b32 v{vSA}, 3, v{vSA}
v_add_u32 v{vSA}, {WS_STAT}, v{vSA}
s_mul_i32 s{sT+10}, s{sUNIT}, {2*LNP}
s_add_u32 s{sT+10}, s{sT+10}, {L_LNI}
v_add_u32 v{vIW}, s{sT+10}, v2
v_bfe_u32 v16, v1, 2, 2
v_mul_u32_u24 v16, {LNP}, v16
v_lshrrev_b32 v17, 4, v1
v_lshl_add_u32 v16, v17, 5, v16
v_and_b32 v17, 3, v1
v_lshl_add_u32 v16, v17, 3, v16
s_lshl_b32 s{sT+10}, s{sUNIT}, 8
s_add_u32 s{sT+10}, s{sT+10}, {L_LNI}
v_add_u32 v{vTR}, s{sT+10}, v16
""")
if FULL:
    a(f"""
    v_lshrrev_b32 v16, 3, v1
    v_lshlrev_b32 v16, 15, v16
    v_and_b32 v17, 7, v1
    v_lshl_add_u32 v16, v17, 4, v16
    s_lshl_b32 s{sT+10}, s{sUNIT}, 19
    s_lshl_b32 s{sT+12}, s2, 7
    """)
else:
    a(f"""
    v_lshrrev_b32 v16, 2, v1
    v_lshlrev_b32 v16, 14, v16
    v_and_b32 v17, 3, v1
    v_lshl_add_u32 v16, v17, 4, v16
    s_lshl_b32 s{sT+10}, s{sUNIT}, 19
    s_lshl_b32 s{sT+12}, s2, 6
    """)
a(f"""
s_add_u32 s{sT+10}, s{sT+10}, s{sT+12}
s_add_u32 s{sT+10}, s{sT+10}, {WS_XT}
v_add_u32 v{vXS}, s{sT+10}, v16
v_add_u32 v{vXS+1}, 0x40000, v{vXS}
""")
sC9, sC1, sTGA, sTGB, sTLO, sTHI = sT + 13, sT + 14, sT + 15, sT + 16, sT + 17, sT + 18
a(f"s_mov_b32 s{sC9}, 0x3b003b00\n s_mov_b32 s{sC1}, 0x3f803f80")
a("s_barrier")
a.wait(lgkm=0)
a(f"""
s_add_u32 s{sTAG}, s{sTAG}, 1
s_mul_i32 s{sT+10}, s{sUNIT}, 6
s_lshr_b32 s{sTGB}, s{sTAG}, s{sT+10}
s_and_b32 s{sTGA}, s{sTGB}, 7
s_mul_i32 s{sTGA}, s{sTGA}, 0x10001
s_bfe_u32 s{sTGB}, s{sTGB}, 0x30003
s_mul_i32 s{sTGB}, s{sTGB}, 0x10001
s_and_b32 s{sTLO}, s{sTAG}, 0xffff
s_lshr_b32 s{sTHI}, s{sTAG}, 16
""")
a(f"s_cmp_eq_u32 s{sFFN}, 0\n s_cbranch_scc1 L_w2")
a("s_waitcnt vmcnt(24)\n s_branch L_w3")
a.label("L_w2")
a(f"s_cmp_lt_u32 s{sUNIT}, 2\n s_cbranch_scc1 L_w4")
a("s_waitcnt vmcnt(2)\n s_branch L_w3")
a.label("L_w4")
a("s_waitcnt vmcnt(0)")
a.label("L_w3")
a.reset()
stamp(1)
A1, B1, A2, B2, A3, B3, Wv, W2 = 16, 17, 18, 19, 20, 21, 22, 23
for i in range(4):
    z = lambda r: "0" if i == 0 else f"v{r}"
    a(f"""
    v_dot2_f32_bf16 v{A1}, v{XA+i}, s{sC9}, {z(A1)}
    v_dot2_f32_bf16 v{B1}, v{XB+i}, s{sC9}, {z(B1)}
    v_dot2_f32_bf16 v{A2}, v{XA+i}, v{XA+i}, {z(A2)}
    v_dot2_f32_bf16 v{B2}, v{XB+i}, v{XB+i}, {z(B2)}
    v_dot2_f32_bf16 v{Wv}, v{WR+i}, s{sC1}, {z(Wv)}
    v_dot2_f32_bf16 v{A3}, v{XA+i}, v{WR+i}, {z(A3)}
    v_dot2_f32_bf16 v{B3}, v{XB+i}, v{WR+i}, {z(B3)}
    """)
UX = 36
def unpack(i):
    src = XA + i
    a(f"v_lshlrev_b32 v{UX+2*i}, 16, v{src}\n v_and_b32 v{UX+2*i+1}, 0xffff0000, v{src}")
a(f"v_mov_b32 v{W2}, v{Wv}")
a(f"v_permlane32_swap_b32 v{A1}, v{B1}\n v_permlane32_swap_b32 v{A2}, v{B2}")
a(f"v_add_f32 v{A1}, v{A1}, v{B1}")
a(f"v_permlane32_swap_b32 v{A3}, v{B3}\n v_permlane32_swap_b32 v{Wv}, v{W2}")
a(f"v_add_f32 v{A2}, v{A2}, v{B2}\n v_add_f32 v{A3}, v{A3}, v{B3}\n v_add_f32 v{Wv}, v{Wv}, v{W2}")
for st in ("row_shr:1", "row_shr:2", "row_shr:4", "row_shr:8"):
    for r in (A1, A2, A3, Wv):
        a(f"v_add_f32_dpp v{r}, v{r}, v{r} {st} row_mask:0xf bank_mask:0xf bound_ctrl:0")
for r in (A1, A2, A3, Wv):
    a(f"v_add_f32_dpp v{r}, v{r}, v{r} row_bcast:15 row_mask:0xa bank_mask:0xf")
MB, SB, RS, NM, T0, T1, KEY = 24, 25, 26, 27, 28, 29, 30
a(f"""
v_mul_f32 v{T0}, v{A2}, v{vC9}
v_fma_f32 v{T0}, -v{A1}, v{A1}, v{T0}
v_max_f32 v{T0}, 0, v{T0}
v_cvt_pk_bf16_f32 v{T1}, v{A1}, v{T0}
v_and_b32 v{T0}, 0xffff0000, v{T1}
v_lshlrev_b32 v{MB}, 16, v{T1}
v_add_f32 v{T0}, 0x3727c5ac, v{T0}
v_cvt_pk_bf16_f32 v{T0}, v{T0}, v{T0}
v_lshlrev_b32 v{T0}, 16, v{T0}
v_sqrt_f32 v{T0}, v{T0}
v_fma_f32 v{KEY}, -v{MB}, v{Wv}, v{A3}
v_cvt_pk_bf16_f32 v{T0}, v{T0}, v{T0}
v_lshlrev_b32 v{SB}, 16, v{T0}
v_rcp_f32 v{RS}, v{SB}
v_or_b32 v{T0}, s{sTLO}, v{MB}
v_mul_f32 v{KEY}, v{KEY}, v{RS}
v_mul_f32 v{NM}, -v{MB}, v{RS}
v_ashrrev_i32 v31, 31, v{KEY}
v_or_b32 v{T1}, s{sTHI}, v{SB}
v_or_b32 v31, 0x80000000, v31
v_xor_b32 v{KEY}, v{KEY}, v31
v_and_b32 v{KEY}, 0xfffff800, v{KEY}
v_or_b32 v{KEY}, v{KEY}, v{vTK}
s_mov_b32 exec_lo, 0x80000000
s_mov_b32 exec_hi, 0x80000000
ds_max_u32 v{vMI}, v{KEY} offset:{M_KEY}
global_store_dwordx2 v{vSA}, {vr(T0,2)}, {P(sWS)} sc1
s_mov_b64 exec, -1
""")
sRA, sRB = sT + 20, sT + 22
a(f"""
v_readlane_b32 s{sRA}, v{RS}, 31
v_readlane_b32 s{sRA+1}, v{NM}, 31
v_readlane_b32 s{sRB}, v{RS}, 63
v_readlane_b32 s{sRB+1}, v{NM}, 63
""")
for i in range(8): unpack(i)
for i in range(8):
    s_ = sRA if i < 4 else sRB
    a(f"v_pk_fma_f32 {vr(UX+2*i,2)}, {vr(UX+2*i,2)}, {P(s_)}, {P(s_)} op_sel:[0,0,1] op_sel_hi:[1,0,1]")
for i in range(8): a(f"v_cvt_pk_f16_f32 v{XA+i}, v{UX+2*i}, v{UX+2*i+1}")
for i in range(8): a(f"v_add_u32 v{XA+i}, 0x40004, v{XA+i}")
for i in range(4): a(f"v_and_or_b32 v{XA+i}, v{XA+i}, v{vMK}, s{sTGA}")
a(f"ds_write_b128 v{vIW}, {vr(XA,4)}")
for i in range(4): a(f"v_and_or_b32 v{XB+i}, v{XB+i}, v{vMK}, s{sTGB}")
a(f"ds_write_b128 v{vIW}, {vr(XB,4)} offset:{LNP}")
a(f"v_mov_b32 v16, 1")
a(f"ds_write_b8 v{vFL}, v16 offset:{M_CNT}")
stamp(2)
lds_spin(18, vMI, M_CNT, 0x01010101, width=2)
for b in range(2):
    a(f"ds_read_b64_tr_b16 {vr(XA+4*b,2)}, v{vTR} offset:{128*b}")
    a(f"ds_read_b64_tr_b16 {vr(XA+4*b+2,2)}, v{vTR} offset:{128*b+4*LNP}")
a(f"s_cmp_lg_u32 s{sUNIT}, 0\n s_cbranch_scc1 L_norout")
a(f"""
s_lshl_b32 s{sT}, s2, 3
s_add_u32 s{sT}, s{sT}, {WS_ROUT}
v_mov_b32 v20, s{sT}
v_mov_b32 v22, v19
v_mov_b32 v23, s{sTAG}
s_mov_b64 exec, 1
global_store_dwordx2 v20, v[22:23], {P(sWS)} sc1
s_mov_b64 exec, -1
""")
a.label("L_norout")
a(f"global_store_dwordx4 v{vXS}, {vr(XA,4)}, {P(sWS)} sc1")
a(f"global_store_dwordx4 v{vXS+1}, {vr(XB,4)}, {P(sWS)} sc1")
stamp(3)
a(f"s_cmp_ge_u32 s{sUNIT}, 2\n s_cbranch_scc1 L_xt")
a(f"s_cmp_eq_u32 s{sFFN}, 1\n s_cbranch_scc1 L_ffnprep")
a(f"s_cmp_eq_u32 s{sUNIT}, 0\n s_cbranch_scc1 L_rpoll")
endpgm()
a.label("L_ffnprep")
a.reset()
pairs = [(0, 2), (4, 6), (1, 3), (5, 7)]
a(f"""
s_mov_b32 s{sT+2}, 0x05040100
s_mov_b32 s{sT+3}, 0x07060302
v_bfe_u32 v16, v1, 2, 2
v_lshrrev_b32 v17, 4, v1
v_lshl_add_u32 v16, v17, 3, v16
v_lshlrev_b32 v16, 5, v16
v_and_b32 v17, 1, v1
v_lshl_add_u32 v16, v17, 3, v16
v_bfe_u32 v17, v1, 1, 1
v_mul_u32_u24 v17, {L_WU-L_WG}, v17
s_lshl_b32 s{sT+4}, s{sUNIT}, 4
s_add_u32 s{sT+4}, s{sT+4}, {L_WG}
v_add3_u32 v20, v16, v17, s{sT+4}
v_mov_b32 v16, 1
""")
a("s_waitcnt vmcnt(2)")
a(f"ds_write_b8 v{vFL}, v16 offset:{M_W}")
for pi, (fa, fb) in enumerate(pairs):
    for c in range(4):
        a(f"v_perm_b32 v{WDP+8*pi+2*c}, v{WD+4*fb+c}, v{WD+4*fa+c}, s{sT+2}")
        a(f"v_perm_b32 v{WDP+8*pi+2*c+1}, v{WD+4*fb+c}, v{WD+4*fa+c}, s{sT+3}")
lds_spin(18, vMI, M_W, 0x0101)
for ks in range(16):
    for hh in range(2):
        a(f"ds_read_b64_tr_b16 {vr(WF+4*ks+2*hh,2)}, v20 offset:{ks*1024+hh*128}")
stamp(4)
a.label("L_rpoll")
a.wait(lgkm=0)
a.reset()
sKEY, sIDX = sT + 4, sT + 5
a(f"""
v_add_u32 v20, {WS_ROUT}, v2
v_and_b32 v21, 15, v1
v_lshlrev_b32 v21, 6, v21
v_lshrrev_b32 v22, 4, v1
v_lshl_add_u32 v21, v22, 4, v21
s_mov_b32 s{sT+1}, 0
""")
a.label("L_rp1")
a(f"""
global_load_dwordx4 v[24:27], v20, {P(sWS)} sc1
global_load_dwordx4 v[28:31], v20, {P(sWS)} offset:1024 sc1
s_add_u32 s{sT+1}, s{sT+1}, 1
""")
a.wait(vm=0)
a(f"""
v_xor_b32 v25, s{sTAG}, v25
v_xor_b32 v27, s{sTAG}, v27
v_xor_b32 v29, s{sTAG}, v29
v_xor_b32 v31, s{sTAG}, v31
v_max3_u32 v24, v24, v26, v28
v_or3_b32 v25, v25, v27, v29
v_max_u32 v24, v24, v30
v_or_b32 v25, v25, v31
v_cmp_ne_u32 vcc, 0, v25
s_cbranch_vccz L_rp2
s_cmp_lt_u32 s{sT+1}, {OPT['POLLMAX']}
s_cbranch_scc1 L_rp1
""")
a.label("L_rp2")
for st in ("row_shr:1", "row_shr:2", "row_shr:4", "row_shr:8"):
    a(f"v_max_u32_dpp v24, v24, v24 {st} row_mask:0xf bank_mask:0xf bound_ctrl:0")
a("v_max_u32_dpp v24, v24, v24 row_bcast:15 row_mask:0xa bank_mask:0xf")
a("v_max_u32_dpp v24, v24, v24 row_bcast:31 row_mask:0xc bank_mask:0xf")
a(f"""
v_readlane_b32 s{sKEY}, v24, 63
s_and_b32 s{sIDX}, s{sKEY}, 0x7ff
s_sub_u32 s{sIDX}, 2047, s{sIDX}
s_lshl_b32 s{sT+6}, s{sIDX}, 10
s_lshl_b32 s{sT+7}, s{sIDX}, 3
s_add_u32 s{sT+7}, s{sT+7}, {WS_STAT}
v_add_u32 v21, s{sT+6}, v21
v_mov_b32 v22, s{sT+7}
s_cmp_eq_u32 s{sFFN}, 0
s_cbranch_scc1 L_rp3
global_load_dwordx4 v[24:27], v21, {P(sX)}
global_load_dwordx2 v[28:29], v22, {P(sWS)} sc1
""")
a.label("L_rp3")
a(f"""
s_cmp_lg_u32 s{sUNIT}, 0
s_cbranch_scc1 L_rp4
v_mov_b32 v30, 1
v_mov_b32 v31, s{sIDX}
s_mov_b64 exec, 1
ds_write_b64 v{vMI}, v[30:31] offset:{M_RT}
s_cmp_lg_u32 s2, 0
s_cbranch_scc1 L_rp5
v_mov_b32 v30, 0
v_mov_b32 v31, s{sTAG}
global_store_dword v30, v31, {P(sWS)} sc1
""")
a.label("L_rp5")
a("s_mov_b64 exec, -1")
a.label("L_rp4")
stamp(5)
a(f"s_cmp_eq_u32 s{sFFN}, 0\n s_cbranch_scc1 L_hop2")
a.reset()
a(f"s_mov_b32 s{sT+1}, 0")
a.label("L_st1")
a.wait(vm=0)
a(f"""
v_xor_b32 v28, s{sTLO}, v28
v_xor_b32 v29, s{sTHI}, v29
v_or_b32 v30, v28, v29
v_and_b32 v30, 0xffff, v30
v_cmp_ne_u32 vcc, 0, v30
s_cbranch_vccz L_st2
s_add_u32 s{sT+1}, s{sT+1}, 1
s_cmp_ge_u32 s{sT+1}, {OPT['POLLMAX']}
s_cbranch_scc1 L_st2
global_load_dwordx2 v[28:29], v22, {P(sWS)} sc1
s_branch L_st1
""")
a.label("L_st2")
a.reset()
stamp(6)
a(f"v_rcp_f32 v32, v29")
for i in range(4):
    a(f"v_lshlrev_b32 v{UX+2*i}, 16, v{24+i}\n v_and_b32 v{UX+2*i+1}, 0xffff0000, v{24+i}")
a(f"v_mul_f32 v33, -v28, v32")
for i in range(4):
    a(f"v_pk_fma_f32 {vr(UX+2*i,2)}, {vr(UX+2*i,2)}, v[32:33], v[32:33] op_sel:[0,0,1] op_sel_hi:[1,0,1]")
for i in range(4): a(f"v_cvt_pk_bf16_f32 v{24+i}, v{UX+2*i}, v{UX+2*i+1}")
BB = [44, 48]; DG = 32
def bc(ks):
    for i in range(4):
        a(f"v_mov_b32_dpp v{BB[ks&1]+i}, v{24+i} row_newbcast:{ks} row_mask:0xf bank_mask:0xf")
bc(0)
for ks in range(16):
    if ks < 15: bc(ks + 1)
    a(f"v_mfma_f32_16x16x32_bf16 {vr(DG,4)}, {vr(WF+4*ks,4)}, {vr(BB[ks&1],4)}, {'0' if ks == 0 else vr(DG,4)}")
sTB = sT + 6
a(f"""
s_lshr_b32 s{sTB+1}, s{sTAG}, 8
s_lshr_b32 s{sTB+2}, s{sTAG}, 16
s_lshr_b32 s{sTB+3}, s{sTAG}, 24
s_lshl_b32 s{sT}, s{sPU}, 11
s_add_u32 s{sT}, s{sT}, {WS_PART}
v_lshlrev_b32 v20, 5, v1
v_add_u32 v20, s{sT}, v20
v_mov_b32 v21, 0xff
v_permlane32_swap_b32 v{DG}, v{DG+1}
v_permlane32_swap_b32 v{DG+2}, v{DG+3}
v_mul_f32 v36, 0xbfb8aa3b, v{DG}
v_mul_f32 v37, 0xbfb8aa3b, v{DG+2}
v_exp_f32 v36, v36
v_exp_f32 v37, v37
v_mul_f32 v{DG}, v{DG}, v{DG+1}
v_add_f32 v36, 1.0, v36
v_add_f32 v37, 1.0, v37
v_rcp_f32 v36, v36
v_rcp_f32 v37, v37
v_mul_f32 v{DG+2}, v{DG+2}, v{DG+3}
v_mul_f32 v36, v36, v{DG}
v_mul_f32 v37, v37, v{DG+2}
v_cvt_pk_bf16_f32 v36, v36, v37
""")
sH = sT + 13
for pi in range(4): a(f"v_readlane_b32 s{sH+pi}, v36, {16*pi}")
Y = 40
for pi in range(4):
    for c in range(8):
        a(f"v_dot2_f32_bf16 v{Y+c}, v{WDP+8*pi+c}, s{sH+pi}, {'0' if pi == 0 else 'v%d' % (Y+c)}")
for c in range(8):
    a(f"v_bfi_b32 v{Y+c}, v21, s{sTAG if c % 4 == 0 else sTB + c % 4}, v{Y+c}")
    if c == 3: a(f"global_store_dwordx4 v20, {vr(Y,4)}, {P(sWS)} sc1")
a(f"global_store_dwordx4 v20, {vr(Y+4,4)}, {P(sWS)} offset:16 sc1")
stamp(7)
a(f"s_cmp_eq_u32 s{sUNIT}, 0\n s_cbranch_scc1 L_hop2")
endpgm()
a.label("L_hop2")
a.reset()
a(f"""
s_lshr_b32 s{sT}, s{sIDX}, 8
s_add_u32 s{sT}, s{sT}, 6
s_and_b32 s{sT}, s{sT}, 7
s_lshr_b32 s{sT}, s{sT}, 2
s_xor_b32 s{sT}, s{sT}, 1
s_cmp_eq_u32 s{sT}, s{sHS}
s_cbranch_scc1 L_h1
""")
endpgm()
a.label("L_h1")
a(f"""
s_and_b32 s{sTB}, s{sTAG}, 0xff
s_bfe_u32 s{sTB+1}, s{sTAG}, 0x80008
s_bfe_u32 s{sTB+2}, s{sTAG}, 0x80010
s_lshr_b32 s{sTB+3}, s{sTAG}, 24
s_lshl_b32 s{sT}, s{sCG}, 4
s_add_u32 s{sT}, s{sT}, {WS_PART}
v_lshlrev_b32 v20, 11, v1
v_add_u32 v20, s{sT}, v20
v_add_u32 v21, 0x20000, v20
v_add_u32 v22, 0x40000, v20
v_add_u32 v23, 0x60000, v20
v_mov_b32 v36, s{sTB}
v_mov_b32 v37, s{sTB+1}
v_mov_b32 v38, s{sTB+2}
v_mov_b32 v39, s{sTB+3}
s_and_b32 s{sT}, s{sKEY}, 0xfffff800
s_xor_b32 s{sT+2}, s{sT}, 0x80000000
s_not_b32 s{sT+3}, s{sT}
s_bitcmp1_b32 s{sT}, 31
s_cselect_b32 s{sT}, s{sT+2}, s{sT+3}
v_mov_b32 v44, s{sT}
v_mul_f32 v44, 0xbfb8aa3b, v44
v_exp_f32 v44, v44
s_mov_b32 s{sT+1}, 0
v_add_f32 v44, 1.0, v44
v_rcp_f32 v44, v44
s_lshl_b32 s{sT}, s{sIDX}, 10
s_lshl_b32 s{sT+2}, s{sCG}, 3
s_add_u32 s{sT}, s{sT}, s{sT+2}
v_lshrrev_b32 v45, 4, v1
v_and_b32 v46, 1, v45
v_lshrrev_b32 v45, 1, v45
v_lshl_add_u32 v45, v46, 1, v45
v_lshl_add_u32 v46, v45, 2, v{vMI}
v_lshl_add_u32 v45, v45, 1, s{sT}
""")
a.label("L_h2")
a(f"""
global_load_dwordx4 v[24:27], v20, {P(sWS)} sc1
global_load_dwordx4 v[28:31], v21, {P(sWS)} sc1
global_load_dwordx4 v[32:35], v22, {P(sWS)} sc1
s_mov_b32 exec_hi, 0
global_load_dwordx4 v[36:39], v23, {P(sWS)} sc1
s_mov_b32 exec_hi, -1
s_add_u32 s{sT+1}, s{sT+1}, 1
""")
a.wait(vm=0)
for i in range(4):
    a(f"v_xor_b32 v{40+i}, v{24+i}, v{28+i}")
for i in range(4):
    a(f"v_xor_b32 v{48+i}, v{32+i}, v{36+i}")
for i in range(4):
    a(f"v_xor_b32 v{52+i}, s{sTB+i}, v{24+i}" if False else f"v_xor_b32 v{16 + i}, s{sTB+i}, v{24+i}")
a(f"""
v_or3_b32 v40, v40, v41, v42
v_or3_b32 v48, v48, v49, v50
v_or3_b32 v16, v16, v17, v18
v_xor_b32 v41, v24, v32
v_xor_b32 v42, v25, v33
v_xor_b32 v49, v26, v34
v_xor_b32 v50, v27, v35
v_or3_b32 v40, v40, v43, v48
v_or3_b32 v16, v16, v19, v51
v_or3_b32 v41, v41, v42, v49
v_or3_b32 v40, v40, v16, v50
v_or_b32 v40, v40, v41
v_and_b32 v40, 0xff, v40
v_cmp_ne_u32 vcc, 0, v40
s_cbranch_vccz L_h3
s_cmp_lt_u32 s{sT+1}, {OPT['POLLMAX']}
s_cbranch_scc1 L_h2
""")
a.label("L_h3")
stamp(8)
a(f"""
v_pk_add_f32 v[24:25], v[24:25], v[28:29]
v_pk_add_f32 v[26:27], v[26:27], v[30:31]
v_pk_add_f32 v[32:33], v[32:33], v[36:37]
v_pk_add_f32 v[34:35], v[34:35], v[38:39]
v_pk_add_f32 v[24:25], v[24:25], v[32:33]
v_pk_add_f32 v[26:27], v[26:27], v[34:35]
v_permlane32_swap_b32 v24, v25
v_permlane32_swap_b32 v26, v27
v_add_f32 v24, v24, v25
v_add_f32 v26, v26, v27
v_permlane16_swap_b32 v24, v26
v_add_f32 v24, v24, v26
""")
for st in ("row_shr:1", "row_shr:2", "row_shr:4", "row_shr:8"):
    a(f"v_add_f32_dpp v24, v24, v24 {st} row_mask:0xf bank_mask:0xf bound_ctrl:0")
lds_spin(18, vMI, M_SV, 1)
a(f"""
ds_read_b32 v25, v46 offset:{M_SAVE}
v_fma_f32 v25, v24, v44, v25
v_cvt_pk_bf16_f32 v25, v25, v25
s_mov_b32 exec_lo, 0x80008000
s_mov_b32 exec_hi, 0x80008000
global_store_short v45, v25, {P(sOUT)}
""")
stamp(9)
endpgm()
a.label("L_xt")
a.reset()
XT, ST = 64, 96
sE = sT + 2
sJ = sT + 6
a(f"s_sub_u32 s{sUNIT}, s{sUNIT}, 2")
for i in range(4):
    a(f"""
    s_bfe_u32 s{sE+i}, s{sTAG}, {0x30000 + 6*i}
    s_bfe_u32 s{sT}, s{sTAG}, {0x30000 + 6*i + 3}
    s_lshl_b32 s{sT}, s{sT}, 16
    s_or_b32 s{sE+i}, s{sE+i}, s{sT}
    """)
a(f"""
s_cmp_eq_u32 s{sHS}, 0
s_cselect_b32 s{sJ}, 0, 512
s_cselect_b32 s{sJ+2}, 512, 0
s_add_u32 s{sJ+1}, s{sJ}, 256
s_add_u32 s{sJ+2}, s{sJ+2}, 1024
s_add_u32 s{sJ+3}, s{sJ+2}, 256
""")
if FULL:
    a(f"""
    s_lshr_b32 s{sT}, s{sCG}, 1
    s_lshl_b32 s{sT}, s{sT}, 15
    s_and_b32 s{sT+1}, s{sCG}, 1
    s_lshl_b32 s{sT+1}, s{sT+1}, 6
    s_add_u32 s{sT}, s{sT}, s{sT+1}
    s_lshl_b32 s{sT+1}, s{sUNIT}, 11
    s_add_u32 s{sT}, s{sT}, s{sT+1}
    s_add_u32 s{sT}, s{sT}, {WS_XT + 4096}
    v_lshrrev_b32 v16, 2, v1
    v_lshlrev_b32 v16, 7, v16
    v_and_b32 v17, 3, v1
    v_lshl_add_u32 v16, v17, 4, v16
    v_add_u32 v20, s{sT}, v16
    v_add_u32 v21, 0x2000, v20
    v_add_u32 v22, 0x4000, v20
    v_add_u32 v23, 0x6000, v20
    """)
    xtaddr = lambda i: (20 + i // 2, (i % 2) * 4096 - 4096)
else:
    a(f"""
    s_lshl_b32 s{sT}, s{sCG}, 14
    s_lshl_b32 s{sT+1}, s{sUNIT}, 10
    s_add_u32 s{sT}, s{sT}, s{sT+1}
    s_add_u32 s{sT}, s{sT}, {WS_XT + 4096}
    v_add_u32 v20, s{sT}, v2
    v_add_u32 v21, 0x2000, v20
    """)
    xtaddr = lambda i: (20 + i // 4, (i % 4) * 2048 - 4096)
vUW, vTOK, vSTA, vYR, vUR, vOA = 24, 25, 26, 27, 28, 29
a(f"""
v_and_b32 v17, 3, v1
v_mul_u32_u24 v17, {USTR}, v17
v_lshrrev_b32 v16, 2, v1
v_lshl_add_u32 v17, v16, 4, v17
s_lshl_b32 s{sT}, s{sUNIT}, 8
s_add_u32 s{sT}, s{sT}, {L_U + 512}
v_add_u32 v{vUW}, s{sT}, v17
s_lshl_b32 s{sT}, s{sUNIT}, 6
v_add_u32 v{vTOK}, s{sT}, v1
v_lshlrev_b32 v{vSTA}, 3, v{vTOK}
v_add_u32 v{vSTA}, {WS_STAT}, v{vSTA}
v_lshlrev_b32 v{vYR}, 2, v{vTOK}
v_lshlrev_b32 v{vUR}, 1, v{vTOK}
v_add_u32 v{vUR}, {L_U + 512}, v{vUR}
s_lshl_b32 s{sT}, s{sCG}, 3
v_lshl_add_u32 v{vOA}, v{vTOK}, 10, s{sT}
v_subrev_u32 v{vFL}, 2, v{vFL}
""")
for q in range(4):
    a(f"s_lshl_b32 s{sT}, s{sJ+q}, 3\n v_add_u32 v{30+q}, s{sT}, v{vSTA}")
lds_spin(18, vMI, M_RT, 1, width=2)
sIDX2 = sT + 10
a(f"v_readfirstlane_b32 s{sIDX2}, v19")
stamp(4)
a(f"s_mov_b32 s{sT+1}, 0")
a.label("L_x1")
for i in range(8):
    r, o = xtaddr(i)
    a(f"global_load_dwordx4 {vr(XT+4*i,4)}, v{r}, {P(sWS)} offset:{o} sc1")
for i in range(8):
    a(f"global_load_dwordx2 {vr(ST+2*i,2)}, v{30+i//2}, {P(sWS)} offset:{(i%2)*1024} sc1")
a(f"s_add_u32 s{sT+1}, s{sT+1}, 1")
for i in range(8):
    for j in range(4): a(f"v_xor_b32 v{XT+4*i+j}, s{sE+j}, v{XT+4*i+j}")
    a(f"ds_write_b128 v{vUW}, {vr(XT+4*i,4)} offset:{512*i}")
    if i == 0:
        a(f"v_or3_b32 v16, v{XT}, v{XT+1}, v{XT+2}\n v_mov_b32 v17, v{XT+3}")
    else:
        a(f"v_or3_b32 v16, v16, v{XT+4*i}, v{XT+4*i+1}\n v_or3_b32 v17, v17, v{XT+4*i+2}, v{XT+4*i+3}")
a(f"""
v_or_b32 v16, v16, v17
v_and_b32 v16, 0x70007, v16
v_cmp_ne_u32 vcc, 0, v16
s_cbranch_vccz L_x2
s_cmp_lt_u32 s{sT+1}, {OPT['POLLMAX']}
s_waitcnt vmcnt(0)
s_cbranch_scc1 L_x1
""")
a.label("L_x2")
a(f"v_mov_b32 v16, 1\n ds_write_b8 v{vFL}, v16 offset:{M_U}")
stamp(5)
a(f"s_mov_b32 s{sT+1}, 0")
a.label("L_x3")
a.wait(vm=0)
for i in range(8):
    a(f"v_xor_b32 v{ST+2*i}, s{sTLO}, v{ST+2*i}\n v_xor_b32 v{ST+2*i+1}, s{sTHI}, v{ST+2*i+1}")
    a(f"v_or3_b32 v16, {'0' if i == 0 else 'v16'}, v{ST+2*i}, v{ST+2*i+1}")
a(f"""
v_and_b32 v16, 0xffff, v16
v_cmp_ne_u32 vcc, 0, v16
s_cbranch_vccz L_x4
s_add_u32 s{sT+1}, s{sT+1}, 1
s_cmp_ge_u32 s{sT+1}, {OPT['POLLMAX']}
s_cbranch_scc1 L_x4
""")
for i in range(8):
    a(f"global_load_dwordx2 {vr(ST+2*i,2)}, v{30+i//2}, {P(sWS)} offset:{(i%2)*1024} sc1")
a("s_branch L_x3")
a.label("L_x4")
a.reset()
INV = 36
sOB = sT + 12
for q in range(4):
    lds_spin(18, vMI, M_T + 4 * q, 0x01010101)
    if q == 0: a(f"ds_read_b128 {vr(INV,4)}, v{vMI} offset:{M_INV}")
    a(f"s_lshl_b32 s{sT}, s{sJ+q}, 1\n v_add_u32 v30, s{sT}, v{vUR}")
    a(f"s_lshl_b32 s{sT}, s{sJ+q}, 10\n s_add_u32 s{sOB}, s{sOUT}, s{sT}\n s_addc_u32 s{sOB+1}, s{sOUT+1}, 0")
    a(f"s_sub_u32 s{sT+11}, s{sIDX2}, s{sJ+q}")
    for h in range(2):
        y, u = 112 + 8 * h, 116 + 8 * h
        for c in range(4):
            a(f"ds_read_b32 v{y+c}, v{vYR} offset:{L_KT + c*KT_SZ + q*1024 + h*512}")
            a(f"ds_read_u16_d16 v{u+c}, v30 offset:{c*USTR + h*256}")
    for h in range(2):
        y, u, i = 112 + 8 * h, 116 + 8 * h, 2 * q + h
        for c in range(4):
            a(f"v_fma_mix_f32 v{u+c}, v{u+c}, v{ST+2*i+1}, v{ST+2*i} op_sel_hi:[1,0,0]")
        if h == 1: a(f"s_sub_u32 s{sT+11}, s{sT+11}, 128")
        a(f"v_cmp_ne_u32 vcc, s{sT+11}, v{vTOK}")
        for c in range(4):
            a(f"v_fma_f32 v{y+c}, v{y+c}, v{INV+c}, v{u+c}")
        a(f"v_cvt_pk_bf16_f32 v{u}, v{y}, v{y+1}\n v_cvt_pk_bf16_f32 v{u+1}, v{y+2}, v{y+3}")
        if h == 1: a(f"s_add_u32 s{sOB}, s{sOB}, 0x20000\n s_addc_u32 s{sOB+1}, s{sOB+1}, 0")
        Lk = a.newlabel("nosave")
        a(f"""
        s_mov_b64 exec, vcc
        global_store_dwordx2 v{vOA}, {vr(u,2)}, {P(sOB)}
        s_not_b64 exec, exec
        s_cbranch_execz {Lk}
        v_mov_b32 v16, 1
        ds_write_b128 v{vMI}, {vr(y,4)} offset:{M_SAVE}
        ds_write_b32 v{vMI}, v16 offset:{M_SV}
        """)
        a.label(Lk)
        a("s_mov_b64 exec, -1")
    stamp(6 + q)
endpgm()

a.raw(".p2align 6")
a.label("L_conv")
a.reset()
a.smem_any = True
PRM, BAND = 4, 12
KW, T2, T3, ACC, DT, BX2, BX3, URING = 36, 104, 128, 144, 160, 176, 208, 224
NRING = 6
vKTA, vWA, vWT2, vWT3, vKWB, vT, vKW, vKW0, vU, vCF, vK0, vDmp = 248, 249, 250, 251, 252, 253, 254, 255, 2, 3, 10, 11
sCH, sLD, sDS, sKWB = sT + 2, sT + 3, sT + 4, sT + 5
a(f"""
s_lshl_b32 s{sCH}, s{sCG}, 2
s_add_u32 s{sCH}, s{sCH}, s{sWAVE}
s_lshl_b32 s{sT+6}, s{sCH}, 8
v_lshl_add_u32 v36, v1, 2, s{sT+6}
s_lshr_b32 s{sT+6}, s{sCH}, 1
s_lshl_b32 s{sT+6}, s{sT+6}, 2
v_lshlrev_b32 v37, 4, v1
v_add_u32 v38, L_tab-L_pc, v37
""")
a.wait(lgkm=0)
if STAMPS: a(f"s_mov_b32 s{sST}, s88")
for i, s_ in enumerate((sARE, sAIM, sBRE, sBIM, sCRE, sCIM)):
    a(f"global_load_dword v{PRM+i}, v36, {P(s_)}")
a(f"s_load_dword s{sLD}, {P(sLDT)}, s{sT+6}\n s_load_dword s{sDS}, {P(sDSK)}, s{sT+6}")
a(f"v_add_u32 v39, 4096, v38")
for i in range(6):
    a(f"global_load_dwordx4 {vr(BAND+4*i,4)}, v{38 if i < 4 else 39}, {P(sPC)} offset:{(i%4)*1024}")
a(f"""
s_lshl_b32 s{sKWB}, s{sWAVE}, 12
s_add_u32 s{sKWB}, s{sKWB}, {L_KW}
v_mov_b32 v40, 0
v_mov_b32 v41, 0
v_mov_b32 v42, 0
v_mov_b32 v43, 0
v_add_u32 v39, s{sKWB}, v37
ds_write_b128 v39, v[40:43]
ds_write_b128 v39, v[40:43] offset:1024
ds_write_b128 v39, v[40:43] offset:2048
ds_write_b128 v39, v[40:43] offset:3072
s_mul_i32 s{sT+6}, s{sWAVE}, {USTR}
s_add_u32 s{sT+6}, s{sT+6}, {L_U}
v_lshl_add_u32 v39, v1, 3, s{sT+6}
ds_write_b64 v39, v[40:41]
v_and_b32 v40, 15, v1
v_lshrrev_b32 v41, 4, v1
v_lshlrev_b32 v{vU}, 5, v40
v_lshl_add_u32 v{vU}, v41, 4, v{vU}
v_add_u32 v{vU}, s{sT+6}, v{vU}
s_mul_i32 s{sT+7}, s{sWAVE}, {KT_SZ}
s_mov_b32 m0, s{sT+7}
v_lshlrev_b32 v{vDmp}, 6, v40
v_lshl_add_u32 v{vDmp}, v41, 4, v{vDmp}
v_add_u32 v{vDmp}, s{sT+7}, v{vDmp}
v_and_b32 v42, 31, v1
v_lshrrev_b32 v43, 5, v1
v_mul_u32_u24 v{vKTA}, {ROWP}, v42
v_lshl_add_u32 v{vKTA}, v43, 4, v{vKTA}
v_add_u32 v{vKTA}, s{sT+7}, v{vKTA}
v_mov_b32 v{vKWB}, s{sKWB}
s_add_u32 s{sT+7}, s{sKWB}, {KW_A + 1072}
v_sub_u32 v{vWA}, s{sT+7}, v37
v_and_b32 v44, 1, v1
v_lshlrev_b32 v45, 8, v44
v_lshrrev_b32 v46, 1, v1
v_lshlrev_b32 v46, 2, v46
v_sub_u32 v45, v45, v46
s_add_u32 s{sT+7}, s{sKWB}, {47*4}
v_add_u32 v{vWT2}, s{sT+7}, v45
v_lshrrev_b32 v45, 1, v42
v_lshl_add_u32 v45, v43, 5, v45
v_lshlrev_b32 v45, 2, v45
v_lshlrev_b32 v46, 1, v44
v_sub_u32 v45, v46, v45
s_add_u32 s{sT+7}, s{sKWB}, {KW_T3 + 47*4}
v_add_u32 v{vWT3}, s{sT+7}, v45
v_lshlrev_b32 v45, 2, v41
v_sub_u32 v46, v45, v40
v_lshlrev_b32 v46, 2, v46
s_add_u32 s{sT+7}, s{sKWB}, 60
v_add_u32 v{vT}, s{sT+7}, v46
v_add_u32 v46, 1, v40
v_lshrrev_b32 v46, 1, v46
v_sub_u32 v45, v45, v46
v_lshlrev_b32 v45, 2, v45
v_mul_u32_u24 v46, {KW_B - KW_A}, v44
v_sub_u32 v45, v45, v46
s_add_u32 s{sT+7}, s{sKWB}, {KW_B + 32}
v_add_u32 v{vKW}, s{sT+7}, v45
v_add_u32 v{vKW0}, 64, v{vKW}
v_lshlrev_b32 v45, 2, v1
v_add_u32 v45, {L_MISC + M_DUMMY}, v45
s_add_u32 s{sT+7}, s{sWAVE}, {L_MISC}
v_mov_b32 v46, s{sT+7}
v_cmp_eq_u32 vcc, 0, v1
s_barrier
""")
a.wait(lgkm=0)
DTv, K1, K2, ONE = 74, 75, 76, 77
a(f"""
v_cndmask_b32 v{vCF}, v45, v46, vcc
s_lshl_b32 s{sT+7}, s{sLD}, 16
s_and_b32 s{sLD}, s{sLD}, 0xffff0000
s_lshl_b32 s{sT+8}, s{sDS}, 16
s_and_b32 s{sDS}, s{sDS}, 0xffff0000
s_bitcmp1_b32 s{sCH}, 0
s_cselect_b32 s{sLD}, s{sLD}, s{sT+7}
s_cselect_b32 s{sDS}, s{sDS}, s{sT+8}
v_mov_b32 v{DTv}, s{sLD}
v_mul_f32 v{DTv}, 0x3fb8aa3b, v{DTv}
v_exp_f32 v{DTv}, v{DTv}
v_mov_b32 v{ONE}, 0x3c00
v_cvt_pk_bf16_f32 v{DTv}, v{DTv}, v{DTv}
v_lshlrev_b32 v{DTv}, 16, v{DTv}
v_mul_f32 v{K1}, 0x3fb8aa3b, v{DTv}
v_mul_f32 v{K2}, 0x3e22f983, v{DTv}
v_add_f32 v{vK0}, 1.0, s{sDS}
v_and_b32 v78, 0x7fffffff, v{vK0}
v_cndmask_b32 v{vK0}, 0, v{vK0}, vcc
""")
a("s_waitcnt vmcnt(6)")
stamp(1)
Z = [36, 38]; W = [40, 42]; TB, TC = 44, 46
E1, E2, E8, E256, CUR, TMP, SV = 52, 54, 56, 58, 60, 62, 64
CV = [66, 67, 68, 69]; cvi = [0]
def cmul(d, x, y):
    a(f"v_pk_mul_f32 {vr(TMP,2)}, {vr(x,2)}, {vr(y,2)} op_sel:[0,0] op_sel_hi:[1,0]")
    a(f"v_pk_fma_f32 {vr(d,2)}, {vr(x,2)}, {vr(y,2)}, {vr(TMP,2)} op_sel:[1,1,0] op_sel_hi:[0,1,1] neg_lo:[1,0,0]")
def put(rows, x, neg):
    c = CV[cvi[0] % 4]; cvi[0] += 1
    a(f"v_cvt_pk_f16_f32 v{c}, v{x}, {'-' if neg else ''}v{x+1}")
    for r in rows: a(f"ds_write_addtid_b32 v{c} offset:{r*ROWP}")
def unp(d, src, hi):
    a(f"v_and_b32 v{d}, 0xffff0000, v{src}" if hi else f"v_lshlrev_b32 v{d}, 16, v{src}")
for s_ in range(2):
    unp(TB, PRM + 2, s_); unp(TB + 1, PRM + 3, s_); unp(TC, PRM + 4, s_); unp(TC + 1, PRM + 5, s_)
    unp(Z[s_], PRM, s_); unp(Z[s_] + 1, PRM + 1, s_)
    cmul(W[s_], TB, TC)
    a(f"v_pk_mul_f32 {vr(Z[s_],2)}, {vr(Z[s_],2)}, {vr(K1 - 1 + 1,2) if False else 'v[%d:%d]' % (70, 71)}" if False else
      f"v_mul_f32 v{Z[s_]}, v{Z[s_]}, v{K1}\n v_mul_f32 v{Z[s_]+1}, v{Z[s_]+1}, v{K2}")
SUM = 79
a(f"""
v_add_f32 v{SUM}, |v{W[0]}|, |v{W[0]+1}|
v_add_f32 v70, |v{W[1]}|, |v{W[1]+1}|
v_add_f32 v{SUM}, v{SUM}, v70
""")
red = [f"v_add_f32_dpp v{SUM}, v{SUM}, v{SUM} {st} row_mask:0xf bank_mask:0xf bound_ctrl:0" for st in ("row_shr:1", "row_shr:2", "row_shr:4", "row_shr:8")]
red += [f"v_add_f32_dpp v{SUM}, v{SUM}, v{SUM} row_bcast:15 row_mask:0xa bank_mask:0xf", f"v_add_f32_dpp v{SUM}, v{SUM}, v{SUM} row_bcast:31 row_mask:0xc bank_mask:0xf"]
def evalE(s_, extra):
    zr, zi = Z[s_], Z[s_] + 1
    ex = list(extra)
    def X():
        if ex: a(ex.pop(0))
    for (d, lit) in ((E8, "0x41000000"), (E1, None), (E256, "0x43800000")):
        if lit:
            a(f"v_mul_f32 v70, {lit}, v{zi}"); a(f"v_mul_f32 v72, {lit}, v{zr}"); X()
            a("v_fract_f32 v70, v70"); a("v_exp_f32 v72, v72")
        else:
            a(f"v_fract_f32 v70, v{zi}"); a(f"v_exp_f32 v72, v{zr}")
        a(f"v_cos_f32 v{d}, v70"); a(f"v_sin_f32 v{d+1}, v70"); X()
        a(f"v_pk_mul_f32 {vr(d,2)}, {vr(d,2)}, v[72:73] op_sel_hi:[1,0]"); X()
    while ex: X()
FR = 160
def ktread(kind):
    for k in range(8):
        base = FR + 4 * k + (32 if kind == "B" else 0)
        a(f"ds_read_b128 {vr(base,4)}, v{vKTA} offset:{32*k + (24*ROWP if kind == 'B' else 0)}")
def kmfma(k, first):
    a(f"v_mfma_f32_32x32x16_f16 {vr(ACC,16)}, {vr(FR+4*k,4)}, {vr(FR+32+4*k,4)}, {'0' if first else vr(ACC,16)}")
def qrows(hook):
    a(f"ds_write_addtid_b32 v{ONE} offset:{24*ROWP}")
    put([25], E8, False)
    for j in range(2, 32):
        cmul(CUR, E8 if j == 2 else CUR, E8); put([24 + j], CUR, False); hook(j)
def prows(s_):
    w = W[s_]
    put([0], w, True)
    for e in range(1, 8):
        cmul(CUR, w if e == 1 else CUR, E1); put([e if e < 4 else e + 4], CUR, True)
    cmul(E2, E1, E1)
    cmul(CUR, w, E256); put([4, 5], CUR, True)
    cmul(CUR, CUR, E2); put([6], CUR, True)
    cmul(SV, CUR, E2); put([7, 12, 13], SV, True)
    cmul(CUR, SV, E2); put([14], CUR, True)
    cmul(CUR, CUR, E2); put([15], CUR, True)
    cmul(SV, SV, E256); put([16], SV, True)
    cmul(CUR, CUR, E256); put([17], CUR, True)
    cmul(SV, SV, E256); put([20], SV, True)
    cmul(CUR, CUR, E256); put([21], CUR, True)
    for r in (18, 19, 22, 23):
        cmul(CUR, CUR, E256); put([r], CUR, True)
evalE(0, red)
sSUM = sT + 7
a(f"""
v_readlane_b32 s{sSUM}, v{SUM}, 63
v_fma_f32 v70, v{DTv}, s{sSUM}, v78
v_frexp_exp_i32_f32 v70, v70
v_sub_u32 v71, 14, v70
v_subrev_u32 v70, 14, v70
v_ldexp_f32 v72, v{DTv}, v71
v_ldexp_f32 v{vK0}, v{vK0}, v71
v_ldexp_f32 v70, 1.0, v70
s_lshl_b32 s{sT+8}, s{sWAVE}, 2
s_add_u32 s{sT+8}, s{sT+8}, {L_MISC + M_INV}
v_mov_b32 v71, s{sT+8}
v_pk_mul_f32 {vr(W[0],2)}, {vr(W[0],2)}, v[72:73] op_sel_hi:[1,0]
v_pk_mul_f32 {vr(W[1],2)}, {vr(W[1],2)}, v[72:73] op_sel_hi:[1,0]
s_mov_b64 exec, 1
ds_write_b32 v71, v70
s_mov_b64 exec, -1
""")
qrows(lambda j: None); prows(0)
ktread("A"); ktread("B")
evalE(1, [])
qrows(lambda j: kmfma((j - 2) // 3, j == 2) if (j - 2) % 3 == 0 and j < 26 else None)
ktread("B")
prows(1)
ktread("A")
for k in range(8): kmfma(k, False)
stamp(2)
Q = 60
a(f"""
v_add_f32 v{ACC}, v{ACC}, v{vK0}
v_mov_b32_dpp v36, v{ACC+7} wave_shr:1 row_mask:0xf bank_mask:0xf bound_ctrl:0
v_cvt_pk_f16_f32 v40, v{ACC+7}, v{ACC+6}
v_cvt_pk_f16_f32 v41, v{ACC+5}, v{ACC+4}
v_cvt_pk_f16_f32 v42, v{ACC+3}, v{ACC+2}
v_cvt_pk_f16_f32 v43, v{ACC+1}, v{ACC}
ds_write_b128 v{vWA}, v[40:43]
v_cvt_pk_f16_f32 v44, v{ACC+6}, v{ACC+5}
v_cvt_pk_f16_f32 v45, v{ACC+4}, v{ACC+3}
v_cvt_pk_f16_f32 v46, v{ACC+2}, v{ACC+1}
v_cvt_pk_f16_f32 v47, v{ACC}, v36
ds_write_b128 v{vWA}, v[44:47] offset:{KW_B - KW_A + 4}
v_cvt_pk_f16_f32 v48, v{ACC+7}, v{ACC+7}
v_cvt_pk_f16_f32 v49, 0, v{ACC+7}
v_cvt_pk_f16_f32 v50, v{ACC+8}, v{ACC+9}
v_cvt_pk_f16_f32 v51, v{ACC+10}, v{ACC+11}
v_cvt_pk_f16_f32 v52, v{ACC+9}, v{ACC+9}
s_mov_b32 exec_lo, 0
s_mov_b32 exec_hi, 0x80000000
ds_write_b32 v{vKWB}, v49 offset:{KW_A + 56}
ds_write_b32 v{vKWB}, v48 offset:{KW_A + 60}
ds_write_b32 v{vKWB}, v48 offset:{KW_B + 60}
ds_write_b32 v{vKWB}, v48 offset:{KW_B + 64}
s_mov_b64 exec, -1
ds_write_b32 v{vWT2}, v50
ds_write_b16 v{vWT3}, v51 offset:64
ds_write_b16_d16_hi v{vWT3}, v51
v_readlane_b32 s{sT+8}, v52, 63
""")
for mu in list(range(16, -1, -1)):
    base, o = (vKW0, 240) if mu == 0 else (vKW, 256 - 16 * mu)
    a(f"ds_read2_b32 {vr(KW+4*mu,2)}, v{base} offset0:{o} offset1:{o+1}")
    a(f"ds_read2_b32 {vr(KW+4*mu+2,2)}, v{base} offset0:{o+2} offset1:{o+3}")
    if mu == 16:
        for i in range(4): a(f"v_and_b32 v{BAND+20+i}, s{sT+8}, v{BAND+20+i}")
for ab in range(2):
    for d in range(3):
        o = 64 * ab + 16 * d
        a(f"ds_read2_b32 {vr(T2+12*ab+4*d,2)}, v{vT} offset0:{o} offset1:{o+1}")
        a(f"ds_read2_b32 {vr(T2+12*ab+4*d+2,2)}, v{vT} offset0:{o+2} offset1:{o+3}")
for d in range(4):
    o = 128 + 48 - 16 * d
    a(f"ds_read2_b32 {vr(T3+4*d,2)}, v{vT} offset0:{o} offset1:{o+1}")
    a(f"ds_read2_b32 {vr(T3+4*d+2,2)}, v{vT} offset0:{o+2} offset1:{o+3}")
a(f"v_mov_b32 v{vK0}, {L_MISC}\n v_mov_b32 v{vKWB}, 1")
stamp(3)
lds_spin(ACC, vK0, M_U, 0x0101)
stamp(4)
a(f"s_cmp_eq_u32 s{sHS}, 0\n s_cbranch_scc0 L_convY")

B3A, B5, B3B, B7, B9, SPK = [BAND + 4 * i for i in range(6)]
def conv_stream(tiles, order):
    acc = {J: ACC + 4 * q for q, J in enumerate(tiles)}
    slot = {J: q for q, J in enumerate(tiles)}
    started = set()
    q2 = sorted({m[1] for m in order if m[0] == "box" and m[2] in "ab"})
    frag = {}
    for i, Qb in enumerate(q2):
        frag[(Qb, "a")] = BX2 + 8 * i; frag[(Qb, "b")] = BX2 + 8 * i + 4
    for Qb in range(4): frag[(Qb, "g")] = BX3 + 4 * Qb
    M = []
    for m in order:
        if m[0] == "near": M.append(dict(u=("U", 8 * m[1] - m[2]), J=m[1], A=KW + 4 * m[2]))
        elif m[0] == "sp": M.append(dict(u=("U", 8 * m[1] - 32), J=m[1], A=SPK))
        elif m[0] == "box":
            Qb, t = m[1], m[2]
            lo = {"a": (("U", 8 * Qb), B3A), "b": (("U", 8 * Qb), B3B), "g": (("U", 8 * Qb), B7)}[t]
            hi = {"a": (("U", 8 * Qb), B5), "b": (("W", Qb), B5), "g": (("W", Qb), B9)}[t]
            M.append(dict(u=lo[0], band=lo[1], half=0, f=(Qb, t))); M.append(dict(u=hi[0], band=hi[1], half=1, f=(Qb, t)))
        elif m[0] == "far":
            J, Qb, t = m[1], m[2], m[3]
            Bq = T3 + 4 * (J - 4 - Qb) if t == "g" else T2 + (12 if t == "b" else 0) + 4 * (Qb - (J - 4))
            M.append(dict(J=J, fin=(Qb, t), B=Bq))
    reads = []; cur = {}
    for i, m in enumerate(M):
        if "u" in m:
            k = m["u"]
            if k in cur and i - reads[cur[k]]["last"] <= 24: reads[cur[k]]["last"] = i
            else: cur[k] = len(reads); reads.append(dict(key=k, first=i, last=i))
            m["rd"] = cur[k]
    last_of = {}
    for i, m in enumerate(M):
        if "J" in m: last_of[m["J"]] = i
    free = list(range(NRING)); nextr = 0; pend_cvt = []; pend_dump = []; dtfree = [0, 1]; dtof = {}; done_f = set()
    def issue_read():
        nonlocal nextr
        r = reads[nextr]; r["buf"] = URING + 4 * free.pop(0); nextr += 1
        off = 480 + 64 * r["key"][1] if r["key"][0] == "U" else 464 + 512 * r["key"][1]
        a(f"ds_read_b128 {vr(r['buf'],4)}, v{vU} offset:{off}")
    def do_cvt():
        t, f, j = pend_cvt.pop(0); d = DT + 8 * dtof[f]
        a(f"v_cvt_pk_f16_f32 v{frag[f]+j}, v{d+j}, v{d+4+j}")
        if j == 3: dtfree.append(dtof[f]); done_f.add(f)
    def do_dump():
        t, J = pend_dump.pop(0)
        a(f"ds_write_b128 v{vDmp}, {vr(acc[J],4)} offset:{1024*slot[J]}")
        a(f"ds_write_b8 v{vCF}, v{vKWB} offset:{M_T + 4*slot[J]}")
        stamp(5 + slot[J])
    while free and nextr < len(reads): issue_read()
    for i, m in enumerate(M):
        fill = 0
        if pend_dump and i - pend_dump[0][0] >= 4: do_dump(); fill += 2
        while fill < 2 and pend_cvt and i - pend_cvt[0][0] >= 4: do_cvt(); fill += 1
        while fill < 2 and free and nextr < len(reads): issue_read(); fill += 1
        if "fin" in m:
            while m["fin"] not in done_f: do_cvt()
        if "band" in m and m["half"] == 0:
            while not dtfree: do_cvt()
            dtof[m["f"]] = dtfree.pop(0)
        if "rd" in m:
            while m["rd"] >= nextr:
                assert free, "ring exhausted"
                issue_read()
        if "band" in m:
            d = DT + 8 * dtof[m["f"]] + 4 * m["half"]
            a(f"v_mfma_f32_16x16x32_f16 {vr(d,4)}, {vr(reads[m['rd']]['buf'],4)}, {vr(m['band'],4)}, 0")
            if m["half"] == 1:
                for j in range(4): pend_cvt.append((i, m["f"], j))
        else:
            J = m["J"]; C = vr(acc[J], 4) if J in started else "0"; started.add(J)
            if "fin" in m: a(f"v_mfma_f32_16x16x32_f16 {vr(acc[J],4)}, {vr(frag[m['fin']],4)}, {vr(m['B'],4)}, {C}")
            else: a(f"v_mfma_f32_16x16x32_f16 {vr(acc[J],4)}, {vr(m['A'],4)}, {vr(reads[m['rd']]['buf'],4)}, {C}")
            if last_of[J] == i: pend_dump.append((i, J))
        if "rd" in m and reads[m["rd"]]["last"] == i: free.append((reads[m["rd"]]["buf"] - URING) // 4)
    while pend_dump: do_dump()
    return len(M), len(reads)

def near_at(n, tiles):
    return [("near", J, 8 * J - n) for J in tiles if 0 <= 8 * J - n <= min(16, 8 * J + 7)]
oX = []
extra = {0: [("box", 0, "g")], 8: [("box", 1, "g")]}
for n in range(-7, 9): oX += near_at(n, [0, 1]) + extra.get(n, [])
oX += [("box", 2, "a"), ("sp", 6), ("box", 2, "b"), ("far", 6, 0, "g"), ("far", 7, 0, "g"), ("box", 2, "g"), ("far", 6, 1, "g"), ("far", 7, 1, "g"),
       ("box", 3, "a"), ("sp", 7), ("box", 3, "b"), ("far", 6, 2, "a"), ("far", 6, 2, "b"), ("box", 3, "g")]
extra = {32: [("box", 4, "a"), ("far", 6, 2, "g"), ("far", 7, 2, "g")], 33: [("far", 6, 3, "a"), ("far", 7, 3, "a")], 34: [("far", 6, 3, "b"), ("far", 7, 3, "b")],
         35: [("far", 7, 3, "g")], 36: [("far", 6, 4, "a")], 37: [("far", 7, 4, "a")],
         40: [("box", 5, "a"), ("box", 5, "b")], 41: [("far", 6, 4, "b")], 42: [("far", 7, 4, "b")], 49: [("far", 7, 5, "a")], 50: [("far", 7, 5, "b")]}
for n in range(32, 57):
    oX += near_at(n, [6, 7]) + extra.get(n, [])
    if n == 32: oX += [("box", 4, "b")]
oY = []
extra = {0: [("box", 0, "a"), ("sp", 4), ("box", 0, "b")], 1: [], 2: [], 3: [("far", 2, 0, "a"), ("far", 3, 0, "a"), ("far", 4, 0, "a")],
         4: [("far", 2, 0, "b"), ("far", 3, 0, "b"), ("far", 4, 0, "b")], 5: [("box", 0, "g")],
         8: [("box", 1, "a"), ("sp", 5), ("box", 1, "b")], 9: [("far", 4, 0, "g")], 10: [("far", 5, 0, "g"), ("box", 1, "g")],
         12: [("far", 3, 1, "a")], 13: [("far", 3, 1, "b")], 14: [("far", 4, 1, "a")],
         16: [("box", 2, "a"), ("box", 2, "b")], 17: [("far", 4, 1, "b")], 18: [("far", 5, 1, "a")], 19: [("far", 5, 1, "b")], 20: [("far", 5, 1, "g")],
         21: [("far", 4, 2, "a")], 22: [("far", 4, 2, "b")],
         24: [("box", 3, "a"), ("box", 3, "b")], 28: [("far", 5, 2, "a")], 29: [("far", 5, 2, "b")], 33: [("far", 5, 3, "a")], 34: [("far", 5, 3, "b")]}
for n in range(0, 41): oY += near_at(n, [2, 3, 4, 5]) + extra.get(n, [])
def check(order, tiles):
    want = set()
    for J in tiles:
        for mu in range(min(16, 8 * J + 7) + 1): want.add(("near", J, mu))
        if J >= 4: want.add(("sp", J))
        for d in range(3):
            if J - 4 + d >= 0: want |= {("far", J, J - 4 + d, "a"), ("far", J, J - 4 + d, "b")}
        for d in range(4):
            if J - 4 - d >= 0: want.add(("far", J, J - 4 - d, "g"))
    got = [m for m in order if m[0] != "box"]
    assert len(got) == len(set(got)) and set(got) == want, (want ^ set(got))
    seen = set()
    for m in order:
        if m[0] == "box": seen.add((m[1], m[2]))
        if m[0] == "far": assert (m[2], m[3]) in seen, m
check(oX, [0, 1, 6, 7]); check(oY, [2, 3, 4, 5])
sv = (list(a.vmq), list(a.dsq), list(a.hist))
nx = conv_stream([0, 1, 6, 7], oX)
endpgm(True)
a.raw(".p2align 3")
a.label("L_convY")
a.vmq, a.dsq, a.hist = sv
ny = conv_stream([2, 3, 4, 5], oY)
endpgm(True)
a.label("L_exit")
a("s_endpgm")
a.raw(".p2align 7")
a.label("L_tab")
for (start, w, one) in ((11, 3, 0x3c00), (6, 5, 0x3c00), (3, 3, 0x3c00), (5, 7, 0x3c00), (4, 9, 0x3c00), (12, 2, 0xffff)):
    for l in range(64):
        r, s_ = l & 15, l >> 4
        e = [one if r + start <= 8 * s_ + i < r + start + w else 0 for i in range(8)]
        a.raw("    .long " + ", ".join(hex(e[2 * j] | e[2 * j + 1] << 16) for j in range(4)))
a.label("L_end")
a.raw(f""".section .rodata,"a"
.p2align 6
.amdhsa_kernel {NAME}
  .amdhsa_next_free_vgpr 256
  .amdhsa_next_free_sgpr 96
  .amdhsa_accum_offset 256
  .amdhsa_group_segment_fixed_size 0
  .amdhsa_kernarg_size 136
  .amdhsa_user_sgpr_count 2
  .amdhsa_user_sgpr_kernarg_segment_ptr 1
  .amdhsa_system_sgpr_workgroup_id_x 1
  .amdhsa_float_denorm_mode_32 3
.end_amdhsa_kernel""")
open(sys.argv[1], "w").write(a.text())
print("LDS", LDS_SIZE, "nops", a.nops, "X mfma/reads", nx, "Y", ny, file=sys.stderr)
```

```python
import sys, struct
from asmlib import Asm, vr, sr

NAME = "parallel_sum__ssm_conv_s4__moe_arch_mod__prompt_kernel"
OPT = dict(NOW=0, NOPF=0, PAD=0, STAMPS=0, FULL=1, DBG=0, POLLMAX=200000)
for a in sys.argv[2:]:
    k, v = a.split("="); OPT[k] = int(v, 0)
STAMPS, FULL, DBG = OPT["STAMPS"], OPT["FULL"], OPT["DBG"]

WS_ROUT, WS_STAT, WS_PART, WS_XT, WS_STAMP, WS_DBG = 0x1000, 0x2000, 0x10000, 0x100000, 0x400000, 0x500000
ROWP = 272; KT_SZ = 56 * ROWP
L_KT = 0
L_KW = L_KT + 4 * KT_SZ
KW_T2A, KW_T2B, KW_T3, KW_A = 0, 256, 512, 832
KW_B = KW_A + 1212
L_U = L_KW + 4 * 4096; USTR = 4640
L_LNI = L_U + 4 * USTR; LNP = 1088
L_WG = L_LNI + 8 * LNP
L_WU = L_WG + 16384 + 128
L_MISC = L_WU + 16384
M_CNT, M_KEY, M_RT, M_W, M_U, M_T, M_SV, M_SAVE, M_INV, M_DUMMY = 0, 4, 8, 16, 20, 32, 48, 64, 80, 128
LDS_SIZE = L_MISC + M_DUMMY + 256 + 128
assert L_MISC % 16 == 0 and L_U % 16 == 0 and L_LNI % 16 == 0 and L_WG % 16 == 0

sX, sARE, sAIM, sBRE, sBIM, sCRE, sCIM, sLDT, sDSK, sBX, sWR, sWG, sWU, sWD, sOUT, sDBG, sWS = [4 + 2 * i for i in range(17)]
sTAG, sWAVE, sCG, sHS, sFFN, sUNIT = 38, 39, 40, 41, 42, 43
sPC = 44
sT = 46
sST = 72
P = lambda r: sr(r, 2)

a = Asm()
def stamp(k):
    if STAMPS:
        a(f"s_memrealtime s[88:89]"); a.wait(lgkm=0); a(f"s_mov_b32 s{sST+k}, s88")
def stamp_flush():
    if STAMPS:
        a.wait(vm=0, lgkm=0)
        a("s_memrealtime s[88:89]"); a.wait(lgkm=0); a(f"s_mov_b32 s{sST+15}, s88")
        a("s_mov_b64 exec, -1")
        a(f"v_mov_b32 v2, 0")
        for k in range(16): a(f"v_writelane_b32 v2, s{sST+k}, {k}")
        a(f"s_lshl_b32 s{sT}, s2, 3\n s_add_u32 s{sT}, s{sT}, s{sWAVE}\n s_lshl_b32 s{sT}, s{sT}, 6\n s_add_u32 s{sT}, s{sT}, {WS_STAMP}")
        a(f"v_and_b32 v3, 63, v0\n v_lshlrev_b32 v3, 2, v3\n v_add_u32 v3, s{sT}, v3")
        a("s_mov_b64 exec, 0xffff")
        a(f"global_store_dword v3, v2, {P(sWS)}")
def endpgm(conv=False):
    if conv and OPT["PAD"]:
        L = a.newlabel("pad"); a.wait(lgkm=0); a.label(L)
        a("s_memrealtime s[88:89]"); a.wait(lgkm=0)
        a(f"s_sub_u32 s88, s88, s90\n s_cmp_lt_u32 s88, {OPT['PAD']}\n s_sleep 2\n s_cbranch_scc1 {L}")
    stamp_flush(); a("s_endpgm")

def lds_spin(vtmp, vaddr, off, want, width=1, sdst=None):
    L, Dn = a.newlabel("spin"), a.newlabel("spun")
    sd = sdst if sdst is not None else sT
    a.wait(lgkm=0)
    a(f"s_mov_b32 s{sT+1}, 0")
    a.label(L)
    a(f"ds_read_b{32*width} {vr(vtmp, width)}, v{vaddr} offset:{off}")
    a.wait(lgkm=0)
    a(f"v_readfirstlane_b32 s{sd}, v{vtmp}")
    a(f"s_add_u32 s{sT+1}, s{sT+1}, 1")
    a(f"s_cmp_eq_u32 s{sd}, {want}")
    a(f"s_cbranch_scc1 {Dn}")
    a(f"s_cmp_lt_u32 s{sT+1}, {OPT['POLLMAX']*16}")
    a("s_sleep 1")
    a(f"s_cbranch_scc1 {L}")
    a.label(Dn)

a.raw(f"""; Single persistent launch: 256 workgroups (one per CU) x 8 waves.
; @launch grid=(256,1,1) block=(512,1,1) lds={LDS_SIZE}
.amdgcn_target "amdgcn-amd-amdhsa--gfx950"
.text
.globl {NAME}
.p2align 8
.type {NAME},@function
{NAME}:""")
a(f"""
s_cmp_ge_u32 s2, 0x100
s_cbranch_scc1 L_exit
s_load_dwordx16 s[4:19], s[0:1], 0
s_load_dwordx16 s[20:35], s[0:1], 64
s_load_dwordx2 s[36:37], s[0:1], 128
""")
if OPT["PAD"]: a("s_memrealtime s[90:91]")
if STAMPS:
    a("s_memrealtime s[88:89]")
    for k in range(16): a(f"s_mov_b32 s{sST+k}, 0")
a(f"""
s_getpc_b64 {P(sPC)}
""")
a.label("L_pc")
a(f"""
v_lshrrev_b32 v2, 6, v0
v_and_b32 v1, 63, v0
v_readfirstlane_b32 s{sWAVE}, v2
s_and_b32 s{sT}, s2, 7
s_lshr_b32 s{sT+1}, s2, 3
s_lshl_b32 s{sCG}, s{sT}, 4
s_and_b32 s{sT+2}, s{sT+1}, 15
s_add_u32 s{sCG}, s{sCG}, s{sT+2}
s_lshr_b32 s{sHS}, s{sT+1}, 4
s_cmp_lt_u32 s{sWAVE}, 4
s_cbranch_scc1 L_conv
""")

XA, XB, WR = 4, 8, 12
WD, WDP, WF = 64, 96, 128
a(f"""
s_setprio 3
s_sub_u32 s{sUNIT}, s{sWAVE}, 4
s_lshl_b32 s{sT+3}, s2, 13
s_lshl_b32 s{sT+4}, s{sUNIT}, 11
s_add_u32 s{sT+3}, s{sT+3}, s{sT+4}
v_lshlrev_b32 v2, 4, v1
v_add_u32 v3, s{sT+3}, v2
s_lshr_b32 s{sT+5}, s{sT+1}, 2
s_lshl_b32 s{sT+5}, s{sT+5}, 3
s_add_u32 s{sT+5}, s{sT+5}, s{sT}
s_and_b32 s{sT+6}, s{sT+1}, 3
s_lshl_b32 s{sT+7}, s{sT+5}, 2
s_add_u32 s{sT+7}, s{sT+7}, s{sT+6}
s_cmp_lt_u32 s{sT+5}, 28
s_cselect_b32 s{sFFN}, 1, 0
s_cmp_lt_u32 s{sUNIT}, 2
s_cselect_b32 s{sFFN}, s{sFFN}, 0
{'s_mov_b32 s%d, 0' % sFFN if OPT['NOW'] else ''}
s_cmp_lg_u32 s{sUNIT}, 3
s_cbranch_scc1 L_noinit
v_lshlrev_b32 v16, 2, v1
v_add_u32 v16, {L_MISC}, v16
v_mov_b32 v17, 0
ds_write_b32 v16, v17
""")
a.label("L_noinit")
a.wait(lgkm=0)
if STAMPS: a(f"s_mov_b32 s{sST}, s88")
a(f"""
s_load_dword s{sTAG}, {P(sWS)}, 0
global_load_dwordx4 {vr(XA,4)}, v3, {P(sX)}
global_load_dwordx4 {vr(XB,4)}, v3, {P(sX)} offset:1024
global_load_dwordx4 {vr(WR,4)}, v2, {P(sWR)}
""")
a(f"""
s_cmp_lt_u32 s{sUNIT}, 2
s_cbranch_scc1 L_nopf
s_lshl_b32 s{sT+8}, s{sUNIT}, 14
s_sub_u32 s{sT+8}, s{sT+8}, 0x8000
v_lshlrev_b32 v16, 7, v1
v_add_u32 v16, s{sT+8}, v16
v_min_u32 v17, L_end-L_pc-4, v16
v_add_u32 v16, 0x2000, v16
v_min_u32 v16, L_end-L_pc-4, v16
{'v_mov_b32 v16, 0' if OPT['NOPF'] else ''}
{'v_mov_b32 v17, 0' if OPT['NOPF'] else ''}
global_load_dword v254, v17, {P(sPC)}
global_load_dword v255, v16, {P(sPC)}
s_branch L_noffn0
""")
a.label("L_nopf")
a(f"""
s_cmp_eq_u32 s{sFFN}, 0
s_cbranch_scc1 L_noffn0
s_cmp_eq_u32 s{sUNIT}, 0
s_cselect_b32 s{sT+8}, s{sWG}, s{sWU}
s_cselect_b32 s{sT+9}, s{sWG+1}, s{sWU+1}
s_mul_i32 s{sT+10}, s{sUNIT}, {L_WU-L_WG}
s_add_u32 m0, s{sT+10}, {L_WG}
v_lshrrev_b32 v16, 1, v1
v_mul_u32_u24 v16, 3584, v16
v_and_b32 v17, 1, v1
v_lshl_add_u32 v16, v17, 4, v16
s_lshl_b32 s{sT+11}, s{sT+7}, 5
v_add_u32 v16, s{sT+11}, v16
s_mov_b32 s{sT+11}, 16
""")
a.label("L_dma")
a(f"""
global_load_lds_dwordx4 v16, {P(sT+8)}
v_add_u32 v16, {32*3584}, v16
s_add_u32 m0, m0, 1024
s_sub_u32 s{sT+11}, s{sT+11}, 1
s_cmp_lg_u32 s{sT+11}, 0
s_cbranch_scc1 L_dma
s_lshl_b32 s{sT+11}, s{sT+7}, 1
s_add_u32 s{sT+11}, s{sT+11}, s{sUNIT}
s_lshl_b32 s{sT+12}, s{sT+11}, 13
s_add_u32 s{sT+12}, s{sT+12}, 4096
v_add_u32 v16, s{sT+12}, v2
""")
sPU = sT + 11
for f in range(8):
    a(f"global_load_dwordx4 {vr(WD+4*f,4)}, v16, {P(sWD)} offset:{f*1024-4096}")
a.label("L_noffn0")
a.reset()
vFL, vMI, vTK, vC9, vMK = 52, 53, 54, 55, 56
a(f"""
v_mov_b32 v{vMI}, {L_MISC}
v_lshlrev_b32 v16, 2, v1
v_add_u32 v17, {L_MISC+M_DUMMY}, v16
v_add_u32 v{vFL}, s{sUNIT}, v{vMI}
v_cmp_eq_u32 vcc, 0, v1
s_lshl_b32 s{sT+8}, s2, 3
s_lshl_b32 s{sT+9}, s{sUNIT}, 1
s_add_u32 s{sT+8}, s{sT+8}, s{sT+9}
v_cndmask_b32 v{vFL}, v17, v{vFL}, vcc
s_sub_u32 s{sT+9}, 2047, s{sT+8}
v_lshrrev_b32 v18, 5, v1
v_sub_u32 v{vTK}, s{sT+9}, v18
v_mov_b32 v{vC9}, 0x3b000000
v_mov_b32 v{vMK}, 0xfff8fff8
""")
sROW = sT + 8
vSA, vIW, vTR, vXS = 57, 58, 59, 60
a(f"""
v_add_u32 v{vSA}, s{sROW}, v18
v_lshlrev_b32 v{vSA}, 3, v{vSA}
v_add_u32 v{vSA}, {WS_STAT}, v{vSA}
s_mul_i32 s{sT+10}, s{sUNIT}, {2*LNP}
s_add_u32 s{sT+10}, s{sT+10}, {L_LNI}
v_add_u32 v{vIW}, s{sT+10}, v2
v_bfe_u32 v16, v1, 2, 2
v_mul_u32_u24 v16, {LNP}, v16
v_lshrrev_b32 v17, 4, v1
v_lshl_add_u32 v16, v17, 5, v16
v_and_b32 v17, 3, v1
v_lshl_add_u32 v16, v17, 3, v16
s_lshl_b32 s{sT+10}, s{sUNIT}, 8
s_add_u32 s{sT+10}, s{sT+10}, {L_LNI}
v_add_u32 v{vTR}, s{sT+10}, v16
""")
if FULL:
    a(f"""
    v_lshrrev_b32 v16, 3, v1
    v_lshlrev_b32 v16, 15, v16
    v_and_b32 v17, 7, v1
    v_lshl_add_u32 v16, v17, 4, v16
    s_lshl_b32 s{sT+10}, s{sUNIT}, 19
    s_lshl_b32 s{sT+12}, s2, 7
    """)
else:
    a(f"""
    v_lshrrev_b32 v16, 2, v1
    v_lshlrev_b32 v16, 14, v16
    v_and_b32 v17, 3, v1
    v_lshl_add_u32 v16, v17, 4, v16
    s_lshl_b32 s{sT+10}, s{sUNIT}, 19
    s_lshl_b32 s{sT+12}, s2, 6
    """)
a(f"""
s_add_u32 s{sT+10}, s{sT+10}, s{sT+12}
s_add_u32 s{sT+10}, s{sT+10}, {WS_XT}
v_add_u32 v{vXS}, s{sT+10}, v16
v_add_u32 v{vXS+1}, 0x40000, v{vXS}
""")
sC9, sC1, sTGA, sTGB, sTLO, sTHI = sT + 13, sT + 14, sT + 15, sT + 16, sT + 17, sT + 18
a(f"s_mov_b32 s{sC9}, 0x3b003b00\n s_mov_b32 s{sC1}, 0x3f803f80")
if STAMPS: a("s_memrealtime s[92:93]")
a("s_barrier")
if STAMPS: a("s_memrealtime s[94:95]")
a.wait(lgkm=0)
if STAMPS: a(f"s_mov_b32 s{sST+10}, s92\n s_mov_b32 s{sST+11}, s94")
stamp(12)
a(f"""
s_add_u32 s{sTAG}, s{sTAG}, 1
s_mul_i32 s{sT+10}, s{sUNIT}, 6
s_lshr_b32 s{sTGB}, s{sTAG}, s{sT+10}
s_and_b32 s{sTGA}, s{sTGB}, 7
s_mul_i32 s{sTGA}, s{sTGA}, 0x10001
s_bfe_u32 s{sTGB}, s{sTGB}, 0x30003
s_mul_i32 s{sTGB}, s{sTGB}, 0x10001
s_and_b32 s{sTLO}, s{sTAG}, 0xffff
s_lshr_b32 s{sTHI}, s{sTAG}, 16
""")
a(f"s_cmp_eq_u32 s{sFFN}, 0\n s_cbranch_scc1 L_w2")
a("s_waitcnt vmcnt(24)\n s_branch L_w3")
a.label("L_w2")
a(f"s_cmp_lt_u32 s{sUNIT}, 2\n s_cbranch_scc1 L_w4")
a("s_waitcnt vmcnt(2)\n s_branch L_w3")
a.label("L_w4")
a("s_waitcnt vmcnt(0)")
a.label("L_w3")
a.reset()
stamp(1)
A1, B1, A2, B2, A3, B3, Wv, W2 = 16, 17, 18, 19, 20, 21, 22, 23
for i in range(4):
    z = lambda r: "0" if i == 0 else f"v{r}"
    a(f"""
    v_dot2_f32_bf16 v{A1}, v{XA+i}, s{sC9}, {z(A1)}
    v_dot2_f32_bf16 v{B1}, v{XB+i}, s{sC9}, {z(B1)}
    v_dot2_f32_bf16 v{A2}, v{XA+i}, v{XA+i}, {z(A2)}
    v_dot2_f32_bf16 v{B2}, v{XB+i}, v{XB+i}, {z(B2)}
    v_dot2_f32_bf16 v{Wv}, v{WR+i}, s{sC1}, {z(Wv)}
    v_dot2_f32_bf16 v{A3}, v{XA+i}, v{WR+i}, {z(A3)}
    v_dot2_f32_bf16 v{B3}, v{XB+i}, v{WR+i}, {z(B3)}
    """)
UX = 36
def unpack(i):
    src = XA + i
    a(f"v_lshlrev_b32 v{UX+2*i}, 16, v{src}\n v_and_b32 v{UX+2*i+1}, 0xffff0000, v{src}")
a(f"v_mov_b32 v{W2}, v{Wv}")
a(f"v_permlane32_swap_b32 v{A1}, v{B1}\n v_permlane32_swap_b32 v{A2}, v{B2}")
a(f"v_add_f32 v{A1}, v{A1}, v{B1}")
a(f"v_permlane32_swap_b32 v{A3}, v{B3}\n v_permlane32_swap_b32 v{Wv}, v{W2}")
a(f"v_add_f32 v{A2}, v{A2}, v{B2}\n v_add_f32 v{A3}, v{A3}, v{B3}\n v_add_f32 v{Wv}, v{Wv}, v{W2}")
for st in ("row_shr:1", "row_shr:2", "row_shr:4", "row_shr:8"):
    for r in (A1, A2, A3, Wv):
        a(f"v_add_f32_dpp v{r}, v{r}, v{r} {st} row_mask:0xf bank_mask:0xf bound_ctrl:0")
for r in (A1, A2, A3, Wv):
    a(f"v_add_f32_dpp v{r}, v{r}, v{r} row_bcast:15 row_mask:0xa bank_mask:0xf")
MB, SB, RS, NM, T0, T1, KEY = 24, 25, 26, 27, 28, 29, 30
a(f"""
v_mul_f32 v{T0}, v{A2}, v{vC9}
v_fma_f32 v{T0}, -v{A1}, v{A1}, v{T0}
v_max_f32 v{T0}, 0, v{T0}
v_cvt_pk_bf16_f32 v{T1}, v{A1}, v{T0}
v_and_b32 v{T0}, 0xffff0000, v{T1}
v_lshlrev_b32 v{MB}, 16, v{T1}
v_add_f32 v{T0}, 0x3727c5ac, v{T0}
v_cvt_pk_bf16_f32 v{T0}, v{T0}, v{T0}
v_lshlrev_b32 v{T0}, 16, v{T0}
v_sqrt_f32 v{T0}, v{T0}
v_fma_f32 v{KEY}, -v{MB}, v{Wv}, v{A3}
v_cvt_pk_bf16_f32 v{T0}, v{T0}, v{T0}
v_lshlrev_b32 v{SB}, 16, v{T0}
v_rcp_f32 v{RS}, v{SB}
v_or_b32 v{T0}, s{sTLO}, v{MB}
v_mul_f32 v{KEY}, v{KEY}, v{RS}
v_mul_f32 v{NM}, -v{MB}, v{RS}
v_ashrrev_i32 v31, 31, v{KEY}
v_or_b32 v{T1}, s{sTHI}, v{SB}
v_or_b32 v31, 0x80000000, v31
v_xor_b32 v{KEY}, v{KEY}, v31
v_and_b32 v{KEY}, 0xfffff800, v{KEY}
v_or_b32 v{KEY}, v{KEY}, v{vTK}
s_mov_b32 exec_lo, 0x80000000
s_mov_b32 exec_hi, 0x80000000
ds_max_u32 v{vMI}, v{KEY} offset:{M_KEY}
global_store_dwordx2 v{vSA}, {vr(T0,2)}, {P(sWS)} sc1
s_mov_b64 exec, -1
""")
sRA, sRB = sT + 20, sT + 22
a(f"""
v_readlane_b32 s{sRA}, v{RS}, 31
v_readlane_b32 s{sRA+1}, v{NM}, 31
v_readlane_b32 s{sRB}, v{RS}, 63
v_readlane_b32 s{sRB+1}, v{NM}, 63
""")
for i in range(8): unpack(i)
for i in range(8):
    s_ = sRA if i < 4 else sRB
    a(f"v_pk_fma_f32 {vr(UX+2*i,2)}, {vr(UX+2*i,2)}, {P(s_)}, {P(s_)} op_sel:[0,0,1] op_sel_hi:[1,0,1]")
for i in range(8): a(f"v_cvt_pk_f16_f32 v{XA+i}, v{UX+2*i}, v{UX+2*i+1}")
for i in range(8): a(f"v_add_u32 v{XA+i}, 0x40004, v{XA+i}")
for i in range(4): a(f"v_and_or_b32 v{XA+i}, v{XA+i}, v{vMK}, s{sTGA}")
a(f"ds_write_b128 v{vIW}, {vr(XA,4)}")
for i in range(4): a(f"v_and_or_b32 v{XB+i}, v{XB+i}, v{vMK}, s{sTGB}")
a(f"ds_write_b128 v{vIW}, {vr(XB,4)} offset:{LNP}")
a(f"v_mov_b32 v16, 1")
a(f"ds_write_b8 v{vFL}, v16 offset:{M_CNT}")
stamp(2)
lds_spin(18, vMI, M_CNT, 0x01010101, width=2)
for b in range(2):
    a(f"ds_read_b64_tr_b16 {vr(XA+4*b,2)}, v{vTR} offset:{128*b}")
    a(f"ds_read_b64_tr_b16 {vr(XA+4*b+2,2)}, v{vTR} offset:{128*b+4*LNP}")
a(f"s_cmp_lg_u32 s{sUNIT}, 0\n s_cbranch_scc1 L_norout")
a(f"""
s_lshl_b32 s{sT}, s2, 3
s_add_u32 s{sT}, s{sT}, {WS_ROUT}
v_mov_b32 v20, s{sT}
v_mov_b32 v22, v19
v_mov_b32 v23, s{sTAG}
s_mov_b64 exec, 1
global_store_dwordx2 v20, v[22:23], {P(sWS)} sc1
s_mov_b64 exec, -1
""")
a.label("L_norout")
a(f"global_store_dwordx4 v{vXS}, {vr(XA,4)}, {P(sWS)} sc1")
a(f"global_store_dwordx4 v{vXS+1}, {vr(XB,4)}, {P(sWS)} sc1")
stamp(3)
a(f"s_cmp_ge_u32 s{sUNIT}, 2\n s_cbranch_scc1 L_xt")
a(f"s_cmp_eq_u32 s{sFFN}, 1\n s_cbranch_scc1 L_ffnprep")
a(f"s_cmp_eq_u32 s{sUNIT}, 0\n s_cbranch_scc1 L_rpoll")
endpgm()
a.label("L_ffnprep")
a.reset()
pairs = [(0, 2), (4, 6), (1, 3), (5, 7)]
a(f"""
s_mov_b32 s{sT+2}, 0x05040100
s_mov_b32 s{sT+3}, 0x07060302
v_bfe_u32 v16, v1, 2, 2
v_lshrrev_b32 v17, 4, v1
v_lshl_add_u32 v16, v17, 3, v16
v_lshlrev_b32 v16, 5, v16
v_and_b32 v17, 1, v1
v_lshl_add_u32 v16, v17, 3, v16
v_bfe_u32 v17, v1, 1, 1
v_mul_u32_u24 v17, {L_WU-L_WG}, v17
s_lshl_b32 s{sT+4}, s{sUNIT}, 4
s_add_u32 s{sT+4}, s{sT+4}, {L_WG}
v_add3_u32 v20, v16, v17, s{sT+4}
v_mov_b32 v16, 1
""")
a("s_waitcnt vmcnt(2)")
a(f"ds_write_b8 v{vFL}, v16 offset:{M_W}")
for pi, (fa, fb) in enumerate(pairs):
    for c in range(4):
        a(f"v_perm_b32 v{WDP+8*pi+2*c}, v{WD+4*fb+c}, v{WD+4*fa+c}, s{sT+2}")
        a(f"v_perm_b32 v{WDP+8*pi+2*c+1}, v{WD+4*fb+c}, v{WD+4*fa+c}, s{sT+3}")
lds_spin(18, vMI, M_W, 0x0101)
for ks in range(16):
    for hh in range(2):
        a(f"ds_read_b64_tr_b16 {vr(WF+4*ks+2*hh,2)}, v20 offset:{ks*1024+hh*128}")
stamp(4)
a.label("L_rpoll")
a.wait(lgkm=0)
a.reset()
sKEY, sIDX = sT + 4, sT + 5
a(f"""
v_add_u32 v20, {WS_ROUT}, v2
v_and_b32 v21, 15, v1
v_lshlrev_b32 v21, 6, v21
v_lshrrev_b32 v22, 4, v1
v_lshl_add_u32 v21, v22, 4, v21
s_mov_b32 s{sT+1}, 0
""")
a.label("L_rp1")
a(f"""
global_load_dwordx4 v[24:27], v20, {P(sWS)} sc1
global_load_dwordx4 v[28:31], v20, {P(sWS)} offset:1024 sc1
s_add_u32 s{sT+1}, s{sT+1}, 1
""")
a.wait(vm=0)
a(f"""
v_xor_b32 v25, s{sTAG}, v25
v_xor_b32 v27, s{sTAG}, v27
v_xor_b32 v29, s{sTAG}, v29
v_xor_b32 v31, s{sTAG}, v31
v_max3_u32 v24, v24, v26, v28
v_or3_b32 v25, v25, v27, v29
v_max_u32 v24, v24, v30
v_or_b32 v25, v25, v31
v_cmp_ne_u32 vcc, 0, v25
s_cbranch_vccz L_rp2
s_cmp_lt_u32 s{sT+1}, {OPT['POLLMAX']}
s_cbranch_scc1 L_rp1
""")
a.label("L_rp2")
for st in ("row_shr:1", "row_shr:2", "row_shr:4", "row_shr:8"):
    a(f"v_max_u32_dpp v24, v24, v24 {st} row_mask:0xf bank_mask:0xf bound_ctrl:0")
a("v_max_u32_dpp v24, v24, v24 row_bcast:15 row_mask:0xa bank_mask:0xf")
a("v_max_u32_dpp v24, v24, v24 row_bcast:31 row_mask:0xc bank_mask:0xf")
a(f"""
v_readlane_b32 s{sKEY}, v24, 63
s_and_b32 s{sIDX}, s{sKEY}, 0x7ff
s_sub_u32 s{sIDX}, 2047, s{sIDX}
s_lshl_b32 s{sT+6}, s{sIDX}, 10
s_lshl_b32 s{sT+7}, s{sIDX}, 3
s_add_u32 s{sT+7}, s{sT+7}, {WS_STAT}
v_add_u32 v21, s{sT+6}, v21
v_mov_b32 v22, s{sT+7}
s_cmp_eq_u32 s{sFFN}, 0
s_cbranch_scc1 L_rp3
global_load_dwordx4 v[24:27], v21, {P(sX)}
global_load_dwordx2 v[28:29], v22, {P(sWS)} sc1
""")
a.label("L_rp3")
a(f"""
s_cmp_lg_u32 s{sUNIT}, 0
s_cbranch_scc1 L_rp4
v_mov_b32 v30, 1
v_mov_b32 v31, s{sIDX}
s_mov_b64 exec, 1
ds_write_b64 v{vMI}, v[30:31] offset:{M_RT}
s_cmp_lg_u32 s2, 0
s_cbranch_scc1 L_rp5
v_mov_b32 v30, 0
v_mov_b32 v31, s{sTAG}
global_store_dword v30, v31, {P(sWS)} sc1
""")
a.label("L_rp5")
a("s_mov_b64 exec, -1")
a.label("L_rp4")
stamp(5)
a(f"s_cmp_eq_u32 s{sFFN}, 0\n s_cbranch_scc1 L_hop2")
a.reset()
a(f"s_mov_b32 s{sT+1}, 0")
a.label("L_st1")
a.wait(vm=0)
a(f"""
v_xor_b32 v28, s{sTLO}, v28
v_xor_b32 v29, s{sTHI}, v29
v_or_b32 v30, v28, v29
v_and_b32 v30, 0xffff, v30
v_cmp_ne_u32 vcc, 0, v30
s_cbranch_vccz L_st2
s_add_u32 s{sT+1}, s{sT+1}, 1
s_cmp_ge_u32 s{sT+1}, {OPT['POLLMAX']}
s_cbranch_scc1 L_st2
global_load_dwordx2 v[28:29], v22, {P(sWS)} sc1
s_branch L_st1
""")
a.label("L_st2")
a.reset()
stamp(6)
a(f"v_rcp_f32 v32, v29")
for i in range(4):
    a(f"v_lshlrev_b32 v{UX+2*i}, 16, v{24+i}\n v_and_b32 v{UX+2*i+1}, 0xffff0000, v{24+i}")
a(f"v_mul_f32 v33, -v28, v32")
for i in range(4):
    a(f"v_pk_fma_f32 {vr(UX+2*i,2)}, {vr(UX+2*i,2)}, v[32:33], v[32:33] op_sel:[0,0,1] op_sel_hi:[1,0,1]")
for i in range(4): a(f"v_cvt_pk_bf16_f32 v{24+i}, v{UX+2*i}, v{UX+2*i+1}")
BB = [44, 48]; DG = 32
def bc(ks):
    for i in range(4):
        a(f"v_mov_b32_dpp v{BB[ks&1]+i}, v{24+i} row_newbcast:{ks} row_mask:0xf bank_mask:0xf")
bc(0)
for ks in range(16):
    if ks < 15: bc(ks + 1)
    a(f"v_mfma_f32_16x16x32_bf16 {vr(DG,4)}, {vr(WF+4*ks,4)}, {vr(BB[ks&1],4)}, {'0' if ks == 0 else vr(DG,4)}")
sTB = sT + 6
a(f"""
s_lshr_b32 s{sTB+1}, s{sTAG}, 8
s_lshr_b32 s{sTB+2}, s{sTAG}, 16
s_lshr_b32 s{sTB+3}, s{sTAG}, 24
s_lshl_b32 s{sT}, s{sPU}, 11
s_add_u32 s{sT}, s{sT}, {WS_PART}
v_lshlrev_b32 v20, 5, v1
v_add_u32 v20, s{sT}, v20
v_mov_b32 v21, 0xff
v_permlane32_swap_b32 v{DG}, v{DG+1}
v_permlane32_swap_b32 v{DG+2}, v{DG+3}
v_mul_f32 v36, 0xbfb8aa3b, v{DG}
v_mul_f32 v37, 0xbfb8aa3b, v{DG+2}
v_exp_f32 v36, v36
v_exp_f32 v37, v37
v_mul_f32 v{DG}, v{DG}, v{DG+1}
v_add_f32 v36, 1.0, v36
v_add_f32 v37, 1.0, v37
v_rcp_f32 v36, v36
v_rcp_f32 v37, v37
v_mul_f32 v{DG+2}, v{DG+2}, v{DG+3}
v_mul_f32 v36, v36, v{DG}
v_mul_f32 v37, v37, v{DG+2}
v_cvt_pk_bf16_f32 v36, v36, v37
""")
sH = sT + 13
for pi in range(4): a(f"v_readlane_b32 s{sH+pi}, v36, {16*pi}")
Y = 40
for pi in range(4):
    for c in range(8):
        a(f"v_dot2_f32_bf16 v{Y+c}, v{WDP+8*pi+c}, s{sH+pi}, {'0' if pi == 0 else 'v%d' % (Y+c)}")
for c in range(8):
    a(f"v_bfi_b32 v{Y+c}, v21, s{sTAG if c % 4 == 0 else sTB + c % 4}, v{Y+c}")
    if c == 3: a(f"global_store_dwordx4 v20, {vr(Y,4)}, {P(sWS)} sc1")
a(f"global_store_dwordx4 v20, {vr(Y+4,4)}, {P(sWS)} offset:16 sc1")
stamp(7)
a(f"s_cmp_eq_u32 s{sUNIT}, 0\n s_cbranch_scc1 L_hop2")
endpgm()
a.label("L_hop2")
a.reset()
a(f"""
s_lshr_b32 s{sT}, s{sIDX}, 8
s_add_u32 s{sT}, s{sT}, 6
s_and_b32 s{sT}, s{sT}, 7
s_lshr_b32 s{sT}, s{sT}, 2
s_xor_b32 s{sT}, s{sT}, 1
s_cmp_eq_u32 s{sT}, s{sHS}
{'s_cmp_eq_u32 s2, 999' if OPT['NOW'] else ''}
s_cbranch_scc1 L_h1
""")
endpgm()
a.label("L_h1")
a(f"""
s_and_b32 s{sTB}, s{sTAG}, 0xff
s_bfe_u32 s{sTB+1}, s{sTAG}, 0x80008
s_bfe_u32 s{sTB+2}, s{sTAG}, 0x80010
s_lshr_b32 s{sTB+3}, s{sTAG}, 24
s_lshl_b32 s{sT}, s{sCG}, 4
s_add_u32 s{sT}, s{sT}, {WS_PART}
v_lshlrev_b32 v20, 11, v1
v_add_u32 v20, s{sT}, v20
v_add_u32 v21, 0x20000, v20
v_add_u32 v22, 0x40000, v20
v_add_u32 v23, 0x60000, v20
v_mov_b32 v36, s{sTB}
v_mov_b32 v37, s{sTB+1}
v_mov_b32 v38, s{sTB+2}
v_mov_b32 v39, s{sTB+3}
s_and_b32 s{sT}, s{sKEY}, 0xfffff800
s_xor_b32 s{sT+2}, s{sT}, 0x80000000
s_not_b32 s{sT+3}, s{sT}
s_bitcmp1_b32 s{sT}, 31
s_cselect_b32 s{sT}, s{sT+2}, s{sT+3}
v_mov_b32 v44, s{sT}
v_mul_f32 v44, 0xbfb8aa3b, v44
v_exp_f32 v44, v44
s_mov_b32 s{sT+1}, 0
v_add_f32 v44, 1.0, v44
v_rcp_f32 v44, v44
s_lshl_b32 s{sT}, s{sIDX}, 10
s_lshl_b32 s{sT+2}, s{sCG}, 3
s_add_u32 s{sT}, s{sT}, s{sT+2}
v_lshrrev_b32 v45, 4, v1
v_and_b32 v46, 1, v45
v_lshrrev_b32 v45, 1, v45
v_lshl_add_u32 v45, v46, 1, v45
v_lshl_add_u32 v46, v45, 2, v{vMI}
v_lshl_add_u32 v45, v45, 1, s{sT}
""")
a.label("L_h2")
a(f"""
global_load_dwordx4 v[24:27], v20, {P(sWS)} sc1
global_load_dwordx4 v[28:31], v21, {P(sWS)} sc1
global_load_dwordx4 v[32:35], v22, {P(sWS)} sc1
s_mov_b32 exec_hi, 0
global_load_dwordx4 v[36:39], v23, {P(sWS)} sc1
s_mov_b32 exec_hi, -1
s_add_u32 s{sT+1}, s{sT+1}, 1
""")
a.wait(vm=0)
for i in range(4):
    a(f"v_xor_b32 v{40+i}, v{24+i}, v{28+i}")
for i in range(4):
    a(f"v_xor_b32 v{48+i}, v{32+i}, v{36+i}")
for i in range(4):
    a(f"v_xor_b32 v{52+i}, s{sTB+i}, v{24+i}" if False else f"v_xor_b32 v{16 + i}, s{sTB+i}, v{24+i}")
a(f"""
v_or3_b32 v40, v40, v41, v42
v_or3_b32 v48, v48, v49, v50
v_or3_b32 v16, v16, v17, v18
v_xor_b32 v41, v24, v32
v_xor_b32 v42, v25, v33
v_xor_b32 v49, v26, v34
v_xor_b32 v50, v27, v35
v_or3_b32 v40, v40, v43, v48
v_or3_b32 v16, v16, v19, v51
v_or3_b32 v41, v41, v42, v49
v_or3_b32 v40, v40, v16, v50
v_or_b32 v40, v40, v41
v_and_b32 v40, 0xff, v40
v_cmp_ne_u32 vcc, 0, v40
s_cbranch_vccz L_h3
s_cmp_lt_u32 s{sT+1}, {OPT['POLLMAX']}
s_cbranch_scc1 L_h2
""")
a.label("L_h3")
stamp(8)
a(f"""
v_pk_add_f32 v[24:25], v[24:25], v[28:29]
v_pk_add_f32 v[26:27], v[26:27], v[30:31]
v_pk_add_f32 v[32:33], v[32:33], v[36:37]
v_pk_add_f32 v[34:35], v[34:35], v[38:39]
v_pk_add_f32 v[24:25], v[24:25], v[32:33]
v_pk_add_f32 v[26:27], v[26:27], v[34:35]
v_permlane32_swap_b32 v24, v25
v_permlane32_swap_b32 v26, v27
v_add_f32 v24, v24, v25
v_add_f32 v26, v26, v27
v_permlane16_swap_b32 v24, v26
v_add_f32 v24, v24, v26
""")
for st in ("row_shr:1", "row_shr:2", "row_shr:4", "row_shr:8"):
    a(f"v_add_f32_dpp v24, v24, v24 {st} row_mask:0xf bank_mask:0xf bound_ctrl:0")
lds_spin(18, vMI, M_SV, 1)
a(f"""
ds_read_b32 v25, v46 offset:{M_SAVE}
v_fma_f32 v25, v24, v44, v25
v_cvt_pk_bf16_f32 v25, v25, v25
s_mov_b32 exec_lo, 0x80008000
s_mov_b32 exec_hi, 0x80008000
global_store_short v45, v25, {P(sOUT)}
""")
stamp(9)
endpgm()
a.label("L_xt")
a.reset()
XT, ST = 64, 96
sE = sT + 2
sJ = sT + 6
a(f"s_sub_u32 s{sUNIT}, s{sUNIT}, 2")
for i in range(4):
    a(f"""
    s_bfe_u32 s{sE+i}, s{sTAG}, {0x30000 + 6*i}
    s_bfe_u32 s{sT}, s{sTAG}, {0x30000 + 6*i + 3}
    s_lshl_b32 s{sT}, s{sT}, 16
    s_or_b32 s{sE+i}, s{sE+i}, s{sT}
    """)
a(f"""
s_cmp_eq_u32 s{sHS}, 0
s_cselect_b32 s{sJ}, 0, 512
s_cselect_b32 s{sJ+2}, 512, 0
s_add_u32 s{sJ+1}, s{sJ}, 256
s_add_u32 s{sJ+2}, s{sJ+2}, 1024
s_add_u32 s{sJ+3}, s{sJ+2}, 256
""")
if FULL:
    a(f"""
    s_lshr_b32 s{sT}, s{sCG}, 1
    s_lshl_b32 s{sT}, s{sT}, 15
    s_and_b32 s{sT+1}, s{sCG}, 1
    s_lshl_b32 s{sT+1}, s{sT+1}, 6
    s_add_u32 s{sT}, s{sT}, s{sT+1}
    s_lshl_b32 s{sT+1}, s{sUNIT}, 11
    s_add_u32 s{sT}, s{sT}, s{sT+1}
    s_add_u32 s{sT}, s{sT}, {WS_XT + 4096}
    v_lshrrev_b32 v16, 2, v1
    v_lshlrev_b32 v16, 7, v16
    v_and_b32 v17, 3, v1
    v_lshl_add_u32 v16, v17, 4, v16
    v_add_u32 v20, s{sT}, v16
    v_add_u32 v21, 0x2000, v20
    v_add_u32 v22, 0x4000, v20
    v_add_u32 v23, 0x6000, v20
    """)
    xtaddr = lambda i: (20 + i // 2, (i % 2) * 4096 - 4096)
else:
    a(f"""
    s_lshl_b32 s{sT}, s{sCG}, 14
    s_lshl_b32 s{sT+1}, s{sUNIT}, 10
    s_add_u32 s{sT}, s{sT}, s{sT+1}
    s_add_u32 s{sT}, s{sT}, {WS_XT + 4096}
    v_add_u32 v20, s{sT}, v2
    v_add_u32 v21, 0x2000, v20
    """)
    xtaddr = lambda i: (20 + i // 4, (i % 4) * 2048 - 4096)
vUW, vTOK, vSTA, vYR, vUR, vOA = 24, 25, 26, 27, 28, 29
a(f"""
v_and_b32 v17, 3, v1
v_mul_u32_u24 v17, {USTR}, v17
v_lshrrev_b32 v16, 2, v1
v_lshl_add_u32 v17, v16, 4, v17
s_lshl_b32 s{sT}, s{sUNIT}, 8
s_add_u32 s{sT}, s{sT}, {L_U + 512}
v_add_u32 v{vUW}, s{sT}, v17
s_lshl_b32 s{sT}, s{sUNIT}, 6
v_add_u32 v{vTOK}, s{sT}, v1
v_lshlrev_b32 v{vSTA}, 3, v{vTOK}
v_add_u32 v{vSTA}, {WS_STAT}, v{vSTA}
v_lshlrev_b32 v{vYR}, 2, v{vTOK}
v_lshlrev_b32 v{vUR}, 1, v{vTOK}
v_add_u32 v{vUR}, {L_U + 512}, v{vUR}
s_lshl_b32 s{sT}, s{sCG}, 3
v_lshl_add_u32 v{vOA}, v{vTOK}, 10, s{sT}
v_subrev_u32 v{vFL}, 2, v{vFL}
""")
for q in range(4):
    a(f"s_lshl_b32 s{sT}, s{sJ+q}, 3\n v_add_u32 v{30+q}, s{sT}, v{vSTA}")
lds_spin(18, vMI, M_RT, 1, width=2)
sIDX2 = sT + 10
a(f"v_readfirstlane_b32 s{sIDX2}, v19")
stamp(4)
a(f"s_mov_b32 s{sT+1}, 0")
a.label("L_x1")
for i in range(8):
    r, o = xtaddr(i)
    a(f"global_load_dwordx4 {vr(XT+4*i,4)}, v{r}, {P(sWS)} offset:{o} sc1")
for i in range(8):
    a(f"global_load_dwordx2 {vr(ST+2*i,2)}, v{30+i//2}, {P(sWS)} offset:{(i%2)*1024} sc1")
a(f"s_add_u32 s{sT+1}, s{sT+1}, 1")
for i in range(8):
    for j in range(4): a(f"v_xor_b32 v{XT+4*i+j}, s{sE+j}, v{XT+4*i+j}")
    a(f"ds_write_b128 v{vUW}, {vr(XT+4*i,4)} offset:{512*i}")
    if i == 0:
        a(f"v_or3_b32 v16, v{XT}, v{XT+1}, v{XT+2}\n v_mov_b32 v17, v{XT+3}")
    else:
        a(f"v_or3_b32 v16, v16, v{XT+4*i}, v{XT+4*i+1}\n v_or3_b32 v17, v17, v{XT+4*i+2}, v{XT+4*i+3}")
a(f"""
v_or_b32 v16, v16, v17
v_and_b32 v16, 0x70007, v16
v_cmp_ne_u32 vcc, 0, v16
s_cbranch_vccz L_x2
s_cmp_lt_u32 s{sT+1}, {OPT['POLLMAX']}
s_waitcnt vmcnt(0)
s_cbranch_scc1 L_x1
""")
a.label("L_x2")
a(f"v_mov_b32 v16, 1\n ds_write_b8 v{vFL}, v16 offset:{M_U}")
stamp(5)
a(f"s_mov_b32 s{sT+1}, 0")
a.label("L_x3")
a.wait(vm=0)
for i in range(8):
    a(f"v_xor_b32 v{ST+2*i}, s{sTLO}, v{ST+2*i}\n v_xor_b32 v{ST+2*i+1}, s{sTHI}, v{ST+2*i+1}")
    a(f"v_or3_b32 v16, {'0' if i == 0 else 'v16'}, v{ST+2*i}, v{ST+2*i+1}")
a(f"""
v_and_b32 v16, 0xffff, v16
v_cmp_ne_u32 vcc, 0, v16
s_cbranch_vccz L_x4
s_add_u32 s{sT+1}, s{sT+1}, 1
s_cmp_ge_u32 s{sT+1}, {OPT['POLLMAX']}
s_cbranch_scc1 L_x4
""")
for i in range(8):
    a(f"global_load_dwordx2 {vr(ST+2*i,2)}, v{30+i//2}, {P(sWS)} offset:{(i%2)*1024} sc1")
a("s_branch L_x3")
a.label("L_x4")
a.reset()
INV = 36
sOB = sT + 12
for q in range(4):
    lds_spin(18, vMI, M_T + 4 * q, 0x01010101)
    if q == 0: a(f"ds_read_b128 {vr(INV,4)}, v{vMI} offset:{M_INV}")
    a(f"s_lshl_b32 s{sT}, s{sJ+q}, 1\n v_add_u32 v30, s{sT}, v{vUR}")
    a(f"s_lshl_b32 s{sT}, s{sJ+q}, 10\n s_add_u32 s{sOB}, s{sOUT}, s{sT}\n s_addc_u32 s{sOB+1}, s{sOUT+1}, 0")
    a(f"s_sub_u32 s{sT+11}, s{sIDX2}, s{sJ+q}")
    for h in range(2):
        y, u = 112 + 8 * h, 116 + 8 * h
        for c in range(4):
            a(f"ds_read_b32 v{y+c}, v{vYR} offset:{L_KT + c*KT_SZ + q*1024 + h*512}")
            a(f"ds_read_u16_d16 v{u+c}, v30 offset:{c*USTR + h*256}")
    for h in range(2):
        y, u, i = 112 + 8 * h, 116 + 8 * h, 2 * q + h
        for c in range(4):
            a(f"v_fma_mix_f32 v{u+c}, v{u+c}, v{ST+2*i+1}, v{ST+2*i} op_sel_hi:[1,0,0]")
        if h == 1: a(f"s_sub_u32 s{sT+11}, s{sT+11}, 128")
        a(f"v_cmp_ne_u32 vcc, s{sT+11}, v{vTOK}")
        for c in range(4):
            a(f"v_fma_f32 v{y+c}, v{y+c}, v{INV+c}, v{u+c}")
        a(f"v_cvt_pk_bf16_f32 v{u}, v{y}, v{y+1}\n v_cvt_pk_bf16_f32 v{u+1}, v{y+2}, v{y+3}")
        if h == 1: a(f"s_add_u32 s{sOB}, s{sOB}, 0x20000\n s_addc_u32 s{sOB+1}, s{sOB+1}, 0")
        Lk = a.newlabel("nosave")
        a(f"""
        s_mov_b64 exec, vcc
        global_store_dwordx2 v{vOA}, {vr(u,2)}, {P(sOB)}
        s_not_b64 exec, exec
        s_cbranch_execz {Lk}
        v_mov_b32 v16, 1
        ds_write_b128 v{vMI}, {vr(y,4)} offset:{M_SAVE}
        ds_write_b32 v{vMI}, v16 offset:{M_SV}
        """)
        a.label(Lk)
        a("s_mov_b64 exec, -1")
    stamp(6 + q)
endpgm()

a.raw(".p2align 6")
a.label("L_conv")
a.reset()
a.smem_any = True
PRM, BAND = 4, 12
KW, T2, T3, ACC, DT, BX2, BX3, URING = 36, 104, 128, 144, 160, 176, 208, 224
NRING = 6
vKTA, vWA, vWT2, vWT3, vKWB, vT, vKW, vKW0, vU, vCF, vK0, vDmp = 248, 249, 250, 251, 252, 253, 254, 255, 2, 3, 10, 11
sCH, sLD, sDS, sKWB = sT + 2, sT + 3, sT + 4, sT + 5
a(f"""
s_lshl_b32 s{sCH}, s{sCG}, 2
s_add_u32 s{sCH}, s{sCH}, s{sWAVE}
s_lshl_b32 s{sT+6}, s{sCH}, 8
v_lshl_add_u32 v36, v1, 2, s{sT+6}
s_lshr_b32 s{sT+6}, s{sCH}, 1
s_lshl_b32 s{sT+6}, s{sT+6}, 2
v_lshlrev_b32 v37, 4, v1
v_add_u32 v38, L_tab-L_pc, v37
""")
a.wait(lgkm=0)
if STAMPS: a(f"s_mov_b32 s{sST}, s88")
for i, s_ in enumerate((sARE, sAIM, sBRE, sBIM, sCRE, sCIM)):
    a(f"global_load_dword v{PRM+i}, v36, {P(s_)}")
a(f"s_load_dword s{sLD}, {P(sLDT)}, s{sT+6}\n s_load_dword s{sDS}, {P(sDSK)}, s{sT+6}")
a(f"v_add_u32 v39, 4096, v38")
for i in range(6):
    a(f"global_load_dwordx4 {vr(BAND+4*i,4)}, v{38 if i < 4 else 39}, {P(sPC)} offset:{(i%4)*1024}")
a(f"""
s_lshl_b32 s{sKWB}, s{sWAVE}, 12
s_add_u32 s{sKWB}, s{sKWB}, {L_KW}
v_mov_b32 v40, 0
v_mov_b32 v41, 0
v_mov_b32 v42, 0
v_mov_b32 v43, 0
v_add_u32 v39, s{sKWB}, v37
ds_write_b128 v39, v[40:43]
ds_write_b128 v39, v[40:43] offset:1024
ds_write_b128 v39, v[40:43] offset:2048
ds_write_b128 v39, v[40:43] offset:3072
s_mul_i32 s{sT+6}, s{sWAVE}, {USTR}
s_add_u32 s{sT+6}, s{sT+6}, {L_U}
v_lshl_add_u32 v39, v1, 3, s{sT+6}
ds_write_b64 v39, v[40:41]
v_and_b32 v40, 15, v1
v_lshrrev_b32 v41, 4, v1
v_lshlrev_b32 v{vU}, 5, v40
v_lshl_add_u32 v{vU}, v41, 4, v{vU}
v_add_u32 v{vU}, s{sT+6}, v{vU}
s_mul_i32 s{sT+7}, s{sWAVE}, {KT_SZ}
s_mov_b32 m0, s{sT+7}
v_lshlrev_b32 v{vDmp}, 6, v40
v_lshl_add_u32 v{vDmp}, v41, 4, v{vDmp}
v_add_u32 v{vDmp}, s{sT+7}, v{vDmp}
v_and_b32 v42, 31, v1
v_lshrrev_b32 v43, 5, v1
v_mul_u32_u24 v{vKTA}, {ROWP}, v42
v_lshl_add_u32 v{vKTA}, v43, 4, v{vKTA}
v_add_u32 v{vKTA}, s{sT+7}, v{vKTA}
v_mov_b32 v{vKWB}, s{sKWB}
s_add_u32 s{sT+7}, s{sKWB}, {KW_A + 1072}
v_sub_u32 v{vWA}, s{sT+7}, v37
v_and_b32 v44, 1, v1
v_lshlrev_b32 v45, 8, v44
v_lshrrev_b32 v46, 1, v1
v_lshlrev_b32 v46, 2, v46
v_sub_u32 v45, v45, v46
s_add_u32 s{sT+7}, s{sKWB}, {47*4}
v_add_u32 v{vWT2}, s{sT+7}, v45
v_lshrrev_b32 v45, 1, v42
v_lshl_add_u32 v45, v43, 5, v45
v_lshlrev_b32 v45, 2, v45
v_lshlrev_b32 v46, 1, v44
v_sub_u32 v45, v46, v45
s_add_u32 s{sT+7}, s{sKWB}, {KW_T3 + 47*4}
v_add_u32 v{vWT3}, s{sT+7}, v45
v_lshlrev_b32 v45, 2, v41
v_sub_u32 v46, v45, v40
v_lshlrev_b32 v46, 2, v46
s_add_u32 s{sT+7}, s{sKWB}, 60
v_add_u32 v{vT}, s{sT+7}, v46
v_add_u32 v46, 1, v40
v_lshrrev_b32 v46, 1, v46
v_sub_u32 v45, v45, v46
v_lshlrev_b32 v45, 2, v45
v_mul_u32_u24 v46, {KW_B - KW_A}, v44
v_sub_u32 v45, v45, v46
s_add_u32 s{sT+7}, s{sKWB}, {KW_B + 32}
v_add_u32 v{vKW}, s{sT+7}, v45
v_add_u32 v{vKW0}, 64, v{vKW}
v_lshlrev_b32 v45, 2, v1
v_add_u32 v45, {L_MISC + M_DUMMY}, v45
s_add_u32 s{sT+7}, s{sWAVE}, {L_MISC}
v_mov_b32 v46, s{sT+7}
v_cmp_eq_u32 vcc, 0, v1
""")
if STAMPS: a("s_memrealtime s[92:93]")
a("s_barrier")
if STAMPS: a("s_memrealtime s[94:95]")
a.wait(lgkm=0)
if STAMPS: a(f"s_mov_b32 s{sST+10}, s92\n s_mov_b32 s{sST+11}, s94")
stamp(12)
DTv, K1, K2, ONE = 74, 75, 76, 77
a(f"""
v_cndmask_b32 v{vCF}, v45, v46, vcc
s_lshl_b32 s{sT+7}, s{sLD}, 16
s_and_b32 s{sLD}, s{sLD}, 0xffff0000
s_lshl_b32 s{sT+8}, s{sDS}, 16
s_and_b32 s{sDS}, s{sDS}, 0xffff0000
s_bitcmp1_b32 s{sCH}, 0
s_cselect_b32 s{sLD}, s{sLD}, s{sT+7}
s_cselect_b32 s{sDS}, s{sDS}, s{sT+8}
v_mov_b32 v{DTv}, s{sLD}
v_mul_f32 v{DTv}, 0x3fb8aa3b, v{DTv}
v_exp_f32 v{DTv}, v{DTv}
v_mov_b32 v{ONE}, 0x3c00
v_cvt_pk_bf16_f32 v{DTv}, v{DTv}, v{DTv}
v_lshlrev_b32 v{DTv}, 16, v{DTv}
v_mul_f32 v{K1}, 0x3fb8aa3b, v{DTv}
v_mul_f32 v{K2}, 0x3e22f983, v{DTv}
v_add_f32 v{vK0}, 1.0, s{sDS}
v_and_b32 v78, 0x7fffffff, v{vK0}
v_cndmask_b32 v{vK0}, 0, v{vK0}, vcc
""")
a("s_waitcnt vmcnt(6)")
stamp(1)
Z = [36, 38]; W = [40, 42]; TB, TC = 44, 46
E1, E2, E8, E256, CUR, TMP, SV = 52, 54, 56, 58, 60, 62, 64
CV = [66, 67, 68, 69]; cvi = [0]
def cmul(d, x, y):
    a(f"v_pk_mul_f32 {vr(TMP,2)}, {vr(x,2)}, {vr(y,2)} op_sel:[0,0] op_sel_hi:[1,0]")
    a(f"v_pk_fma_f32 {vr(d,2)}, {vr(x,2)}, {vr(y,2)}, {vr(TMP,2)} op_sel:[1,1,0] op_sel_hi:[0,1,1] neg_lo:[1,0,0]")
def put(rows, x, neg):
    c = CV[cvi[0] % 4]; cvi[0] += 1
    a(f"v_cvt_pk_f16_f32 v{c}, v{x}, {'-' if neg else ''}v{x+1}")
    for r in rows: a(f"ds_write_addtid_b32 v{c} offset:{r*ROWP}")
def unp(d, src, hi):
    a(f"v_and_b32 v{d}, 0xffff0000, v{src}" if hi else f"v_lshlrev_b32 v{d}, 16, v{src}")
for s_ in range(2):
    unp(TB, PRM + 2, s_); unp(TB + 1, PRM + 3, s_); unp(TC, PRM + 4, s_); unp(TC + 1, PRM + 5, s_)
    unp(Z[s_], PRM, s_); unp(Z[s_] + 1, PRM + 1, s_)
    cmul(W[s_], TB, TC)
    a(f"v_pk_mul_f32 {vr(Z[s_],2)}, {vr(Z[s_],2)}, {vr(K1 - 1 + 1,2) if False else 'v[%d:%d]' % (70, 71)}" if False else
      f"v_mul_f32 v{Z[s_]}, v{Z[s_]}, v{K1}\n v_mul_f32 v{Z[s_]+1}, v{Z[s_]+1}, v{K2}")
SUM = 79
a(f"""
v_add_f32 v{SUM}, |v{W[0]}|, |v{W[0]+1}|
v_add_f32 v70, |v{W[1]}|, |v{W[1]+1}|
v_add_f32 v{SUM}, v{SUM}, v70
""")
red = [f"v_add_f32_dpp v{SUM}, v{SUM}, v{SUM} {st} row_mask:0xf bank_mask:0xf bound_ctrl:0" for st in ("row_shr:1", "row_shr:2", "row_shr:4", "row_shr:8")]
red += [f"v_add_f32_dpp v{SUM}, v{SUM}, v{SUM} row_bcast:15 row_mask:0xa bank_mask:0xf", f"v_add_f32_dpp v{SUM}, v{SUM}, v{SUM} row_bcast:31 row_mask:0xc bank_mask:0xf"]
def evalE(s_, extra):
    zr, zi = Z[s_], Z[s_] + 1
    ex = list(extra)
    def X():
        if ex: a(ex.pop(0))
    for (d, lit) in ((E8, "0x41000000"), (E1, None), (E256, "0x43800000")):
        if lit:
            a(f"v_mul_f32 v70, {lit}, v{zi}"); a(f"v_mul_f32 v72, {lit}, v{zr}"); X()
            a("v_fract_f32 v70, v70"); a("v_exp_f32 v72, v72")
        else:
            a(f"v_fract_f32 v70, v{zi}"); a(f"v_exp_f32 v72, v{zr}")
        a(f"v_cos_f32 v{d}, v70"); a(f"v_sin_f32 v{d+1}, v70"); X()
        a(f"v_pk_mul_f32 {vr(d,2)}, {vr(d,2)}, v[72:73] op_sel_hi:[1,0]"); X()
    while ex: X()
FR = 160
def ktread(kind):
    for k in range(8):
        base = FR + 4 * k + (32 if kind == "B" else 0)
        a(f"ds_read_b128 {vr(base,4)}, v{vKTA} offset:{32*k + (24*ROWP if kind == 'B' else 0)}")
def kmfma(k, first):
    a(f"v_mfma_f32_32x32x16_f16 {vr(ACC,16)}, {vr(FR+4*k,4)}, {vr(FR+32+4*k,4)}, {'0' if first else vr(ACC,16)}")
def qrows(hook):
    a(f"ds_write_addtid_b32 v{ONE} offset:{24*ROWP}")
    put([25], E8, False)
    for j in range(2, 32):
        cmul(CUR, E8 if j == 2 else CUR, E8); put([24 + j], CUR, False); hook(j)
def prows(s_):
    w = W[s_]
    put([0], w, True)
    for e in range(1, 8):
        cmul(CUR, w if e == 1 else CUR, E1); put([e if e < 4 else e + 4], CUR, True)
    cmul(E2, E1, E1)
    cmul(CUR, w, E256); put([4, 5], CUR, True)
    cmul(CUR, CUR, E2); put([6], CUR, True)
    cmul(SV, CUR, E2); put([7, 12, 13], SV, True)
    cmul(CUR, SV, E2); put([14], CUR, True)
    cmul(CUR, CUR, E2); put([15], CUR, True)
    cmul(SV, SV, E256); put([16], SV, True)
    cmul(CUR, CUR, E256); put([17], CUR, True)
    cmul(SV, SV, E256); put([20], SV, True)
    cmul(CUR, CUR, E256); put([21], CUR, True)
    for r in (18, 19, 22, 23):
        cmul(CUR, CUR, E256); put([r], CUR, True)
evalE(0, red)
sSUM = sT + 7
a(f"""
v_readlane_b32 s{sSUM}, v{SUM}, 63
v_fma_f32 v70, v{DTv}, s{sSUM}, v78
v_frexp_exp_i32_f32 v70, v70
v_sub_u32 v71, 14, v70
v_subrev_u32 v70, 14, v70
v_ldexp_f32 v72, v{DTv}, v71
v_ldexp_f32 v{vK0}, v{vK0}, v71
v_ldexp_f32 v70, 1.0, v70
s_lshl_b32 s{sT+8}, s{sWAVE}, 2
s_add_u32 s{sT+8}, s{sT+8}, {L_MISC + M_INV}
v_mov_b32 v71, s{sT+8}
v_pk_mul_f32 {vr(W[0],2)}, {vr(W[0],2)}, v[72:73] op_sel_hi:[1,0]
v_pk_mul_f32 {vr(W[1],2)}, {vr(W[1],2)}, v[72:73] op_sel_hi:[1,0]
s_mov_b64 exec, 1
ds_write_b32 v71, v70
s_mov_b64 exec, -1
""")
qrows(lambda j: None); prows(0)
ktread("A"); ktread("B")
evalE(1, [])
qrows(lambda j: kmfma((j - 2) // 3, j == 2) if (j - 2) % 3 == 0 and j < 26 else None)
ktread("B")
prows(1)
ktread("A")
for k in range(8): kmfma(k, False)
stamp(2)
Q = 60
a(f"""
v_add_f32 v{ACC}, v{ACC}, v{vK0}
v_mov_b32_dpp v36, v{ACC+7} wave_shr:1 row_mask:0xf bank_mask:0xf bound_ctrl:0
v_cvt_pk_f16_f32 v40, v{ACC+7}, v{ACC+6}
v_cvt_pk_f16_f32 v41, v{ACC+5}, v{ACC+4}
v_cvt_pk_f16_f32 v42, v{ACC+3}, v{ACC+2}
v_cvt_pk_f16_f32 v43, v{ACC+1}, v{ACC}
ds_write_b128 v{vWA}, v[40:43]
v_cvt_pk_f16_f32 v44, v{ACC+6}, v{ACC+5}
v_cvt_pk_f16_f32 v45, v{ACC+4}, v{ACC+3}
v_cvt_pk_f16_f32 v46, v{ACC+2}, v{ACC+1}
v_cvt_pk_f16_f32 v47, v{ACC}, v36
ds_write_b128 v{vWA}, v[44:47] offset:{KW_B - KW_A + 4}
v_cvt_pk_f16_f32 v48, v{ACC+7}, v{ACC+7}
v_cvt_pk_f16_f32 v49, 0, v{ACC+7}
v_cvt_pk_f16_f32 v50, v{ACC+8}, v{ACC+9}
v_cvt_pk_f16_f32 v51, v{ACC+10}, v{ACC+11}
v_cvt_pk_f16_f32 v52, v{ACC+9}, v{ACC+9}
s_mov_b32 exec_lo, 0
s_mov_b32 exec_hi, 0x80000000
ds_write_b32 v{vKWB}, v49 offset:{KW_A + 56}
ds_write_b32 v{vKWB}, v48 offset:{KW_A + 60}
ds_write_b32 v{vKWB}, v48 offset:{KW_B + 60}
ds_write_b32 v{vKWB}, v48 offset:{KW_B + 64}
s_mov_b64 exec, -1
ds_write_b32 v{vWT2}, v50
ds_write_b16 v{vWT3}, v51 offset:64
ds_write_b16_d16_hi v{vWT3}, v51
v_readlane_b32 s{sT+8}, v52, 63
""")
for mu in list(range(16, -1, -1)):
    base, o = (vKW0, 240) if mu == 0 else (vKW, 256 - 16 * mu)
    a(f"ds_read2_b32 {vr(KW+4*mu,2)}, v{base} offset0:{o} offset1:{o+1}")
    a(f"ds_read2_b32 {vr(KW+4*mu+2,2)}, v{base} offset0:{o+2} offset1:{o+3}")
    if mu == 16:
        for i in range(4): a(f"v_and_b32 v{BAND+20+i}, s{sT+8}, v{BAND+20+i}")
for ab in range(2):
    for d in range(3):
        o = 64 * ab + 16 * d
        a(f"ds_read2_b32 {vr(T2+12*ab+4*d,2)}, v{vT} offset0:{o} offset1:{o+1}")
        a(f"ds_read2_b32 {vr(T2+12*ab+4*d+2,2)}, v{vT} offset0:{o+2} offset1:{o+3}")
for d in range(4):
    o = 128 + 48 - 16 * d
    a(f"ds_read2_b32 {vr(T3+4*d,2)}, v{vT} offset0:{o} offset1:{o+1}")
    a(f"ds_read2_b32 {vr(T3+4*d+2,2)}, v{vT} offset0:{o+2} offset1:{o+3}")
a(f"v_mov_b32 v{vK0}, {L_MISC}\n v_mov_b32 v{vKWB}, 1")
stamp(3)
lds_spin(ACC, vK0, M_U, 0x0101)
stamp(4)
a(f"s_cmp_eq_u32 s{sHS}, 0\n s_cbranch_scc0 L_convY")

B3A, B5, B3B, B7, B9, SPK = [BAND + 4 * i for i in range(6)]
def conv_stream(tiles, order):
    acc = {J: ACC + 4 * q for q, J in enumerate(tiles)}
    slot = {J: q for q, J in enumerate(tiles)}
    started = set()
    q2 = sorted({m[1] for m in order if m[0] == "box" and m[2] in "ab"})
    frag = {}
    for i, Qb in enumerate(q2):
        frag[(Qb, "a")] = BX2 + 8 * i; frag[(Qb, "b")] = BX2 + 8 * i + 4
    for Qb in range(4): frag[(Qb, "g")] = BX3 + 4 * Qb
    M = []
    for m in order:
        if m[0] == "near": M.append(dict(u=("U", 8 * m[1] - m[2]), J=m[1], A=KW + 4 * m[2]))
        elif m[0] == "sp": M.append(dict(u=("U", 8 * m[1] - 32), J=m[1], A=SPK))
        elif m[0] == "box":
            Qb, t = m[1], m[2]
            lo = {"a": (("U", 8 * Qb), B3A), "b": (("U", 8 * Qb), B3B), "g": (("U", 8 * Qb), B7)}[t]
            hi = {"a": (("U", 8 * Qb), B5), "b": (("W", Qb), B5), "g": (("W", Qb), B9)}[t]
            M.append(dict(u=lo[0], band=lo[1], half=0, f=(Qb, t))); M.append(dict(u=hi[0], band=hi[1], half=1, f=(Qb, t)))
        elif m[0] == "far":
            J, Qb, t = m[1], m[2], m[3]
            Bq = T3 + 4 * (J - 4 - Qb) if t == "g" else T2 + (12 if t == "b" else 0) + 4 * (Qb - (J - 4))
            M.append(dict(J=J, fin=(Qb, t), B=Bq))
    reads = []; cur = {}
    for i, m in enumerate(M):
        if "u" in m:
            k = m["u"]
            if k in cur and i - reads[cur[k]]["last"] <= 24: reads[cur[k]]["last"] = i
            else: cur[k] = len(reads); reads.append(dict(key=k, first=i, last=i))
            m["rd"] = cur[k]
    last_of = {}
    for i, m in enumerate(M):
        if "J" in m: last_of[m["J"]] = i
    free = list(range(NRING)); nextr = 0; pend_cvt = []; pend_dump = []; dtfree = [0, 1]; dtof = {}; done_f = set()
    def issue_read():
        nonlocal nextr
        r = reads[nextr]; r["buf"] = URING + 4 * free.pop(0); nextr += 1
        off = 480 + 64 * r["key"][1] if r["key"][0] == "U" else 464 + 512 * r["key"][1]
        a(f"ds_read_b128 {vr(r['buf'],4)}, v{vU} offset:{off}")
    def do_cvt():
        t, f, j = pend_cvt.pop(0); d = DT + 8 * dtof[f]
        a(f"v_cvt_pk_f16_f32 v{frag[f]+j}, v{d+j}, v{d+4+j}")
        if j == 3: dtfree.append(dtof[f]); done_f.add(f)
    def do_dump():
        t, J = pend_dump.pop(0)
        a(f"ds_write_b128 v{vDmp}, {vr(acc[J],4)} offset:{1024*slot[J]}")
        a(f"ds_write_b8 v{vCF}, v{vKWB} offset:{M_T + 4*slot[J]}")
        stamp(5 + slot[J])
    while free and nextr < len(reads): issue_read()
    for i, m in enumerate(M):
        fill = 0
        if pend_dump and i - pend_dump[0][0] >= 4: do_dump(); fill += 2
        while fill < 2 and pend_cvt and i - pend_cvt[0][0] >= 4: do_cvt(); fill += 1
        while fill < 2 and free and nextr < len(reads): issue_read(); fill += 1
        if "fin" in m:
            while m["fin"] not in done_f: do_cvt()
        if "band" in m and m["half"] == 0:
            while not dtfree: do_cvt()
            dtof[m["f"]] = dtfree.pop(0)
        if "rd" in m:
            while m["rd"] >= nextr:
                assert free, "ring exhausted"
                issue_read()
        if "band" in m:
            d = DT + 8 * dtof[m["f"]] + 4 * m["half"]
            a(f"v_mfma_f32_16x16x32_f16 {vr(d,4)}, {vr(reads[m['rd']]['buf'],4)}, {vr(m['band'],4)}, 0")
            if m["half"] == 1:
                for j in range(4): pend_cvt.append((i, m["f"], j))
        else:
            J = m["J"]; C = vr(acc[J], 4) if J in started else "0"; started.add(J)
            if "fin" in m: a(f"v_mfma_f32_16x16x32_f16 {vr(acc[J],4)}, {vr(frag[m['fin']],4)}, {vr(m['B'],4)}, {C}")
            else: a(f"v_mfma_f32_16x16x32_f16 {vr(acc[J],4)}, {vr(m['A'],4)}, {vr(reads[m['rd']]['buf'],4)}, {C}")
            if last_of[J] == i: pend_dump.append((i, J))
        if "rd" in m and reads[m["rd"]]["last"] == i: free.append((reads[m["rd"]]["buf"] - URING) // 4)
    while pend_dump: do_dump()
    return len(M), len(reads)

def near_at(n, tiles):
    return [("near", J, 8 * J - n) for J in tiles if 0 <= 8 * J - n <= min(16, 8 * J + 7)]
oX = []
extra = {0: [("box", 0, "g")], 8: [("box", 1, "g")]}
for n in range(-7, 9): oX += near_at(n, [0, 1]) + extra.get(n, [])
oX += [("box", 2, "a"), ("sp", 6), ("box", 2, "b"), ("far", 6, 0, "g"), ("far", 7, 0, "g"), ("box", 2, "g"), ("far", 6, 1, "g"), ("far", 7, 1, "g"),
       ("box", 3, "a"), ("sp", 7), ("box", 3, "b"), ("far", 6, 2, "a"), ("far", 6, 2, "b"), ("box", 3, "g")]
extra = {32: [("box", 4, "a"), ("far", 6, 2, "g"), ("far", 7, 2, "g")], 33: [("far", 6, 3, "a"), ("far", 7, 3, "a")], 34: [("far", 6, 3, "b"), ("far", 7, 3, "b")],
         35: [("far", 7, 3, "g")], 36: [("far", 6, 4, "a")], 37: [("far", 7, 4, "a")],
         40: [("box", 5, "a"), ("box", 5, "b")], 41: [("far", 6, 4, "b")], 42: [("far", 7, 4, "b")], 49: [("far", 7, 5, "a")], 50: [("far", 7, 5, "b")]}
for n in range(32, 57):
    oX += near_at(n, [6, 7]) + extra.get(n, [])
    if n == 32: oX += [("box", 4, "b")]
oY = []
extra = {0: [("box", 0, "a"), ("sp", 4), ("box", 0, "b")], 1: [], 2: [], 3: [("far", 2, 0, "a"), ("far", 3, 0, "a"), ("far", 4, 0, "a")],
         4: [("far", 2, 0, "b"), ("far", 3, 0, "b"), ("far", 4, 0, "b")], 5: [("box", 0, "g")],
         8: [("box", 1, "a"), ("sp", 5), ("box", 1, "b")], 9: [("far", 4, 0, "g")], 10: [("far", 5, 0, "g"), ("box", 1, "g")],
         12: [("far", 3, 1, "a")], 13: [("far", 3, 1, "b")], 14: [("far", 4, 1, "a")],
         16: [("box", 2, "a"), ("box", 2, "b")], 17: [("far", 4, 1, "b")], 18: [("far", 5, 1, "a")], 19: [("far", 5, 1, "b")], 20: [("far", 5, 1, "g")],
         21: [("far", 4, 2, "a")], 22: [("far", 4, 2, "b")],
         24: [("box", 3, "a"), ("box", 3, "b")], 28: [("far", 5, 2, "a")], 29: [("far", 5, 2, "b")], 33: [("far", 5, 3, "a")], 34: [("far", 5, 3, "b")]}
for n in range(0, 41): oY += near_at(n, [2, 3, 4, 5]) + extra.get(n, [])
def check(order, tiles):
    want = set()
    for J in tiles:
        for mu in range(min(16, 8 * J + 7) + 1): want.add(("near", J, mu))
        if J >= 4: want.add(("sp", J))
        for d in range(3):
            if J - 4 + d >= 0: want |= {("far", J, J - 4 + d, "a"), ("far", J, J - 4 + d, "b")}
        for d in range(4):
            if J - 4 - d >= 0: want.add(("far", J, J - 4 - d, "g"))
    got = [m for m in order if m[0] != "box"]
    assert len(got) == len(set(got)) and set(got) == want, (want ^ set(got))
    seen = set()
    for m in order:
        if m[0] == "box": seen.add((m[1], m[2]))
        if m[0] == "far": assert (m[2], m[3]) in seen, m
check(oX, [0, 1, 6, 7]); check(oY, [2, 3, 4, 5])
sv = (list(a.vmq), list(a.dsq), list(a.hist))
nx = conv_stream([0, 1, 6, 7], oX)
endpgm(True)
a.raw(".p2align 3")
a.label("L_convY")
a.vmq, a.dsq, a.hist = sv
ny = conv_stream([2, 3, 4, 5], oY)
endpgm(True)
a.label("L_exit")
a("s_endpgm")
a.raw(".p2align 7")
a.label("L_tab")
for (start, w, one) in ((11, 3, 0x3c00), (6, 5, 0x3c00), (3, 3, 0x3c00), (5, 7, 0x3c00), (4, 9, 0x3c00), (12, 2, 0xffff)):
    for l in range(64):
        r, s_ = l & 15, l >> 4
        e = [one if r + start <= 8 * s_ + i < r + start + w else 0 for i in range(8)]
        a.raw("    .long " + ", ".join(hex(e[2 * j] | e[2 * j + 1] << 16) for j in range(4)))
a.label("L_end")
a.raw(f""".section .rodata,"a"
.p2align 6
.amdhsa_kernel {NAME}
  .amdhsa_next_free_vgpr 256
  .amdhsa_next_free_sgpr 100
  .amdhsa_accum_offset 256
  .amdhsa_group_segment_fixed_size 0
  .amdhsa_kernarg_size 136
  .amdhsa_user_sgpr_count 2
  .amdhsa_user_sgpr_kernarg_segment_ptr 1
  .amdhsa_system_sgpr_workgroup_id_x 1
  .amdhsa_float_denorm_mode_32 3
.end_amdhsa_kernel""")
open(sys.argv[1], "w").write(a.text())
print("LDS", LDS_SIZE, "nops", a.nops, "X mfma/reads", nx, "Y", ny, file=sys.stderr)
```

```python
import sys
from asmlib import Asm, vr, sr

NAME = "parallel_sum__ssm_conv_s4__moe_arch_mod__prompt_kernel"
OPT = dict(STAMPS=0, PAD=0, POLLMAX=200000, LNHS=1, POLLDLY=8, IDLEDLY=30, XTDLY=6, H2A=14, H2B=34, WDLY=0, KB=6, LAZY=1, ACK=0, NT=1, NTC=0, NTX=0, PFD=0, ROT=0)
for x in sys.argv[2:]:
    k, v = x.split("="); assert k in OPT, k; OPT[k] = int(v, 0)
STAMPS = OPT["STAMPS"]
NT = ' nt' if OPT['NT'] else ''
NTC = ' nt' if OPT['NTC'] else ''
NTX = ' nt' if OPT['NTX'] else ''

PSTR = 2048 + 128
WS_ROUT, WS_STAT, WS_PART, WS_XT, WS_STAMP = 0x1000, 0x2000, 0x10000, 0x100000, 0x400000
ROWP = 272; KT_SZ = 56 * ROWP
L_KT = 0
KW_SZ = 7168; KW_T, KW_T1, KW_N, KW_NS = 0, 896 + 4, 1792, 1216
L_KW = L_KT + 4 * KT_SZ
L_U = L_KW + 4 * KW_SZ; USTR = 4640
L_LNI = L_U + 4 * USTR; LNP = 1056
L_WG = L_LNI
L_WU = L_WG + 16384 + 128
L_MISC = L_WU + 16384
M_CNT, M_KEY, M_RT, M_W, M_U, M_ARR, M_T, M_SV, M_SAVE, M_INV, M_DUMMY = 0, 4, 8, 16, 20, 24, 32, 48, 64, 80, 128
LDS_SIZE = L_MISC + M_DUMMY + 256 + 128
assert all(x % 16 == 0 for x in (L_MISC, L_U, L_LNI, L_KW, L_WU)) and LDS_SIZE <= 163840

sX, sARE, sAIM, sBRE, sBIM, sCRE, sCIM, sLDT, sDSK, sBX, sWR, sWG, sWU, sWD, sOUT, sDBG, sWS = [4 + 2 * i for i in range(17)]
sTAG, sWAVE, sCG, sHS, sFFN, sUNIT = 38, 39, 40, 41, 42, 43
sPC = 44
sTLO, sTHI, sPU, sKEY, sIDX = 46, 47, 48, 49, 50
sT = 52
sST = 72
P = lambda r: sr(r, 2)
DPP4 = ("row_shr:1", "row_shr:2", "row_shr:4", "row_shr:8")

a = Asm()
def stamp(k):
    if STAMPS:
        a("s_memrealtime s[88:89]"); a.wait(lgkm=0); a(f"s_mov_b32 s{sST+k}, s88")
def sleep(n):
    while n > 0: a(f"s_sleep {min(n,127)}"); n -= 127
def endpgm(conv=False):
    if conv and OPT["PAD"]:
        L = a.newlabel("pad"); a.wait(lgkm=0); a.label(L)
        a("s_memrealtime s[88:89]"); a.wait(lgkm=0)
        a(f"s_sub_u32 s88, s88, s90\n s_cmp_lt_u32 s88, {OPT['PAD']}\n s_sleep 2\n s_cbranch_scc1 {L}")
    if STAMPS: a("s_branch L_flush")
    else: a("s_endpgm")
def lds_spin(vtmp, vaddr, off, want, width=1):
    L, Dn = a.newlabel("spin"), a.newlabel("spun")
    a.wait(lgkm=0)
    a(f"s_mov_b32 s{sT+1}, 0")
    a.label(L)
    a(f"ds_read_b{32*width} {vr(vtmp, width)}, v{vaddr} offset:{off}")
    a.wait(lgkm=0)
    a(f"""v_readfirstlane_b32 s{sT}, v{vtmp}
    s_add_u32 s{sT+1}, s{sT+1}, 1
    s_cmp_eq_u32 s{sT}, {want}
    s_cbranch_scc1 {Dn}
    s_cmp_lt_u32 s{sT+1}, {OPT['POLLMAX']*16}
    s_sleep 1
    s_cbranch_scc1 {L}""")
    a.label(Dn)

a.raw(f"""; One persistent launch: 256 workgroups (one per CU) x 8 waves, 4 channels x 1024 outputs each.
; waves 4-7: layernorm + router (half of the workgroups) or a slice of the expert FFN (other half), hand-offs
; @launch grid=(256,1,1) block=(512,1,1) lds={LDS_SIZE}
.amdgcn_target "amdgcn-amd-amdhsa--gfx950"
.text
.globl {NAME}
.p2align 8
.type {NAME},@function
{NAME}:""")
a(f"""
s_cmp_ge_u32 s2, 0x100
s_cbranch_scc1 L_exit
s_load_dwordx16 s[4:19], s[0:1], 0
s_load_dwordx16 s[20:35], s[0:1], 64
s_load_dwordx2 s[36:37], s[0:1], 128
""")
if OPT["PAD"]: a("s_memrealtime s[90:91]")
if STAMPS: a("s_memrealtime s[88:89]")
a(f"s_getpc_b64 {P(sPC)}")
a.label("L_pc")
a(f"""
v_lshrrev_b32 v2, 6, v0
s_and_b32 s{sT+1}, s2, 0xf8
v_add_lshl_u32 v3, v2, s{sT+1}, 7
v_readfirstlane_b32 s{sWAVE}, v2
v_min_u32 v3, L_end-L_pc-4, v3
global_load_dword v255, v3, {P(sPC)}{NTC}
v_and_b32 v1, 63, v0
s_and_b32 s{sT}, s2, 7
s_lshl_b32 s{sCG}, s{sT}, 4
s_bfe_u32 s{sT+2}, s2, 0x40003
s_add_u32 s{sCG}, s{sCG}, s{sT+2}
s_lshr_b32 s{sHS}, s2, 7
v_lshlrev_b32 v2, 4, v1
""")
if STAMPS:
    for k in range(16): a(f"s_mov_b32 s{sST+k}, 0")
a(f"""
s_cmp_lt_u32 s{sWAVE}, 4
s_cbranch_scc1 L_conv
""")

XR, WR = 4, 20
WD, WDP, WF = 64, 96, 128
vFL, vMI = 60, 61
a(f"""
s_setprio 3
s_sub_u32 s{sUNIT}, s{sWAVE}, 4
s_lshl_b32 s{sT+3}, s{sCG}, 14
s_lshl_b32 s{sT+4}, s{sUNIT}, 12
s_add_u32 s{sT+3}, s{sT+3}, s{sT+4}
v_add_u32 v3, s{sT+3}, v2
v_mov_b32 v{vMI}, {L_MISC}
s_cmp_lg_u32 s{sUNIT}, 3
s_cbranch_scc1 L_noinit
v_lshl_add_u32 v16, v1, 2, v{vMI}
v_mov_b32 v17, 0
ds_write_b32 v16, v17
""")
a.label("L_noinit")
a.wait(lgkm=0)
if STAMPS: a(f"s_mov_b32 s{sST}, s88")
a(f"""
s_load_dword s{sTAG}, {P(sWS)}, 0
s_cmp_lg_u32 s{sHS}, {OPT['LNHS']}
s_cbranch_scc1 L_noln
""")
for r in range(4): a(f"global_load_dwordx4 {vr(XR+4*r,4)}, v3, {P(sX)} offset:{1024*r}{NT}")
a(f"global_load_dwordx4 {vr(WR,4)}, v2, {P(sWR)}{NT}")
if STAMPS: a("s_memrealtime s[96:97]")
def flagaddr():
    a(f"""
    v_lshlrev_b32 v24, 2, v1
    v_add_u32 v24, {L_MISC+M_DUMMY}, v24
    v_add_u32 v{vFL}, s{sUNIT}, v{vMI}
    v_cmp_eq_u32 vcc, 0, v1
    s_mov_b32 s{sFFN}, 0
    s_nop 0
    v_cndmask_b32 v{vFL}, v24, v{vFL}, vcc
    """)
def tagcalc():
    a(f"""
    s_add_u32 s{sTAG}, s{sTAG}, 1
    s_and_b32 s{sTLO}, s{sTAG}, 0xffff
    s_lshr_b32 s{sTHI}, s{sTAG}, 16
    """)
flagaddr()
vTK, vC9, vMK, vSA, vIW, vTR, vXS, vRA = 52, 53, 54, 55, 56, 57, 58, 59
a(f"""
s_lshl_b32 s{sT+5}, s{sCG}, 4
s_lshl_b32 s{sT+6}, s{sUNIT}, 2
s_add_u32 s{sT+5}, s{sT+5}, s{sT+6}
v_lshrrev_b32 v25, 4, v1
v_add_u32 v{vSA}, s{sT+5}, v25
v_sub_u32 v{vTK}, 2047, v{vSA}
v_lshlrev_b32 v{vSA}, 3, v{vSA}
v_add_u32 v{vSA}, {WS_STAT}, v{vSA}
v_mov_b32 v{vC9}, 0x3b000000
v_mov_b32 v{vMK}, 0xfff8fff8
s_mul_i32 s{sT+6}, s{sUNIT}, {4*LNP}
s_lshr_b32 s{sT+7}, s{sUNIT}, 1
s_lshl_b32 s{sT+7}, s{sT+7}, 7
s_add_u32 s{sT+6}, s{sT+6}, s{sT+7}
s_add_u32 s{sT+6}, s{sT+6}, {L_LNI}
v_add_u32 v{vIW}, s{sT+6}, v2
v_bfe_u32 v24, v1, 2, 2
v_mul_u32_u24 v24, {LNP}, v24
v_lshl_add_u32 v24, v25, 4, v24
v_and_b32 v26, 1, v1
v_mul_u32_u24 v26, {8*LNP+128}, v26
v_bfe_u32 v27, v1, 1, 1
v_lshl_add_u32 v26, v27, 3, v26
s_lshl_b32 s{sT+6}, s{sUNIT}, 8
s_add_u32 s{sT+6}, s{sT+6}, {L_LNI}
v_add3_u32 v{vTR}, v24, v26, s{sT+6}
v_lshrrev_b32 v24, 3, v1
v_lshlrev_b32 v24, 14, v24
v_and_b32 v26, 7, v1
v_lshl_add_u32 v24, v26, 4, v24
s_lshl_b32 s{sT+6}, s{sUNIT}, 19
s_lshl_b32 s{sT+7}, s{sCG}, 7
s_add_u32 s{sT+6}, s{sT+6}, s{sT+7}
s_add_u32 s{sT+6}, s{sT+6}, {WS_XT}
v_add_u32 v{vXS}, s{sT+6}, v24
s_lshl_b32 s{sT+6}, s2, 3
s_add_u32 s{sT+6}, s{sT+6}, {WS_ROUT}
v_mov_b32 v{vRA}, s{sT+6}
""")
sC9, sC1, sTG, sRS = sT + 2, sT + 3, sT + 4, sT + 8
a(f"s_mov_b32 s{sC9}, 0x3b003b00\n s_mov_b32 s{sC1}, 0x3f803f80")
if STAMPS: a("s_memrealtime s[92:93]")
a("s_barrier")
a.wait(lgkm=0)
if STAMPS: a(f"s_mov_b32 s{sST+10}, s92\n s_mov_b32 s{sST+14}, s96")
tagcalc()
a(f"s_and_b32 s{sT}, s{sUNIT}, 1\n s_mul_i32 s{sT}, s{sT}, 12\n s_lshr_b32 s{sT}, s{sTAG}, s{sT}")
for r in range(4):
    a(f"s_bfe_u32 s{sTG+r}, s{sT}, {0x30000+3*r}\n s_mul_i32 s{sTG+r}, s{sTG+r}, 0x10001")
a.wait(vm=0)
stamp(1)
S = lambda v, r: 24 + 4 * v + r
Wv, W2 = 36, 37
for i in range(4):
    z = lambda r: "0" if i == 0 else f"v{r}"
    for r in range(4):
        x = XR + 4 * r + i
        a(f"""
        v_dot2_f32_bf16 v{S(0,r)}, v{x}, s{sC9}, {z(S(0,r))}
        v_dot2_f32_bf16 v{S(1,r)}, v{x}, v{x}, {z(S(1,r))}
        v_dot2_f32_bf16 v{S(2,r)}, v{x}, v{WR+i}, {z(S(2,r))}
        """)
        if r == 0: a(f"v_dot2_f32_bf16 v{Wv}, v{WR+i}, s{sC1}, {z(Wv)}")
a(f"v_mov_b32 v{W2}, v{Wv}")
for v in range(3):
    a(f"v_permlane32_swap_b32 v{S(v,0)}, v{S(v,2)}\n v_permlane32_swap_b32 v{S(v,1)}, v{S(v,3)}")
a(f"v_permlane32_swap_b32 v{Wv}, v{W2}")
for v in range(3):
    a(f"v_add_f32 v{S(v,0)}, v{S(v,0)}, v{S(v,2)}\n v_add_f32 v{S(v,1)}, v{S(v,1)}, v{S(v,3)}")
    if v == 0: a(f"v_add_f32 v{Wv}, v{Wv}, v{W2}")
    if v == 1: a(f"v_mov_b32 v{W2}, v{Wv}")
for v in range(3): a(f"v_permlane16_swap_b32 v{S(v,0)}, v{S(v,1)}")
a(f"v_permlane16_swap_b32 v{Wv}, v{W2}")
for v in range(3): a(f"v_add_f32 v{S(v,0)}, v{S(v,0)}, v{S(v,1)}")
a(f"v_add_f32 v{Wv}, v{Wv}, v{W2}")
A1, A2, A3 = S(0, 0), S(1, 0), S(2, 0)
for st in DPP4:
    for r in (A1, A2, A3, Wv):
        a(f"v_add_f32_dpp v{r}, v{r}, v{r} {st} row_mask:0xf bank_mask:0xf bound_ctrl:0")
MB, SB, RS, NM, T0, T1, KEY, T2_ = 38, 39, 40, 41, 42, 43, 44, 45
a(f"""
v_mul_f32 v{T0}, v{A2}, v{vC9}
v_fma_f32 v{T0}, -v{A1}, v{A1}, v{T0}
v_max_f32 v{T0}, 0, v{T0}
v_cvt_pk_bf16_f32 v{T1}, v{A1}, v{T0}
v_and_b32 v{T0}, 0xffff0000, v{T1}
v_lshlrev_b32 v{MB}, 16, v{T1}
v_add_f32 v{T0}, 0x3727c5ac, v{T0}
v_cvt_pk_bf16_f32 v{T0}, v{T0}, v{T0}
v_lshlrev_b32 v{T0}, 16, v{T0}
v_sqrt_f32 v{T0}, v{T0}
v_fma_f32 v{KEY}, -v{MB}, v{Wv}, v{A3}
v_cvt_pk_bf16_f32 v{T0}, v{T0}, v{T0}
v_lshlrev_b32 v{SB}, 16, v{T0}
v_rcp_f32 v{RS}, v{SB}
v_or_b32 v{T0}, s{sTLO}, v{MB}
v_mul_f32 v{KEY}, v{KEY}, v{RS}
v_or_b32 v{T1}, s{sTHI}, v{SB}
v_ashrrev_i32 v{T2_}, 31, v{KEY}
v_or_b32 v{T2_}, 0x80000000, v{T2_}
v_xor_b32 v{KEY}, v{KEY}, v{T2_}
v_and_b32 v{KEY}, 0xfffff800, v{KEY}
v_or_b32 v{KEY}, v{KEY}, v{vTK}
v_mov_b32 v46, 1
s_mov_b32 exec_lo, 0x80008000
s_mov_b32 exec_hi, 0x80008000
ds_max_u32 v{vMI}, v{KEY} offset:{M_KEY}
s_mov_b64 exec, 0x8000
ds_add_rtn_u32 v47, v{vMI}, v46 offset:{M_ARR}
s_mov_b32 exec_lo, 0x80008000
s_mov_b32 exec_hi, 0x80008000
global_store_dwordx2 v{vSA}, {vr(T0,2)}, {P(sWS)} sc1
s_mov_b64 exec, -1
v_mul_f32 v{NM}, -v{MB}, v{RS}
""")
for r in range(4):
    a(f"v_readlane_b32 s{sRS+2*r}, v{RS}, {16*r+15}")
for r in range(4):
    a(f"v_readlane_b32 s{sRS+2*r+1}, v{NM}, {16*r+15}")
UX = 64
def xnrow(r, part):
    for i in range(4):
        x, u = XR + 4 * r + i, UX + 8 * r + 2 * i
        if part == 0: a(f"v_lshlrev_b32 v{u}, 16, v{x}\n v_and_b32 v{u+1}, 0xffff0000, v{x}")
        if part == 1: a(f"v_pk_fma_f32 {vr(u,2)}, {vr(u,2)}, {P(sRS+2*r)}, {P(sRS+2*r)} op_sel:[0,0,1] op_sel_hi:[1,0,1]")
        if part == 2: a(f"v_cvt_pk_f16_f32 v{x}, v{u}, v{u+1}")
        if part == 3: a(f"v_add_u32 v{x}, 0x40004, v{x}")
        if part == 4: a(f"v_and_or_b32 v{x}, v{x}, v{vMK}, s{sTG+r}")
xnrow(0, 0)
a(f"v_readlane_b32 s{sT}, v47, 15\n s_cmp_lg_u32 s{sT}, 3\n s_cbranch_scc1 L_norout")
a(f"""
ds_read_b32 v48, v{vMI} offset:{M_KEY}
v_mov_b32 v49, s{sTAG}
s_mov_b64 exec, 1
""")
a(f"global_store_dwordx2 v{vRA}, v[48:49], {P(sWS)} sc1\n s_mov_b64 exec, -1")
a.label("L_norout")
stamp(13)
for r in range(4):
    for part in range(1 if r == 0 else 0, 5): xnrow(r, part)
for r in range(4): a(f"ds_write_b128 v{vIW}, {vr(XR+4*r,4)} offset:{r*LNP}")
a(f"ds_write_b8 v{vFL}, v46 offset:{M_CNT}")
a(f"v_add_u32 v24, 0x20000, v{vXS}\n v_add_u32 v25, 0x40000, v{vXS}\n v_add_u32 v26, 0x60000, v{vXS}")
stamp(2)
lds_spin(28, vMI, M_CNT, 0x01010101)
for b in range(4):
    a(f"ds_read_b64_tr_b16 {vr(XR+4*b,2)}, v{vTR} offset:{64*b}")
    a(f"ds_read_b64_tr_b16 {vr(XR+4*b+2,2)}, v{vTR} offset:{64*b+4*LNP}")
for b in range(4):
    a(f"global_store_dwordx4 v{vXS if b == 0 else 23+b}, {vr(XR+4*b,4)}, {P(sWS)} sc1")
stamp(3)
if OPT["ACK"]: a.wait(vm=0); stamp(12)
a(f"s_cmp_ge_u32 s{sUNIT}, 2\n s_cbranch_scc1 L_xt")
sleep(OPT["POLLDLY"])
a(f"s_cmp_eq_u32 s{sUNIT}, 0\n s_cbranch_scc1 L_rpoll")
endpgm()

a.label("L_noln")
a.reset(); a.smem_any = True
flagaddr()
a(f"""
s_lshl_b32 s{sPU}, s{sCG}, 1
s_add_u32 s{sPU}, s{sPU}, s{sUNIT}
s_cmp_lt_u32 s{sCG}, 112
s_cselect_b32 s{sFFN}, 1, 0
s_cmp_lt_u32 s{sUNIT}, 2
s_cselect_b32 s{sFFN}, s{sFFN}, 0
s_cmp_eq_u32 s{sUNIT}, 0
s_cselect_b32 s{sT+8}, s{sWG}, s{sWU}
s_cselect_b32 s{sT+9}, s{sWG+1}, s{sWU+1}
s_mul_i32 s{sT+10}, s{sUNIT}, {L_WU-L_WG}
s_add_u32 s{sT+10}, s{sT+10}, {L_WG}
v_lshrrev_b32 v16, 1, v1
v_mul_u32_u24 v16, 3584, v16
v_and_b32 v17, 1, v1
v_lshl_add_u32 v16, v17, 4, v16
s_lshl_b32 s{sT+11}, s{sCG}, 5
v_add_u32 v21, s{sT+11}, v16
s_lshl_b32 s{sT+11}, s{sPU}, 13
s_add_u32 s{sT+11}, s{sT+11}, 4096
v_lshl_add_u32 v22, v1, 3, s{sT+11}
s_and_b32 s{sT+11}, s{sCG}, {3 if OPT['ROT'] else 0}
s_lshl_b32 s{sT+11}, s{sT+11}, 2
s_add_u32 s{sT+12}, s{sT+11}, 16
s_lshl_b32 s{sT}, s2, 3
s_add_u32 s{sT}, s{sT}, {WS_ROUT}
v_mov_b32 v16, s{sT}
v_mov_b32 v18, 0
s_barrier
""")
a.wait(lgkm=0)
tagcalc()
a(f"""
s_cmp_lg_u32 s{sUNIT}, 0
s_cbranch_scc1 L_nonull
v_mov_b32 v19, s{sTAG}
s_mov_b64 exec, 1
global_store_dwordx2 v16, v[18:19], {P(sWS)} sc1
s_mov_b64 exec, -1
""")
a.label("L_nonull")
stamp(13)
a(f"s_cmp_eq_u32 s{sFFN}, 0\n s_cbranch_scc1 L_noffn")
for f in range(8):
    for h in range(2):
        a(f"global_load_dwordx2 {vr(WD+4*f+2*h,2)}, v22, {P(sWD)} offset:{f*1024+512*h-4096}{NT}")
sleep(OPT["WDLY"])
a.label("L_dma")
a(f"""
s_and_b32 s{sT+13}, s{sT+11}, 15
s_lshl_b32 s{sT+14}, s{sT+13}, 10
s_add_u32 m0, s{sT+14}, s{sT+10}
s_mul_i32 s{sT+13}, s{sT+13}, {32*3584}
s_add_u32 s{sT+14}, s{sT+8}, s{sT+13}
s_addc_u32 s{sT+15}, s{sT+9}, 0
s_add_u32 s{sT+11}, s{sT+11}, 1
s_cmp_lg_u32 s{sT+11}, s{sT+12}
global_load_lds_dwordx4 v21, {P(sT+14)}{NT}
s_cbranch_scc1 L_dma
""")
a.label("L_noffn")
stamp(1)
a(f"s_cmp_ge_u32 s{sUNIT}, 2\n s_cbranch_scc1 L_xt")
a(f"s_cmp_eq_u32 s{sFFN}, 1\n s_cbranch_scc1 L_ffnprep")
sleep(OPT["IDLEDLY"])
a(f"s_cmp_eq_u32 s{sUNIT}, 0\n s_cbranch_scc1 L_rpoll")
endpgm()
a.label("L_ffnprep")
a.reset()
pairs = [(0, 2), (4, 6), (1, 3), (5, 7)]
a(f"""
s_mov_b32 s{sT+2}, 0x05040100
s_mov_b32 s{sT+3}, 0x07060302
v_bfe_u32 v16, v1, 2, 2
v_lshrrev_b32 v17, 4, v1
v_lshl_add_u32 v16, v17, 3, v16
v_lshlrev_b32 v16, 5, v16
v_and_b32 v17, 1, v1
v_lshl_add_u32 v16, v17, 3, v16
v_bfe_u32 v17, v1, 1, 1
v_mul_u32_u24 v17, {L_WU-L_WG}, v17
s_lshl_b32 s{sT+4}, s{sUNIT}, 4
s_add_u32 s{sT+4}, s{sT+4}, {L_WG}
v_add3_u32 v20, v16, v17, s{sT+4}
v_mov_b32 v16, 1
s_waitcnt vmcnt(16)
""")
for pi, (fa, fb) in enumerate(pairs):
    for c in range(4):
        a(f"v_perm_b32 v{WDP+8*pi+2*c}, v{WD+4*fb+c}, v{WD+4*fa+c}, s{sT+2}")
        a(f"v_perm_b32 v{WDP+8*pi+2*c+1}, v{WD+4*fb+c}, v{WD+4*fa+c}, s{sT+3}")
a(f"s_waitcnt vmcnt(0)\n ds_write_b8 v{vFL}, v16 offset:{M_W}")
stamp(2)
lds_spin(18, vMI, M_W, 0x0101)
for ks in range(16):
    for hh in range(2):
        a(f"ds_read_b64_tr_b16 {vr(WF+4*ks+2*hh,2)}, v20 offset:{ks*1024+hh*128}")
stamp(4)
a.label("L_rpoll")
a.wait(lgkm=0)
a.reset()
a(f"""
v_add_u32 v20, {WS_ROUT}, v2
v_and_b32 v21, 15, v1
v_lshlrev_b32 v21, 6, v21
v_lshrrev_b32 v22, 4, v1
v_lshl_add_u32 v21, v22, 4, v21
s_mov_b32 s{sT+1}, 0
""")
a.label("L_rp1")
a(f"""
global_load_dwordx4 v[24:27], v20, {P(sWS)} sc1
global_load_dwordx4 v[28:31], v20, {P(sWS)} offset:1024 sc1
s_add_u32 s{sT+1}, s{sT+1}, 1
""")
a.wait(vm=0)
a(f"""
v_xor_b32 v25, s{sTAG}, v25
v_xor_b32 v27, s{sTAG}, v27
v_xor_b32 v29, s{sTAG}, v29
v_xor_b32 v31, s{sTAG}, v31
v_max3_u32 v24, v24, v26, v28
v_or3_b32 v25, v25, v27, v29
v_max_u32 v24, v24, v30
v_or_b32 v25, v25, v31
v_cmp_ne_u32 vcc, 0, v25
s_cbranch_vccz L_rp2
s_cmp_lt_u32 s{sT+1}, {OPT['POLLMAX']}
s_cbranch_scc1 L_rp1
""")
a.label("L_rp2")
for st in DPP4: a(f"v_max_u32_dpp v24, v24, v24 {st} row_mask:0xf bank_mask:0xf bound_ctrl:0")
a(f"""
v_max_u32_dpp v24, v24, v24 row_bcast:15 row_mask:0xa bank_mask:0xf
v_max_u32_dpp v24, v24, v24 row_bcast:31 row_mask:0xc bank_mask:0xf
v_readlane_b32 s{sKEY}, v24, 63
s_and_b32 s{sIDX}, s{sKEY}, 0x7ff
s_sub_u32 s{sIDX}, 2047, s{sIDX}
s_lshl_b32 s{sT+6}, s{sIDX}, 10
s_lshl_b32 s{sT+7}, s{sIDX}, 3
s_add_u32 s{sT+7}, s{sT+7}, {WS_STAT}
v_add_u32 v21, s{sT+6}, v21
v_mov_b32 v22, s{sT+7}
s_cmp_eq_u32 s{sFFN}, 0
s_cbranch_scc1 L_rp3
global_load_dwordx4 v[24:27], v21, {P(sX)}{NTX}
global_load_dwordx2 v[28:29], v22, {P(sWS)} sc1
""")
a.label("L_rp3")
a(f"""
s_cmp_lg_u32 s{sUNIT}, 0
s_cbranch_scc1 L_rp4
v_mov_b32 v30, 1
v_mov_b32 v31, s{sIDX}
s_mov_b64 exec, 1
ds_write_b64 v{vMI}, v[30:31] offset:{M_RT}
s_cmp_lg_u32 s2, 0
s_cbranch_scc1 L_rp5
v_mov_b32 v30, 0
v_mov_b32 v31, s{sTAG}
global_store_dword v30, v31, {P(sWS)} sc1
""")
a.label("L_rp5")
a("s_mov_b64 exec, -1")
a.label("L_rp4")
stamp(5)
a(f"s_cmp_eq_u32 s{sFFN}, 0\n s_cbranch_scc1 L_hop2b")
a.reset()
a(f"s_mov_b32 s{sT+1}, 0")
a.label("L_st1")
a.wait(vm=0)
a(f"""
v_xor_b32 v28, s{sTLO}, v28
v_xor_b32 v29, s{sTHI}, v29
v_or_b32 v30, v28, v29
v_and_b32 v30, 0xffff, v30
v_cmp_ne_u32 vcc, 0, v30
s_cbranch_vccz L_st2
s_add_u32 s{sT+1}, s{sT+1}, 1
s_cmp_ge_u32 s{sT+1}, {OPT['POLLMAX']}
s_cbranch_scc1 L_st2
global_load_dwordx2 v[28:29], v22, {P(sWS)} sc1
s_branch L_st1
""")
a.label("L_st2")
a.reset()
stamp(6)
FX = 36
a(f"v_rcp_f32 v32, v29")
for i in range(4):
    a(f"v_lshlrev_b32 v{FX+2*i}, 16, v{24+i}\n v_and_b32 v{FX+2*i+1}, 0xffff0000, v{24+i}")
a(f"v_mul_f32 v33, -v28, v32")
for i in range(4):
    a(f"v_pk_fma_f32 {vr(FX+2*i,2)}, {vr(FX+2*i,2)}, v[32:33], v[32:33] op_sel:[0,0,1] op_sel_hi:[1,0,1]")
for i in range(4): a(f"v_cvt_pk_bf16_f32 v{24+i}, v{FX+2*i}, v{FX+2*i+1}")
BB = [44, 48]; DG = 32
def bc(ks):
    for i in range(4):
        a(f"v_mov_b32_dpp v{BB[ks&1]+i}, v{24+i} row_newbcast:{ks} row_mask:0xf bank_mask:0xf")
bc(0)
for ks in range(16):
    if ks < 15: bc(ks + 1)
    a(f"v_mfma_f32_16x16x32_bf16 {vr(DG,4)}, {vr(WF+4*ks,4)}, {vr(BB[ks&1],4)}, {'0' if ks == 0 else vr(DG,4)}")
sTB = sT + 6
a(f"""
s_lshr_b32 s{sTB+1}, s{sTAG}, 8
s_lshr_b32 s{sTB+2}, s{sTAG}, 16
s_lshr_b32 s{sTB+3}, s{sTAG}, 24
s_mul_i32 s{sT}, s{sPU}, {PSTR}
s_add_u32 s{sT}, s{sT}, {WS_PART}
v_add_u32 v20, s{sT}, v2
v_mov_b32 v21, 0xff
v_permlane32_swap_b32 v{DG}, v{DG+1}
v_permlane32_swap_b32 v{DG+2}, v{DG+3}
v_mul_f32 v36, 0xbfb8aa3b, v{DG}
v_mul_f32 v37, 0xbfb8aa3b, v{DG+2}
v_exp_f32 v36, v36
v_exp_f32 v37, v37
v_mul_f32 v{DG}, v{DG}, v{DG+1}
v_add_f32 v36, 1.0, v36
v_add_f32 v37, 1.0, v37
v_rcp_f32 v36, v36
v_rcp_f32 v37, v37
v_mul_f32 v{DG+2}, v{DG+2}, v{DG+3}
v_mul_f32 v36, v36, v{DG}
v_mul_f32 v37, v37, v{DG+2}
v_cvt_pk_bf16_f32 v36, v36, v37
""")
sH = sT + 12
for pi in range(4): a(f"v_readlane_b32 s{sH+pi}, v36, {16*pi}")
Y = 40
for half in range(2):
    for pi in range(4):
        for c in range(4 * half, 4 * half + 4):
            a(f"v_dot2_f32_bf16 v{Y+c}, v{WDP+8*pi+c}, s{sH+pi}, {'0' if pi == 0 else 'v%d' % (Y+c)}")
    if half == 1:
        a(f"global_store_dwordx4 v20, {vr(Y,4)}, {P(sWS)} sc1")
    for c in range(4 * half, 4 * half + 4):
        a(f"v_bfi_b32 v{Y+c}, v21, s{sTAG if c % 4 == 0 else sTB + c % 4}, v{Y+c}")
a(f"global_store_dwordx4 v20, {vr(Y+4,4)}, {P(sWS)} offset:1024 sc1")
stamp(7)
a(f"s_cmp_eq_u32 s{sUNIT}, 0\n s_cbranch_scc1 L_hop2")
endpgm()
a.label("L_hop2b")
sleep(OPT["H2B"] - OPT["H2A"])
a.label("L_hop2")
a.reset()
a(f"""
s_lshr_b32 s{sT}, s{sIDX}, 8
s_add_u32 s{sT}, s{sT}, 6
s_and_b32 s{sT}, s{sT}, 7
s_lshr_b32 s{sT}, s{sT}, 2
s_xor_b32 s{sT}, s{sT}, 1
s_cmp_eq_u32 s{sT}, s{sHS}
s_cbranch_scc1 L_h1
""")
endpgm()
a.label("L_h1")
a(f"""
s_and_b32 s{sTB}, s{sTAG}, 0xff
s_bfe_u32 s{sTB+1}, s{sTAG}, 0x80008
s_bfe_u32 s{sTB+2}, s{sTAG}, 0x80010
s_lshr_b32 s{sTB+3}, s{sTAG}, 24
s_lshl_b32 s{sT}, s{sCG}, 4
s_add_u32 s{sT}, s{sT}, {WS_PART}
v_mul_u32_u24 v20, {PSTR}, v1
v_add_u32 v20, s{sT}, v20
v_add_u32 v21, {64*PSTR}, v20
v_add_u32 v22, {128*PSTR}, v20
v_add_u32 v23, {192*PSTR}, v20
v_mov_b32 v36, s{sTB}
v_mov_b32 v37, s{sTB+1}
v_mov_b32 v38, s{sTB+2}
v_mov_b32 v39, s{sTB+3}
s_and_b32 s{sT}, s{sKEY}, 0xfffff800
s_xor_b32 s{sT+2}, s{sT}, 0x80000000
s_not_b32 s{sT+3}, s{sT}
s_bitcmp1_b32 s{sT}, 31
s_cselect_b32 s{sT}, s{sT+2}, s{sT+3}
v_mov_b32 v44, s{sT}
v_mul_f32 v44, 0xbfb8aa3b, v44
v_exp_f32 v44, v44
s_mov_b32 s{sT+1}, 0
v_add_f32 v44, 1.0, v44
v_rcp_f32 v44, v44
s_lshl_b32 s{sT}, s{sIDX}, 10
s_lshl_b32 s{sT+2}, s{sCG}, 3
s_add_u32 s{sT}, s{sT}, s{sT+2}
v_lshrrev_b32 v45, 4, v1
v_and_b32 v46, 1, v45
v_lshrrev_b32 v45, 1, v45
v_lshl_add_u32 v45, v46, 1, v45
v_lshl_add_u32 v46, v45, 2, v{vMI}
v_lshl_add_u32 v45, v45, 1, s{sT}
""")
sleep(OPT["H2A"] - 2)
a.label("L_h2")
a(f"""
global_load_dwordx4 v[24:27], v20, {P(sWS)} sc1
global_load_dwordx4 v[28:31], v21, {P(sWS)} sc1
global_load_dwordx4 v[32:35], v22, {P(sWS)} sc1
s_mov_b32 exec_hi, 0
global_load_dwordx4 v[36:39], v23, {P(sWS)} sc1
s_mov_b32 exec_hi, -1
s_add_u32 s{sT+1}, s{sT+1}, 1
""")
a.wait(vm=0)
for i in range(4): a(f"v_xor_b32 v{40+i}, v{24+i}, v{28+i}")
for i in range(4): a(f"v_xor_b32 v{48+i}, v{32+i}, v{36+i}")
for i in range(4): a(f"v_xor_b32 v{16+i}, s{sTB+i}, v{24+i}")
a(f"""
v_or3_b32 v40, v40, v41, v42
v_or3_b32 v48, v48, v49, v50
v_or3_b32 v16, v16, v17, v18
v_xor_b32 v41, v24, v32
v_xor_b32 v42, v25, v33
v_xor_b32 v49, v26, v34
v_xor_b32 v50, v27, v35
v_or3_b32 v40, v40, v43, v48
v_or3_b32 v16, v16, v19, v51
v_or3_b32 v41, v41, v42, v49
v_or3_b32 v40, v40, v16, v50
v_or_b32 v40, v40, v41
v_and_b32 v40, 0xff, v40
v_cmp_ne_u32 vcc, 0, v40
s_cbranch_vccz L_h3
s_cmp_lt_u32 s{sT+1}, {OPT['POLLMAX']}
s_cbranch_scc1 L_h2
""")
a.label("L_h3")
stamp(8)
if STAMPS: a(f"s_mov_b32 s{sST+11}, s{sT+1}")
a(f"""
v_pk_add_f32 v[24:25], v[24:25], v[28:29]
v_pk_add_f32 v[26:27], v[26:27], v[30:31]
v_pk_add_f32 v[32:33], v[32:33], v[36:37]
v_pk_add_f32 v[34:35], v[34:35], v[38:39]
v_pk_add_f32 v[24:25], v[24:25], v[32:33]
v_pk_add_f32 v[26:27], v[26:27], v[34:35]
v_permlane32_swap_b32 v24, v25
v_permlane32_swap_b32 v26, v27
v_add_f32 v24, v24, v25
v_add_f32 v26, v26, v27
v_permlane16_swap_b32 v24, v26
v_add_f32 v24, v24, v26
""")
for st in DPP4: a(f"v_add_f32_dpp v24, v24, v24 {st} row_mask:0xf bank_mask:0xf bound_ctrl:0")
lds_spin(18, vMI, M_SV, 1)
a(f"""
ds_read_b32 v25, v46 offset:{M_SAVE}
v_fma_f32 v25, v24, v44, v25
v_cvt_pk_bf16_f32 v25, v25, v25
s_mov_b32 exec_lo, 0x80008000
s_mov_b32 exec_hi, 0x80008000
global_store_short v45, v25, {P(sOUT)}
""")
stamp(9)
endpgm()
a.label("L_xt")
a.reset()
XT, ST = 64, 96
sE = sT + 2
sJ = sT + 6
a(f"s_sub_u32 s{sUNIT}, s{sUNIT}, 2\n v_subrev_u32 v{vFL}, 2, v{vFL}")
for i in range(4):
    a(f"""
    s_bfe_u32 s{sE+i}, s{sTAG}, {0x30000 + 6*i}
    s_bfe_u32 s{sT}, s{sTAG}, {0x30000 + 6*i + 3}
    s_lshl_b32 s{sT}, s{sT}, 16
    s_or_b32 s{sE+i}, s{sE+i}, s{sT}
    """)
vUW, vTOK, vSTA, vYR, vUR, vOA = 24, 25, 26, 27, 28, 29
a(f"""
s_cmp_eq_u32 s{sHS}, 0
s_cselect_b32 s{sJ}, 0, 512
s_cselect_b32 s{sJ+2}, 512, 0
s_add_u32 s{sJ+1}, s{sJ}, 256
s_add_u32 s{sJ+2}, s{sJ+2}, 1024
s_add_u32 s{sJ+3}, s{sJ+2}, 256
s_lshl_b32 s{sT}, s{sCG}, 14
s_lshl_b32 s{sT+1}, s{sUNIT}, 10
s_add_u32 s{sT}, s{sT}, s{sT+1}
s_add_u32 s{sT}, s{sT}, {WS_XT + 4096}
v_add_u32 v20, s{sT}, v2
v_add_u32 v21, 0x2000, v20
v_and_b32 v17, 3, v1
v_mul_u32_u24 v17, {USTR}, v17
v_lshrrev_b32 v16, 2, v1
v_lshl_add_u32 v17, v16, 4, v17
s_lshl_b32 s{sT}, s{sUNIT}, 8
s_add_u32 s{sT}, s{sT}, {L_U + 512}
v_add_u32 v{vUW}, s{sT}, v17
s_lshl_b32 s{sT}, s{sUNIT}, 6
v_add_u32 v{vTOK}, s{sT}, v1
v_lshlrev_b32 v{vSTA}, 3, v{vTOK}
v_add_u32 v{vSTA}, {WS_STAT}, v{vSTA}
v_lshlrev_b32 v{vYR}, 2, v{vTOK}
v_lshlrev_b32 v{vUR}, 1, v{vTOK}
v_add_u32 v{vUR}, {L_U + 512}, v{vUR}
s_lshl_b32 s{sT}, s{sCG}, 3
v_lshl_add_u32 v{vOA}, v{vTOK}, 10, s{sT}
""")
for q in range(4):
    a(f"s_lshl_b32 s{sT}, s{sJ+q}, 3\n v_add_u32 v{30+q}, s{sT}, v{vSTA}")
for j in range(8): a(f"v_mov_b32 v{XT+24+j}, s{sE+j%4}")
lds_spin(18, vMI, M_RT, 1, width=2)
a(f"v_readfirstlane_b32 s{sIDX}, v19")
sleep(OPT["XTDLY"])
stamp(4)
a(f"s_mov_b32 s{sT+1}, 0")
a.label("L_x1")
for i in range(8):
    if i == 6: a(f"s_cmp_eq_u32 s{sHS}, 1\n s_cbranch_scc1 L_x1b")
    a(f"global_load_dwordx4 {vr(XT+4*i,4)}, v{20+i//4}, {P(sWS)} offset:{(i%4)*2048-4096} sc1")
a.label("L_x1b")
a(f"s_add_u32 s{sT+1}, s{sT+1}, 1")
for i in range(8):
    if i < 6: a(f"s_waitcnt vmcnt({5-i})" if False else "s_nop 0") if False else None
a.vmq = [set() for _ in range(0)]
for i in range(8):
    a(f"s_waitcnt vmcnt({max(5-i,0)})")
    for j in range(4): a(f"v_xor_b32 v{112+4*(i%2)+j}, s{sE+j}, v{XT+4*i+j}")
    a(f"ds_write_b128 v{vUW}, {vr(112+4*(i%2),4)} offset:{512*i}")
    b = 112 + 4 * (i % 2)
    if i == 0: a(f"v_or3_b32 v16, v{b}, v{b+1}, v{b+2}\n v_mov_b32 v17, v{b+3}")
    else: a(f"v_or3_b32 v16, v16, v{b}, v{b+1}\n v_or3_b32 v17, v17, v{b+2}, v{b+3}")
a(f"""
v_or_b32 v16, v16, v17
v_and_b32 v16, 0x70007, v16
v_cmp_ne_u32 vcc, 0, v16
s_cbranch_vccz L_x2
s_cmp_lt_u32 s{sT+1}, {OPT['POLLMAX']}
s_cbranch_scc1 L_x1
""")
a.label("L_x2")
a(f"v_mov_b32 v16, 1\n ds_write_b8 v{vFL}, v16 offset:{M_U}")
if STAMPS: a(f"s_mov_b32 s{sST+11}, s{sT+1}")
stamp(5)
a(f"s_mov_b32 s{sT+1}, 0")
a.label("L_x3")
for i in range(8):
    a(f"global_load_dwordx2 {vr(ST+2*i,2)}, v{30+i//2}, {P(sWS)} offset:{(i%2)*1024} sc1")
for i in range(8):
    a(f"v_xor_b32 v{ST+2*i}, s{sTLO}, v{ST+2*i}\n v_xor_b32 v{ST+2*i+1}, s{sTHI}, v{ST+2*i+1}")
    a(f"v_or3_b32 v16, {'0' if i == 0 else 'v16'}, v{ST+2*i}, v{ST+2*i+1}")
a(f"""
v_and_b32 v16, 0xffff, v16
v_cmp_ne_u32 vcc, 0, v16
s_cbranch_vccz L_x4
s_add_u32 s{sT+1}, s{sT+1}, 1
s_cmp_lt_u32 s{sT+1}, {OPT['POLLMAX']}
s_cbranch_scc1 L_x3
""")
a.label("L_x4")
a.reset()
INV = 36
sOB = sT + 12
for q in range(4):
    lds_spin(18, vMI, M_T + 4 * q, 0x01010101)
    if q == 0: a(f"ds_read_b128 {vr(INV,4)}, v{vMI} offset:{M_INV}")
    a(f"s_lshl_b32 s{sT}, s{sJ+q}, 1\n v_add_u32 v30, s{sT}, v{vUR}")
    a(f"s_lshl_b32 s{sT}, s{sJ+q}, 10\n s_add_u32 s{sOB}, s{sOUT}, s{sT}\n s_addc_u32 s{sOB+1}, s{sOUT+1}, 0")
    a(f"s_sub_u32 s{sT+11}, s{sIDX}, s{sJ+q}")
    for h in range(2):
        y, u = 112 + 8 * h, 116 + 8 * h
        for c in range(4):
            a(f"ds_read_b32 v{y+c}, v{vYR} offset:{L_KT + c*KT_SZ + q*1024 + h*512}")
            a(f"ds_read_u16_d16 v{u+c}, v30 offset:{c*USTR + h*256}")
    for h in range(2):
        y, u, i = 112 + 8 * h, 116 + 8 * h, 2 * q + h
        for c in range(4):
            a(f"v_fma_mix_f32 v{u+c}, v{u+c}, v{ST+2*i+1}, v{ST+2*i} op_sel_hi:[1,0,0]")
        if h == 1: a(f"s_sub_u32 s{sT+11}, s{sT+11}, 128")
        a(f"v_cmp_ne_u32 vcc, s{sT+11}, v{vTOK}")
        for c in range(4):
            a(f"v_fma_f32 v{y+c}, v{y+c}, v{INV+c}, v{u+c}")
        a(f"v_cvt_pk_bf16_f32 v{u}, v{y}, v{y+1}\n v_cvt_pk_bf16_f32 v{u+1}, v{y+2}, v{y+3}")
        if h == 1: a(f"s_add_u32 s{sOB}, s{sOB}, 0x20000\n s_addc_u32 s{sOB+1}, s{sOB+1}, 0")
        Lk = a.newlabel("nosave")
        a(f"""
        s_mov_b64 exec, vcc
        global_store_dwordx2 v{vOA}, {vr(u,2)}, {P(sOB)}
        s_not_b64 exec, exec
        s_cbranch_execz {Lk}
        v_mov_b32 v16, 1
        ds_write_b128 v{vMI}, {vr(y,4)} offset:{M_SAVE}
        ds_write_b32 v{vMI}, v16 offset:{M_SV}
        """)
        a.label(Lk)
        a("s_mov_b64 exec, -1")
    stamp(6 + q)
endpgm()

a.raw(".p2align 6")
a.label("L_conv")
a.reset()
a.smem_any = True
a.vmq = [{("v", 255)}]
PRM, BAND = 4, 12
KW, T2, T3, ACC, DT, BX2, BX3, URING = 36, 104, 128, 144, 160, 176, 208, 224
NRING = 6
vKTA, vWA, vWT2, vWT3, vKWB, vT, vKW, vTAB, vU, vCF, vK0, vDmp = 248, 249, 250, 251, 252, 253, 254, 247, 2, 3, 10, 11
sCH, sLD, sDS, sKWB = sT + 2, sT + 3, sT + 4, sT + 5
a(f"""
s_lshl_b32 s{sCH}, s{sCG}, 2
s_add_u32 s{sCH}, s{sCH}, s{sWAVE}
s_lshl_b32 s{sT+6}, s{sCH}, 8
v_lshl_add_u32 v36, v1, 2, s{sT+6}
s_lshr_b32 s{sT+6}, s{sCH}, 1
s_lshl_b32 s{sT+6}, s{sT+6}, 2
""")
a.wait(lgkm=0)
if STAMPS: a(f"s_mov_b32 s{sST}, s88")
for i, s_ in enumerate((sARE, sAIM, sBRE, sBIM, sCRE, sCIM)):
    a(f"global_load_dword v{PRM+i}, v36, {P(s_)}{NT}")
a(f"""
s_load_dword s{sLD}, {P(sLDT)}, s{sT+6}
s_load_dword s{sDS}, {P(sDSK)}, s{sT+6}
""")
def wpf():
    a(f"""
    s_cmp_ge_u32 s{sWAVE}, 2
    s_cbranch_scc1 L_nopf
    s_cmp_eq_u32 s{sWAVE}, 0
    s_cselect_b32 s{sT+10}, s{sWG}, s{sWU}
    s_cselect_b32 s{sT+11}, s{sWG+1}, s{sWU+1}
    s_and_b32 s{sT+8}, s2, 7
    s_lshl_b32 s{sT+8}, s{sT+8}, 2
    v_and_b32 v38, 3, v1
    v_add_u32 v38, s{sT+8}, v38
    v_min_u32 v38, 27, v38
    s_and_b32 s{sT+8}, s2, 0xf8
    s_lshl_b32 s{sT+8}, s{sT+8}, 1
    v_lshrrev_b32 v39, 2, v1
    v_add_u32 v39, s{sT+8}, v39
    v_mul_u32_u24 v39, 3584, v39
    v_lshl_add_u32 v39, v38, 7, v39
    global_load_dword v{URING+1}, v39, {P(sT+10)}{NT}
    """)
    a.label("L_nopf")
if not OPT["PFD"]: wpf()
a(f"""
s_barrier
v_mov_b32 v37, v2
v_add_u32 v{vTAB}, L_tab-L_pc, v2
s_mul_i32 s{sKWB}, s{sWAVE}, {KW_SZ}
s_add_u32 s{sKWB}, s{sKWB}, {L_KW}
v_mov_b32 v40, 0
v_mov_b32 v41, 0
v_mov_b32 v42, 0
v_mov_b32 v43, 0
v_add_u32 v39, s{sKWB}, v37
""")
for i in range(7): a(f"ds_write_b128 v39, v[40:43] offset:{1024*i}")
a(f"""
s_mul_i32 s{sT+6}, s{sWAVE}, {USTR}
s_add_u32 s{sT+6}, s{sT+6}, {L_U}
v_lshl_add_u32 v39, v1, 3, s{sT+6}
ds_write_b64 v39, v[40:41]
v_and_b32 v40, 15, v1
v_lshrrev_b32 v41, 4, v1
v_lshlrev_b32 v{vU}, 5, v40
v_lshl_add_u32 v{vU}, v41, 4, v{vU}
v_add_u32 v{vU}, s{sT+6}, v{vU}
s_mul_i32 s{sT+7}, s{sWAVE}, {KT_SZ}
s_mov_b32 m0, s{sT+7}
v_lshlrev_b32 v{vDmp}, 6, v40
v_lshl_add_u32 v{vDmp}, v41, 4, v{vDmp}
v_add_u32 v{vDmp}, s{sT+7}, v{vDmp}
v_and_b32 v42, 31, v1
v_lshrrev_b32 v43, 5, v1
v_mul_u32_u24 v{vKTA}, {ROWP}, v42
v_lshl_add_u32 v{vKTA}, v43, 4, v{vKTA}
v_add_u32 v{vKTA}, s{sT+7}, v{vKTA}
v_mov_b32 v{vKWB}, s{sKWB}
s_add_u32 s{sT+7}, s{sKWB}, {KW_N + 1088}
v_sub_u32 v{vWA}, s{sT+7}, v37
v_and_b32 v44, 1, v1
v_lshlrev_b32 v45, 8, v44
v_lshrrev_b32 v46, 1, v1
v_lshlrev_b32 v46, 2, v46
v_sub_u32 v45, v45, v46
s_add_u32 s{sT+7}, s{sKWB}, {47*4}
v_add_u32 v{vWT2}, s{sT+7}, v45
v_lshrrev_b32 v45, 1, v42
v_lshl_add_u32 v45, v43, 5, v45
v_lshlrev_b32 v45, 2, v45
v_lshlrev_b32 v46, 1, v44
v_sub_u32 v45, v46, v45
s_add_u32 s{sT+7}, s{sKWB}, {512 + 47*4}
v_add_u32 v{vWT3}, s{sT+7}, v45
v_lshlrev_b32 v45, 2, v41
v_sub_u32 v46, v45, v40
v_lshlrev_b32 v46, 2, v46
v_mul_u32_u24 v45, {KW_T1}, v44
v_sub_u32 v46, v46, v45
s_add_u32 s{sT+7}, s{sKWB}, {60 + KW_T1}
v_add_u32 v{vT}, s{sT+7}, v46
v_and_b32 v45, 3, v1
v_mul_u32_u24 v45, {KW_NS}, v45
v_lshl_add_u32 v45, v41, 4, v45
v_and_b32 v46, 12, v1
v_lshlrev_b32 v46, 1, v46
v_sub_u32 v45, v45, v46
s_add_u32 s{sT+7}, s{sKWB}, {KW_N + 1064 - 1024}
v_add_u32 v{vKW}, s{sT+7}, v45
v_lshlrev_b32 v45, 2, v1
v_add_u32 v45, {L_MISC + M_DUMMY}, v45
s_add_u32 s{sT+7}, s{sWAVE}, {L_MISC}
v_mov_b32 v46, s{sT+7}
v_cmp_eq_u32 vcc, 0, v1
""")
if STAMPS: a("s_memrealtime s[92:93]")
a.wait(lgkm=0)
if STAMPS: a(f"s_mov_b32 s{sST+10}, s92")
DTv, K1, K2, ONE = 82, 83, 84, 85
a(f"""
v_cndmask_b32 v{vCF}, v45, v46, vcc
s_lshl_b32 s{sT+7}, s{sLD}, 16
s_and_b32 s{sLD}, s{sLD}, 0xffff0000
s_lshl_b32 s{sT+8}, s{sDS}, 16
s_and_b32 s{sDS}, s{sDS}, 0xffff0000
s_bitcmp1_b32 s{sCH}, 0
s_cselect_b32 s{sLD}, s{sLD}, s{sT+7}
s_cselect_b32 s{sDS}, s{sDS}, s{sT+8}
v_mov_b32 v{DTv}, s{sLD}
v_mul_f32 v{DTv}, 0x3fb8aa3b, v{DTv}
v_exp_f32 v{DTv}, v{DTv}
v_mov_b32 v{ONE}, 0x3c00
v_cvt_pk_bf16_f32 v{DTv}, v{DTv}, v{DTv}
v_lshlrev_b32 v{DTv}, 16, v{DTv}
v_mul_f32 v{K1}, 0x3fb8aa3b, v{DTv}
v_mul_f32 v{K2}, 0x3e22f983, v{DTv}
v_add_f32 v{vK0}, 1.0, s{sDS}
v_and_b32 v86, 0x7fffffff, v{vK0}
v_cndmask_b32 v{vK0}, 0, v{vK0}, vcc
v_add_u32 v{URING}, 4096, v{vTAB}
""")
if OPT["PFD"]: wpf()
a(f"s_cmp_ge_u32 s{sWAVE}, 2\n s_cbranch_scc1 L_wa\n s_waitcnt vmcnt(1)\n s_branch L_wb")
a.label("L_wa")
a.wait(vm=0)
a.label("L_wb")
a.vmq = [{("v", URING + 1)}]
stamp(1)
Z = [36, 38]; W = [40, 42]; TB, TC = 44, 46
E1, E2, E8, E256, CUR, TMP, SV = 52, 54, 56, 58, 60, 62, 64
CV = list(range(88, 100)); cvi = [0]; pendw = []
def flushw():
    for (c, r) in pendw: a(f"ds_write_addtid_b32 v{c} offset:{r*ROWP}")
    pendw.clear()
def cmul(d, x, y):
    a(f"v_pk_mul_f32 {vr(TMP,2)}, {vr(x,2)}, {vr(y,2)} op_sel:[0,0] op_sel_hi:[1,0]")
    a(f"v_pk_fma_f32 {vr(d,2)}, {vr(x,2)}, {vr(y,2)}, {vr(TMP,2)} op_sel:[1,1,0] op_sel_hi:[0,1,1] neg_lo:[1,0,0]")
def put(rows, x, neg):
    c = CV[cvi[0] % len(CV)]; cvi[0] += 1
    a(f"v_cvt_pk_f16_f32 v{c}, v{x}, {'-' if neg else ''}v{x+1}")
    for r in rows: pendw.append((c, r))
    if len(pendw) >= OPT["KB"]: flushw()
def unp(d, src, hi):
    a(f"v_and_b32 v{d}, 0xffff0000, v{src}" if hi else f"v_lshlrev_b32 v{d}, 16, v{src}")
for s_ in range(2):
    unp(TB, PRM + 2, s_); unp(TB + 1, PRM + 3, s_); unp(TC, PRM + 4, s_); unp(TC + 1, PRM + 5, s_)
    unp(Z[s_], PRM, s_); unp(Z[s_] + 1, PRM + 1, s_)
    cmul(W[s_], TB, TC)
    a(f"v_mul_f32 v{Z[s_]}, v{Z[s_]}, v{K1}\n v_mul_f32 v{Z[s_]+1}, v{Z[s_]+1}, v{K2}")
SUM = 87
a(f"""
v_add_f32 v{SUM}, |v{W[0]}|, |v{W[0]+1}|
v_add_f32 v70, |v{W[1]}|, |v{W[1]+1}|
v_add_f32 v{SUM}, v{SUM}, v70
""")
red = [f"v_add_f32_dpp v{SUM}, v{SUM}, v{SUM} {st} row_mask:0xf bank_mask:0xf bound_ctrl:0" for st in DPP4]
red += [f"v_add_f32_dpp v{SUM}, v{SUM}, v{SUM} row_bcast:15 row_mask:0xa bank_mask:0xf", f"v_add_f32_dpp v{SUM}, v{SUM}, v{SUM} row_bcast:31 row_mask:0xc bank_mask:0xf"]
def evalE(s_, extra):
    zr, zi = Z[s_], Z[s_] + 1
    ex = list(extra)
    def X():
        if ex: a(ex.pop(0))
    for (d, lit) in ((E8, "0x41000000"), (E1, None), (E256, "0x43800000")):
        if lit:
            a(f"v_mul_f32 v70, {lit}, v{zi}"); a(f"v_mul_f32 v72, {lit}, v{zr}"); X()
            a("v_fract_f32 v70, v70"); a("v_exp_f32 v72, v72")
        else:
            a(f"v_fract_f32 v70, v{zi}"); a(f"v_exp_f32 v72, v{zr}")
        a(f"v_cos_f32 v{d}, v70"); a(f"v_sin_f32 v{d+1}, v70"); X()
        a(f"v_pk_mul_f32 {vr(d,2)}, {vr(d,2)}, v[72:73] op_sel_hi:[1,0]"); X()
    while ex: X()
FR = 160
def ktread(kind):
    flushw()
    for k in range(8):
        base = FR + 4 * k + (32 if kind == "B" else 0)
        a(f"ds_read_b128 {vr(base,4)}, v{vKTA} offset:{32*k + (24*ROWP if kind == 'B' else 0)}")
def kmfma(k, first):
    a(f"v_mfma_f32_32x32x16_f16 {vr(ACC,16)}, {vr(FR+4*k,4)}, {vr(FR+32+4*k,4)}, {'0' if first else vr(ACC,16)}")
def qrows(hook):
    pendw.append((ONE, 24))
    put([25], E8, False)
    for j in range(2, 32):
        cmul(CUR, E8 if j == 2 else CUR, E8); put([24 + j], CUR, False); hook(j)
def prows(s_):
    w = W[s_]
    put([0], w, True)
    for e in range(1, 8):
        cmul(CUR, w if e == 1 else CUR, E1); put([e if e < 4 else e + 4], CUR, True)
    cmul(E2, E1, E1)
    cmul(CUR, w, E256); put([4, 5], CUR, True)
    cmul(CUR, CUR, E2); put([6], CUR, True)
    cmul(SV, CUR, E2); put([7, 12, 13], SV, True)
    cmul(CUR, SV, E2); put([14], CUR, True)
    cmul(CUR, CUR, E2); put([15], CUR, True)
    cmul(SV, SV, E256); put([16], SV, True)
    cmul(CUR, CUR, E256); put([17], CUR, True)
    cmul(SV, SV, E256); put([20], SV, True)
    cmul(CUR, CUR, E256); put([21], CUR, True)
    for r in (18, 19, 22, 23):
        cmul(CUR, CUR, E256); put([r], CUR, True)
evalE(0, red)
sSUM = sT + 7
a(f"""
v_readlane_b32 s{sSUM}, v{SUM}, 63
v_fma_f32 v70, v{DTv}, s{sSUM}, v86
v_frexp_exp_i32_f32 v70, v70
v_sub_u32 v71, 14, v70
v_subrev_u32 v70, 14, v70
v_ldexp_f32 v72, v{DTv}, v71
v_ldexp_f32 v{vK0}, v{vK0}, v71
v_ldexp_f32 v70, 1.0, v70
s_lshl_b32 s{sT+8}, s{sWAVE}, 2
s_add_u32 s{sT+8}, s{sT+8}, {L_MISC + M_INV}
v_mov_b32 v71, s{sT+8}
v_pk_mul_f32 {vr(W[0],2)}, {vr(W[0],2)}, v[72:73] op_sel_hi:[1,0]
v_pk_mul_f32 {vr(W[1],2)}, {vr(W[1],2)}, v[72:73] op_sel_hi:[1,0]
s_mov_b64 exec, 1
ds_write_b32 v71, v70
s_mov_b64 exec, -1
""")
qrows(lambda j: None); prows(0)
ktread("A"); ktread("B")
evalE(1, [])
qrows(lambda j: kmfma((j - 2) // 3, j == 2) if (j - 2) % 3 == 0 and j < 26 else None)
ktread("B")
prows(1)
ktread("A")
for i in range(6):
    a(f"global_load_dwordx4 {vr(BAND+4*i,4)}, v{vTAB if i < 4 else URING}, {P(sPC)} offset:{(i%4)*1024}")
for k in range(8): kmfma(k, False)
stamp(2)
QA, QB, QC, QD = 40, 44, 48, 52
K = lambda i: ACC + i
a(f"""
v_add_f32 v{K(0)}, v{K(0)}, v{vK0}
v_mov_b32_dpp v36, v{K(7)} wave_shr:1 row_mask:0xf bank_mask:0xf bound_ctrl:0
v_cvt_pk_f16_f32 v{QA}, v{K(7)}, v{K(6)}
v_cvt_pk_f16_f32 v{QB}, v{K(6)}, v{K(5)}
v_cvt_pk_f16_f32 v{QA+1}, v{K(5)}, v{K(4)}
v_cvt_pk_f16_f32 v{QA+2}, v{K(3)}, v{K(2)}
v_cvt_pk_f16_f32 v{QA+3}, v{K(1)}, v{K(0)}
v_cvt_pk_f16_f32 v{QB+1}, v{K(4)}, v{K(3)}
v_cvt_pk_f16_f32 v{QB+2}, v{K(2)}, v{K(1)}
v_cvt_pk_f16_f32 v{QB+3}, v{K(0)}, v36
v_mov_b32_dpp v{QC+3}, v{QA} wave_shr:1 row_mask:0xf bank_mask:0xf bound_ctrl:0
v_mov_b32_dpp v{QD+3}, v{QB} wave_shr:1 row_mask:0xf bank_mask:0xf bound_ctrl:0
v_mov_b32 v{QC}, v{QA+1}
v_mov_b32 v{QC+1}, v{QA+2}
v_mov_b32 v{QC+2}, v{QA+3}
v_mov_b32 v{QD}, v{QB+1}
v_mov_b32 v{QD+1}, v{QB+2}
v_mov_b32 v{QD+2}, v{QB+3}
v_cvt_pk_f16_f32 v57, v{K(7)}, v{K(7)}
v_cvt_pk_f16_f32 v56, 0, v{K(7)}
v_cvt_pk_f16_f32 v58, v{K(8)}, v{K(9)}
v_cvt_pk_f16_f32 v59, v{K(10)}, v{K(11)}
v_cvt_pk_f16_f32 v60, v{K(9)}, v{K(9)}
ds_write_b128 v{vWA}, {vr(QA,4)} offset:{3*KW_NS}
ds_write_b128 v{vWA}, {vr(QB,4)} offset:{2*KW_NS}
ds_write_b128 v{vWA}, {vr(QC,4)} offset:{KW_NS}
ds_write_b128 v{vWA}, {vr(QD,4)}
s_mov_b32 exec_lo, 0
s_mov_b32 exec_hi, 0x80000000
ds_write_b64 v{vKWB}, v[56:57] offset:{KW_N + 3*KW_NS + 72}
ds_write_b32 v{vKWB}, v57 offset:{KW_N + 2*KW_NS + 72}
ds_write_b32 v{vKWB}, v57 offset:{KW_N + 2*KW_NS + 76}
ds_write_b32 v{vKWB}, v56 offset:{KW_N + KW_NS + 68}
ds_write_b32 v{vKWB}, v57 offset:{KW_N + KW_NS + 72}
ds_write_b32 v{vKWB}, v{QA} offset:{KW_N + KW_NS + 76}
ds_write_b32 v{vKWB}, v57 offset:{KW_N + 68}
ds_write_b32 v{vKWB}, v57 offset:{KW_N + 72}
ds_write_b32 v{vKWB}, v{QB} offset:{KW_N + 76}
s_mov_b64 exec, -1
ds_write_b32 v{vWT2}, v58
ds_write_b32 v{vWT2}, v58 offset:{KW_T1}
ds_write_b16 v{vWT3}, v59 offset:64
ds_write_b16_d16_hi v{vWT3}, v59
ds_write_b16 v{vWT3}, v59 offset:{64 + KW_T1}
ds_write_b16_d16_hi v{vWT3}, v59 offset:{KW_T1}
v_readlane_b32 s{sT+8}, v60, 63
""")
for mu in range(16, -1, -1):
    o = 1024 - 64 * mu
    a(f"ds_read_b64 {vr(KW+4*mu,2)}, v{vKW} offset:{o}\n ds_read_b64 {vr(KW+4*mu+2,2)}, v{vKW} offset:{o+8}")
lazy = []
for ab in range(2):
    for d in range(3):
        for h in range(2): lazy.append((T2 + 12 * ab + 4 * d, f"ds_read_b64 {vr(T2+12*ab+4*d+2*h,2)}, v{vT} offset:{4*(64*ab+16*d)+8*h}"))
for d in range(4):
    for h in range(2): lazy.append((T3 + 4 * d, f"ds_read_b64 {vr(T3+4*d+2*h,2)}, v{vT} offset:{4*(128+48-16*d)+8*h}"))
if not OPT["LAZY"]:
    for _, t in lazy: a(t)
    lazy = []
a(f"v_mov_b32 v{vK0}, {L_MISC}\n v_mov_b32 v{vKWB}, 1")
for i in range(4): a(f"v_and_b32 v{BAND+20+i}, s{sT+8}, v{BAND+20+i}")
stamp(3)
lds_spin(ACC, vK0, M_U, 0x0101)
stamp(4)
a(f"s_cmp_eq_u32 s{sHS}, 0\n s_cbranch_scc0 L_convY")

B3A, B5, B3B, B7, B9, SPK = [BAND + 4 * i for i in range(6)]
def conv_stream(tiles, order):
    acc = {J: ACC + 4 * q for q, J in enumerate(tiles)}
    slot = {J: q for q, J in enumerate(tiles)}
    started = set()
    q2 = sorted({m[1] for m in order if m[0] == "box" and m[2] in "ab"})
    frag = {}
    for i, Qb in enumerate(q2):
        frag[(Qb, "a")] = BX2 + 8 * i; frag[(Qb, "b")] = BX2 + 8 * i + 4
    for Qb in range(4): frag[(Qb, "g")] = BX3 + 4 * Qb
    M = []
    for m in order:
        if m[0] == "near": M.append(dict(u=("U", 8 * m[1] - m[2]), J=m[1], A=KW + 4 * m[2]))
        elif m[0] == "sp": M.append(dict(u=("U", 8 * m[1] - 32), J=m[1], A=SPK))
        elif m[0] == "box":
            Qb, t = m[1], m[2]
            lo = {"a": (("U", 8 * Qb), B3A), "b": (("U", 8 * Qb), B3B), "g": (("U", 8 * Qb), B7)}[t]
            hi = {"a": (("U", 8 * Qb), B5), "b": (("W", Qb), B5), "g": (("W", Qb), B9)}[t]
            M.append(dict(u=lo[0], band=lo[1], half=0, f=(Qb, t))); M.append(dict(u=hi[0], band=hi[1], half=1, f=(Qb, t)))
        elif m[0] == "far":
            J, Qb, t = m[1], m[2], m[3]
            Bq = T3 + 4 * (J - 4 - Qb) if t == "g" else T2 + (12 if t == "b" else 0) + 4 * (Qb - (J - 4))
            M.append(dict(J=J, fin=(Qb, t), B=Bq))
    reads = []; cur = {}
    for i, m in enumerate(M):
        if "u" in m:
            k = m["u"]
            if k in cur and i - reads[cur[k]]["last"] <= 24: reads[cur[k]]["last"] = i
            else: cur[k] = len(reads); reads.append(dict(key=k, first=i, last=i))
            m["rd"] = cur[k]
    last_of = {}; firstB = {}
    for i, m in enumerate(M):
        if "J" in m: last_of[m["J"]] = i
        if "B" in m: firstB.setdefault(m["B"], i)
    lz = sorted([(firstB[b], t) for b, t in lazy if b in firstB], key=lambda x: x[0])
    free = list(range(NRING)); nextr = 0; pend_cvt = []; pend_dump = []; dtfree = [0, 1]; dtof = {}; done_f = set()
    def issue_read():
        nonlocal nextr
        r = reads[nextr]; r["buf"] = URING + 4 * free.pop(0); nextr += 1
        off = 480 + 64 * r["key"][1] if r["key"][0] == "U" else 464 + 512 * r["key"][1]
        a(f"ds_read_b128 {vr(r['buf'],4)}, v{vU} offset:{off}")
    def do_cvt():
        t, f, j = pend_cvt.pop(0); d = DT + 8 * dtof[f]
        a(f"v_cvt_pk_f16_f32 v{frag[f]+j}, v{d+j}, v{d+4+j}")
        if j == 3: dtfree.append(dtof[f]); done_f.add(f)
    def do_dump():
        t, J = pend_dump.pop(0)
        a(f"ds_write_b128 v{vDmp}, {vr(acc[J],4)} offset:{1024*slot[J]}")
        a(f"ds_write_b8 v{vCF}, v{vKWB} offset:{M_T + 4*slot[J]}")
        if STAMPS > 1 or slot[J] == 3: stamp(5 + slot[J])
    while free and nextr < len(reads): issue_read()
    for i, m in enumerate(M):
        fill = 0
        if pend_dump and i - pend_dump[0][0] >= 4: do_dump(); fill += 2
        while lz and lz[0][0] - i <= 8: a(lz.pop(0)[1]); fill += 1
        while fill < 2 and pend_cvt and i - pend_cvt[0][0] >= 4: do_cvt(); fill += 1
        if fill < 2 and free and nextr < len(reads): issue_read(); fill += 2
        if fill == 0 and lz: a(lz.pop(0)[1]); fill += 1
        if "fin" in m:
            while m["fin"] not in done_f: do_cvt()
        if "band" in m and m["half"] == 0:
            while not dtfree: do_cvt()
            dtof[m["f"]] = dtfree.pop(0)
        if "rd" in m:
            while m["rd"] >= nextr:
                assert free, "ring exhausted"
                issue_read()
        if "band" in m:
            d = DT + 8 * dtof[m["f"]] + 4 * m["half"]
            a(f"v_mfma_f32_16x16x32_f16 {vr(d,4)}, {vr(reads[m['rd']]['buf'],4)}, {vr(m['band'],4)}, 0")
            if m["half"] == 1:
                for j in range(4): pend_cvt.append((i, m["f"], j))
        else:
            J = m["J"]; C = vr(acc[J], 4) if J in started else "0"; started.add(J)
            if "fin" in m: a(f"v_mfma_f32_16x16x32_f16 {vr(acc[J],4)}, {vr(frag[m['fin']],4)}, {vr(m['B'],4)}, {C}")
            else: a(f"v_mfma_f32_16x16x32_f16 {vr(acc[J],4)}, {vr(m['A'],4)}, {vr(reads[m['rd']]['buf'],4)}, {C}")
            if last_of[J] == i: pend_dump.append((i, J))
        if "rd" in m and reads[m["rd"]]["last"] == i: free.append((reads[m["rd"]]["buf"] - URING) // 4)
    while pend_dump: do_dump()
    assert not lz
    return len(M), len(reads)

def near_at(n, tiles):
    return [("near", J, 8 * J - n) for J in tiles if 0 <= 8 * J - n <= min(16, 8 * J + 7)]
oX = []
extra = {0: [("box", 0, "g")], 8: [("box", 1, "g")]}
for n in range(-7, 9): oX += near_at(n, [0, 1]) + extra.get(n, [])
oX += [("box", 2, "a"), ("sp", 6), ("box", 2, "b"), ("far", 6, 0, "g"), ("far", 7, 0, "g"), ("box", 2, "g"), ("far", 6, 1, "g"), ("far", 7, 1, "g"),
       ("box", 3, "a"), ("sp", 7), ("box", 3, "b"), ("far", 6, 2, "a"), ("far", 6, 2, "b"), ("box", 3, "g")]
extra = {32: [("box", 4, "a"), ("far", 6, 2, "g"), ("far", 7, 2, "g")], 33: [("far", 6, 3, "a"), ("far", 7, 3, "a")], 34: [("far", 6, 3, "b"), ("far", 7, 3, "b")],
         35: [("far", 7, 3, "g")], 36: [("far", 6, 4, "a")], 37: [("far", 7, 4, "a")],
         40: [("box", 5, "a"), ("box", 5, "b")], 41: [("far", 6, 4, "b")], 42: [("far", 7, 4, "b")], 49: [("far", 7, 5, "a")], 50: [("far", 7, 5, "b")]}
for n in range(32, 57):
    oX += near_at(n, [6, 7]) + extra.get(n, [])
    if n == 32: oX += [("box", 4, "b")]
oY = []
extra = {0: [("box", 0, "a"), ("sp", 4), ("box", 0, "b")], 3: [("far", 2, 0, "a"), ("far", 3, 0, "a"), ("far", 4, 0, "a")],
         4: [("far", 2, 0, "b"), ("far", 3, 0, "b"), ("far", 4, 0, "b")], 5: [("box", 0, "g")],
         8: [("box", 1, "a"), ("sp", 5), ("box", 1, "b")], 9: [("far", 4, 0, "g")], 10: [("far", 5, 0, "g"), ("box", 1, "g")],
         12: [("far", 3, 1, "a")], 13: [("far", 3, 1, "b")], 14: [("far", 4, 1, "a")],
         16: [("box", 2, "a"), ("box", 2, "b")], 17: [("far", 4, 1, "b")], 18: [("far", 5, 1, "a")], 19: [("far", 5, 1, "b")], 20: [("far", 5, 1, "g")],
         21: [("far", 4, 2, "a")], 22: [("far", 4, 2, "b")],
         24: [("box", 3, "a"), ("box", 3, "b")], 28: [("far", 5, 2, "a")], 29: [("far", 5, 2, "b")], 33: [("far", 5, 3, "a")], 34: [("far", 5, 3, "b")]}
for n in range(0, 41): oY += near_at(n, [2, 3, 4, 5]) + extra.get(n, [])
def check(order, tiles):
    want = set()
    for J in tiles:
        for mu in range(min(16, 8 * J + 7) + 1): want.add(("near", J, mu))
        if J >= 4: want.add(("sp", J))
        for d in range(3):
            if J - 4 + d >= 0: want |= {("far", J, J - 4 + d, "a"), ("far", J, J - 4 + d, "b")}
        for d in range(4):
            if J - 4 - d >= 0: want.add(("far", J, J - 4 - d, "g"))
    got = [m for m in order if m[0] != "box"]
    assert len(got) == len(set(got)) and set(got) == want, (want ^ set(got))
    seen = set()
    for m in order:
        if m[0] == "box": seen.add((m[1], m[2]))
        if m[0] == "far": assert (m[2], m[3]) in seen, m
check(oX, [0, 1, 6, 7]); check(oY, [2, 3, 4, 5])
sv = (list(a.vmq), list(a.dsq), list(a.hist))
nx = conv_stream([0, 1, 6, 7], oX)
endpgm(True)
a.raw(".p2align 3")
a.label("L_convY")
a.vmq, a.dsq, a.hist = sv
ny = conv_stream([2, 3, 4, 5], oY)
endpgm(True)
if STAMPS:
    a.label("L_flush")
    a.wait(vm=0, lgkm=0)
    a("s_memrealtime s[88:89]"); a.wait(lgkm=0); a(f"s_mov_b32 s{sST+15}, s88")
    a("s_mov_b64 exec, -1\n v_mov_b32 v2, 0")
    for k in range(16): a(f"v_writelane_b32 v2, s{sST+k}, {k}")
    a(f"s_lshl_b32 s{sT}, s2, 3\n s_add_u32 s{sT}, s{sT}, s{sWAVE}\n s_lshl_b32 s{sT}, s{sT}, 6\n s_add_u32 s{sT}, s{sT}, {WS_STAMP}")
    a(f"v_and_b32 v3, 63, v0\n v_lshlrev_b32 v3, 2, v3\n v_add_u32 v3, s{sT}, v3")
    a("s_mov_b64 exec, 0xffff")
    a(f"global_store_dword v3, v2, {P(sWS)}")
a.label("L_exit")
a("s_endpgm")
a.raw(".p2align 7")
a.label("L_tab")
for (start, w, one) in ((11, 3, 0x3c00), (6, 5, 0x3c00), (3, 3, 0x3c00), (5, 7, 0x3c00), (4, 9, 0x3c00), (12, 2, 0xffff)):
    for l in range(64):
        r, s_ = l & 15, l >> 4
        e = [one if r + start <= 8 * s_ + i < r + start + w else 0 for i in range(8)]
        a.raw("    .long " + ", ".join(hex(e[2 * j] | e[2 * j + 1] << 16) for j in range(4)))
a.label("L_end")
a.raw(f""".section .rodata,"a"
.p2align 6
.amdhsa_kernel {NAME}
  .amdhsa_next_free_vgpr 256
  .amdhsa_next_free_sgpr 100
  .amdhsa_accum_offset 256
  .amdhsa_group_segment_fixed_size 0
  .amdhsa_kernarg_size 136
  .amdhsa_user_sgpr_count 2
  .amdhsa_user_sgpr_kernarg_segment_ptr 1
  .amdhsa_system_sgpr_workgroup_id_x 1
  .amdhsa_float_denorm_mode_32 3
.end_amdhsa_kernel""")
open(sys.argv[1], "w").write(a.text())
print("LDS", LDS_SIZE, "nops", a.nops, "X mfma/reads", nx, "Y", ny, file=sys.stderr)
```

```python
import sys
from asmlib import Asm, vr, sr

NAME = "parallel_sum__ssm_conv_s4__moe_arch_mod__prompt_kernel"
OPT = dict(STAMPS=0, PAD=0, POLLMAX=200000, LNHS=1, POLLDLY=8, IDLEDLY=30, XTDLY=6, H2A=14, H2B=34, WDLY=0, KB=6, LAZY=1, ACK=0, NT=1, NTC=0, NTX=0, PFD=0, ROT=0, PADEV=-1, NTR=-1, NTP=-1, NTW=-1, NTF=-1)
for x in sys.argv[2:]:
    k, v = x.split("="); assert k in OPT, k; OPT[k] = int(v, 0)
STAMPS = OPT["STAMPS"]
NT = ' nt' if OPT['NT'] else ''
NTR, NTP, NTW, NTF = [(' nt' if OPT[k] else '') if OPT[k] >= 0 else NT for k in ('NTR', 'NTP', 'NTW', 'NTF')]
NTC = ' nt' if OPT['NTC'] else ''
NTX = ' nt' if OPT['NTX'] else ''

PSTR = 2048 + 128
WS_ROUT, WS_STAT, WS_PART, WS_XT, WS_STAMP = 0x1000, 0x2000, 0x10000, 0x100000, 0x400000
ROWP = 272; KT_SZ = 56 * ROWP
L_KT = 0
KW_SZ = 7168; KW_T, KW_T1, KW_N, KW_NS = 0, 896 + 4, 1792, 1216
L_KW = L_KT + 4 * KT_SZ
L_U = L_KW + 4 * KW_SZ; USTR = 4640
L_LNI = L_U + 4 * USTR; LNP = 1056
L_WG = L_LNI
L_WU = L_WG + 16384 + 128
L_MISC = L_WU + 16384
M_CNT, M_KEY, M_RT, M_W, M_U, M_ARR, M_T, M_SV, M_SAVE, M_INV, M_DUMMY = 0, 4, 8, 16, 20, 24, 32, 48, 64, 80, 128
LDS_SIZE = L_MISC + M_DUMMY + 256 + 128
assert all(x % 16 == 0 for x in (L_MISC, L_U, L_LNI, L_KW, L_WU)) and LDS_SIZE <= 163840

sX, sARE, sAIM, sBRE, sBIM, sCRE, sCIM, sLDT, sDSK, sBX, sWR, sWG, sWU, sWD, sOUT, sDBG, sWS = [4 + 2 * i for i in range(17)]
sTAG, sWAVE, sCG, sHS, sFFN, sUNIT = 38, 39, 40, 41, 42, 43
sPC = 44
sTLO, sTHI, sPU, sKEY, sIDX = 46, 47, 48, 49, 50
sT = 52
sST = 72
P = lambda r: sr(r, 2)
DPP4 = ("row_shr:1", "row_shr:2", "row_shr:4", "row_shr:8")

a = Asm()
evn = [0]
def stamp(k):
    import inspect
    if OPT["PADEV"] == 999: print("event", evn[0], "stamp", k, "line", inspect.stack()[1].lineno, file=sys.stderr)
    if OPT["PADEV"] == evn[0]:
        a("s_memrealtime s[90:91]"); a.wait(lgkm=0)
    evn[0] += 1
    if STAMPS:
        a("s_memrealtime s[88:89]"); a.wait(lgkm=0); a(f"s_mov_b32 s{sST+k}, s88")
def sleep(n):
    while n > 0: a(f"s_sleep {min(n,127)}"); n -= 127
def endpgm(conv=False):
    if (conv and OPT["PAD"] and OPT["PADEV"] < 0) or OPT["PADEV"] >= 0:
        L = a.newlabel("pad"); a.wait(lgkm=0); a.label(L)
        a("s_memrealtime s[88:89]"); a.wait(lgkm=0)
        a(f"s_sub_u32 s88, s88, s90\n s_cmp_lt_u32 s88, {OPT['PAD']}\n s_sleep 2\n s_cbranch_scc1 {L}")
    if STAMPS: a("s_branch L_flush")
    else: a("s_endpgm")
def lds_spin(vtmp, vaddr, off, want, width=1):
    L, Dn = a.newlabel("spin"), a.newlabel("spun")
    a.wait(lgkm=0)
    a(f"s_mov_b32 s{sT+1}, 0")
    a.label(L)
    a(f"ds_read_b{32*width} {vr(vtmp, width)}, v{vaddr} offset:{off}")
    a.wait(lgkm=0)
    a(f"""v_readfirstlane_b32 s{sT}, v{vtmp}
    s_add_u32 s{sT+1}, s{sT+1}, 1
    s_cmp_eq_u32 s{sT}, {want}
    s_cbranch_scc1 {Dn}
    s_cmp_lt_u32 s{sT+1}, {OPT['POLLMAX']*16}
    s_sleep 1
    s_cbranch_scc1 {L}""")
    a.label(Dn)

a.raw(f"""; One persistent launch: 256 workgroups (one per CU) x 8 waves, 4 channels x 1024 outputs each.
; waves 4-7: layernorm + router (half of the workgroups) or a slice of the expert FFN (other half), hand-offs
; @launch grid=(256,1,1) block=(512,1,1) lds={LDS_SIZE}
.amdgcn_target "amdgcn-amd-amdhsa--gfx950"
.text
.globl {NAME}
.p2align 8
.type {NAME},@function
{NAME}:""")
a(f"""
s_cmp_ge_u32 s2, 0x100
s_cbranch_scc1 L_exit
s_load_dwordx16 s[4:19], s[0:1], 0
s_load_dwordx16 s[20:35], s[0:1], 64
s_load_dwordx2 s[36:37], s[0:1], 128
""")
if OPT["PAD"] and OPT["PADEV"] < 0: a("s_memrealtime s[90:91]")
if OPT["PADEV"] >= 0: a("s_mov_b32 s90, 0")
if STAMPS: a("s_memrealtime s[88:89]")
a(f"s_getpc_b64 {P(sPC)}")
a.label("L_pc")
a(f"""
v_lshrrev_b32 v2, 6, v0
s_and_b32 s{sT+1}, s2, 0xf8
v_add_lshl_u32 v3, v2, s{sT+1}, 7
v_readfirstlane_b32 s{sWAVE}, v2
v_min_u32 v3, L_end-L_pc-4, v3
global_load_dword v255, v3, {P(sPC)}{NTC}
v_and_b32 v1, 63, v0
s_and_b32 s{sT}, s2, 7
s_lshl_b32 s{sCG}, s{sT}, 4
s_bfe_u32 s{sT+2}, s2, 0x40003
s_add_u32 s{sCG}, s{sCG}, s{sT+2}
s_lshr_b32 s{sHS}, s2, 7
v_lshlrev_b32 v2, 4, v1
""")
if STAMPS:
    for k in range(16): a(f"s_mov_b32 s{sST+k}, 0")
a(f"""
s_cmp_lt_u32 s{sWAVE}, 4
s_cbranch_scc1 L_conv
""")

XR, WR = 4, 20
WD, WDP, WF = 64, 96, 128
vFL, vMI = 60, 61
a(f"""
s_setprio 3
s_sub_u32 s{sUNIT}, s{sWAVE}, 4
s_lshl_b32 s{sT+3}, s{sCG}, 14
s_lshl_b32 s{sT+4}, s{sUNIT}, 12
s_add_u32 s{sT+3}, s{sT+3}, s{sT+4}
v_add_u32 v3, s{sT+3}, v2
v_mov_b32 v{vMI}, {L_MISC}
s_cmp_lg_u32 s{sUNIT}, 3
s_cbranch_scc1 L_noinit
v_lshl_add_u32 v16, v1, 2, v{vMI}
v_mov_b32 v17, 0
ds_write_b32 v16, v17
""")
a.label("L_noinit")
a.wait(lgkm=0)
if STAMPS: a(f"s_mov_b32 s{sST}, s88")
a(f"""
s_load_dword s{sTAG}, {P(sWS)}, 0
s_cmp_lg_u32 s{sHS}, {OPT['LNHS']}
s_cbranch_scc1 L_noln
""")
for r in range(4): a(f"global_load_dwordx4 {vr(XR+4*r,4)}, v3, {P(sX)} offset:{1024*r}{NTR}")
a(f"global_load_dwordx4 {vr(WR,4)}, v2, {P(sWR)}{NTR}")
if STAMPS: a("s_memrealtime s[96:97]")
def flagaddr():
    a(f"""
    v_lshlrev_b32 v24, 2, v1
    v_add_u32 v24, {L_MISC+M_DUMMY}, v24
    v_add_u32 v{vFL}, s{sUNIT}, v{vMI}
    v_cmp_eq_u32 vcc, 0, v1
    s_mov_b32 s{sFFN}, 0
    s_nop 0
    v_cndmask_b32 v{vFL}, v24, v{vFL}, vcc
    """)
def tagcalc():
    a(f"""
    s_add_u32 s{sTAG}, s{sTAG}, 1
    s_and_b32 s{sTLO}, s{sTAG}, 0xffff
    s_lshr_b32 s{sTHI}, s{sTAG}, 16
    """)
flagaddr()
vTK, vC9, vMK, vSA, vIW, vTR, vXS, vRA = 52, 53, 54, 55, 56, 57, 58, 59
a(f"""
s_lshl_b32 s{sT+5}, s{sCG}, 4
s_lshl_b32 s{sT+6}, s{sUNIT}, 2
s_add_u32 s{sT+5}, s{sT+5}, s{sT+6}
v_lshrrev_b32 v25, 4, v1
v_add_u32 v{vSA}, s{sT+5}, v25
v_sub_u32 v{vTK}, 2047, v{vSA}
v_lshlrev_b32 v{vSA}, 3, v{vSA}
v_add_u32 v{vSA}, {WS_STAT}, v{vSA}
v_mov_b32 v{vC9}, 0x3b000000
v_mov_b32 v{vMK}, 0xfff8fff8
s_mul_i32 s{sT+6}, s{sUNIT}, {4*LNP}
s_lshr_b32 s{sT+7}, s{sUNIT}, 1
s_lshl_b32 s{sT+7}, s{sT+7}, 7
s_add_u32 s{sT+6}, s{sT+6}, s{sT+7}
s_add_u32 s{sT+6}, s{sT+6}, {L_LNI}
v_add_u32 v{vIW}, s{sT+6}, v2
v_bfe_u32 v24, v1, 2, 2
v_mul_u32_u24 v24, {LNP}, v24
v_lshl_add_u32 v24, v25, 4, v24
v_and_b32 v26, 1, v1
v_mul_u32_u24 v26, {8*LNP+128}, v26
v_bfe_u32 v27, v1, 1, 1
v_lshl_add_u32 v26, v27, 3, v26
s_lshl_b32 s{sT+6}, s{sUNIT}, 8
s_add_u32 s{sT+6}, s{sT+6}, {L_LNI}
v_add3_u32 v{vTR}, v24, v26, s{sT+6}
v_lshrrev_b32 v24, 3, v1
v_lshlrev_b32 v24, 14, v24
v_and_b32 v26, 7, v1
v_lshl_add_u32 v24, v26, 4, v24
s_lshl_b32 s{sT+6}, s{sUNIT}, 19
s_lshl_b32 s{sT+7}, s{sCG}, 7
s_add_u32 s{sT+6}, s{sT+6}, s{sT+7}
s_add_u32 s{sT+6}, s{sT+6}, {WS_XT}
v_add_u32 v{vXS}, s{sT+6}, v24
s_lshl_b32 s{sT+6}, s2, 3
s_add_u32 s{sT+6}, s{sT+6}, {WS_ROUT}
v_mov_b32 v{vRA}, s{sT+6}
""")
sC9, sC1, sTG, sRS = sT + 2, sT + 3, sT + 4, sT + 8
a(f"s_mov_b32 s{sC9}, 0x3b003b00\n s_mov_b32 s{sC1}, 0x3f803f80")
if STAMPS: a("s_memrealtime s[92:93]")
a("s_barrier")
a.wait(lgkm=0)
if STAMPS: a(f"s_mov_b32 s{sST+10}, s92\n s_mov_b32 s{sST+14}, s96")
tagcalc()
a(f"s_and_b32 s{sT}, s{sUNIT}, 1\n s_mul_i32 s{sT}, s{sT}, 12\n s_lshr_b32 s{sT}, s{sTAG}, s{sT}")
for r in range(4):
    a(f"s_bfe_u32 s{sTG+r}, s{sT}, {0x30000+3*r}\n s_mul_i32 s{sTG+r}, s{sTG+r}, 0x10001")
a.wait(vm=0)
stamp(1)
S = lambda v, r: 24 + 4 * v + r
Wv, W2 = 36, 37
for i in range(4):
    z = lambda r: "0" if i == 0 else f"v{r}"
    for r in range(4):
        x = XR + 4 * r + i
        a(f"""
        v_dot2_f32_bf16 v{S(0,r)}, v{x}, s{sC9}, {z(S(0,r))}
        v_dot2_f32_bf16 v{S(1,r)}, v{x}, v{x}, {z(S(1,r))}
        v_dot2_f32_bf16 v{S(2,r)}, v{x}, v{WR+i}, {z(S(2,r))}
        """)
        if r == 0: a(f"v_dot2_f32_bf16 v{Wv}, v{WR+i}, s{sC1}, {z(Wv)}")
a(f"v_mov_b32 v{W2}, v{Wv}")
for v in range(3):
    a(f"v_permlane32_swap_b32 v{S(v,0)}, v{S(v,2)}\n v_permlane32_swap_b32 v{S(v,1)}, v{S(v,3)}")
a(f"v_permlane32_swap_b32 v{Wv}, v{W2}")
for v in range(3):
    a(f"v_add_f32 v{S(v,0)}, v{S(v,0)}, v{S(v,2)}\n v_add_f32 v{S(v,1)}, v{S(v,1)}, v{S(v,3)}")
    if v == 0: a(f"v_add_f32 v{Wv}, v{Wv}, v{W2}")
    if v == 1: a(f"v_mov_b32 v{W2}, v{Wv}")
for v in range(3): a(f"v_permlane16_swap_b32 v{S(v,0)}, v{S(v,1)}")
a(f"v_permlane16_swap_b32 v{Wv}, v{W2}")
for v in range(3): a(f"v_add_f32 v{S(v,0)}, v{S(v,0)}, v{S(v,1)}")
a(f"v_add_f32 v{Wv}, v{Wv}, v{W2}")
A1, A2, A3 = S(0, 0), S(1, 0), S(2, 0)
for st in DPP4:
    for r in (A1, A2, A3, Wv):
        a(f"v_add_f32_dpp v{r}, v{r}, v{r} {st} row_mask:0xf bank_mask:0xf bound_ctrl:0")
MB, SB, RS, NM, T0, T1, KEY, T2_ = 38, 39, 40, 41, 42, 43, 44, 45
a(f"""
v_mul_f32 v{T0}, v{A2}, v{vC9}
v_fma_f32 v{T0}, -v{A1}, v{A1}, v{T0}
v_max_f32 v{T0}, 0, v{T0}
v_cvt_pk_bf16_f32 v{T1}, v{A1}, v{T0}
v_and_b32 v{T0}, 0xffff0000, v{T1}
v_lshlrev_b32 v{MB}, 16, v{T1}
v_add_f32 v{T0}, 0x3727c5ac, v{T0}
v_cvt_pk_bf16_f32 v{T0}, v{T0}, v{T0}
v_lshlrev_b32 v{T0}, 16, v{T0}
v_sqrt_f32 v{T0}, v{T0}
v_fma_f32 v{KEY}, -v{MB}, v{Wv}, v{A3}
v_cvt_pk_bf16_f32 v{T0}, v{T0}, v{T0}
v_lshlrev_b32 v{SB}, 16, v{T0}
v_rcp_f32 v{RS}, v{SB}
v_or_b32 v{T0}, s{sTLO}, v{MB}
v_mul_f32 v{KEY}, v{KEY}, v{RS}
v_or_b32 v{T1}, s{sTHI}, v{SB}
v_ashrrev_i32 v{T2_}, 31, v{KEY}
v_or_b32 v{T2_}, 0x80000000, v{T2_}
v_xor_b32 v{KEY}, v{KEY}, v{T2_}
v_and_b32 v{KEY}, 0xfffff800, v{KEY}
v_or_b32 v{KEY}, v{KEY}, v{vTK}
v_mov_b32 v46, 1
s_mov_b32 exec_lo, 0x80008000
s_mov_b32 exec_hi, 0x80008000
ds_max_u32 v{vMI}, v{KEY} offset:{M_KEY}
s_mov_b64 exec, 0x8000
ds_add_rtn_u32 v47, v{vMI}, v46 offset:{M_ARR}
s_mov_b32 exec_lo, 0x80008000
s_mov_b32 exec_hi, 0x80008000
global_store_dwordx2 v{vSA}, {vr(T0,2)}, {P(sWS)} sc1
s_mov_b64 exec, -1
v_mul_f32 v{NM}, -v{MB}, v{RS}
""")
for r in range(4):
    a(f"v_readlane_b32 s{sRS+2*r}, v{RS}, {16*r+15}")
for r in range(4):
    a(f"v_readlane_b32 s{sRS+2*r+1}, v{NM}, {16*r+15}")
UX = 64
def xnrow(r, part):
    for i in range(4):
        x, u = XR + 4 * r + i, UX + 8 * r + 2 * i
        if part == 0: a(f"v_lshlrev_b32 v{u}, 16, v{x}\n v_and_b32 v{u+1}, 0xffff0000, v{x}")
        if part == 1: a(f"v_pk_fma_f32 {vr(u,2)}, {vr(u,2)}, {P(sRS+2*r)}, {P(sRS+2*r)} op_sel:[0,0,1] op_sel_hi:[1,0,1]")
        if part == 2: a(f"v_cvt_pk_f16_f32 v{x}, v{u}, v{u+1}")
        if part == 3: a(f"v_add_u32 v{x}, 0x40004, v{x}")
        if part == 4: a(f"v_and_or_b32 v{x}, v{x}, v{vMK}, s{sTG+r}")
xnrow(0, 0)
a(f"v_readlane_b32 s{sT}, v47, 15\n s_cmp_lg_u32 s{sT}, 3\n s_cbranch_scc1 L_norout")
a(f"""
ds_read_b32 v48, v{vMI} offset:{M_KEY}
v_mov_b32 v49, s{sTAG}
s_mov_b64 exec, 1
""")
a(f"global_store_dwordx2 v{vRA}, v[48:49], {P(sWS)} sc1\n s_mov_b64 exec, -1")
a.label("L_norout")
stamp(13)
for r in range(4):
    for part in range(1 if r == 0 else 0, 5): xnrow(r, part)
for r in range(4): a(f"ds_write_b128 v{vIW}, {vr(XR+4*r,4)} offset:{r*LNP}")
a(f"ds_write_b8 v{vFL}, v46 offset:{M_CNT}")
a(f"v_add_u32 v24, 0x20000, v{vXS}\n v_add_u32 v25, 0x40000, v{vXS}\n v_add_u32 v26, 0x60000, v{vXS}")
stamp(2)
lds_spin(28, vMI, M_CNT, 0x01010101)
for b in range(4):
    a(f"ds_read_b64_tr_b16 {vr(XR+4*b,2)}, v{vTR} offset:{64*b}")
    a(f"ds_read_b64_tr_b16 {vr(XR+4*b+2,2)}, v{vTR} offset:{64*b+4*LNP}")
for b in range(4):
    a(f"global_store_dwordx4 v{vXS if b == 0 else 23+b}, {vr(XR+4*b,4)}, {P(sWS)} sc1")
stamp(3)
if OPT["ACK"]: a.wait(vm=0); stamp(12)
a(f"s_cmp_ge_u32 s{sUNIT}, 2\n s_cbranch_scc1 L_xt")
sleep(OPT["POLLDLY"])
a(f"s_cmp_eq_u32 s{sUNIT}, 0\n s_cbranch_scc1 L_rpoll")
endpgm()

a.label("L_noln")
a.reset(); a.smem_any = True
flagaddr()
a(f"""
s_lshl_b32 s{sPU}, s{sCG}, 1
s_add_u32 s{sPU}, s{sPU}, s{sUNIT}
s_cmp_lt_u32 s{sCG}, 112
s_cselect_b32 s{sFFN}, 1, 0
s_cmp_lt_u32 s{sUNIT}, 2
s_cselect_b32 s{sFFN}, s{sFFN}, 0
s_cmp_eq_u32 s{sUNIT}, 0
s_cselect_b32 s{sT+8}, s{sWG}, s{sWU}
s_cselect_b32 s{sT+9}, s{sWG+1}, s{sWU+1}
s_mul_i32 s{sT+10}, s{sUNIT}, {L_WU-L_WG}
s_add_u32 s{sT+10}, s{sT+10}, {L_WG}
v_lshrrev_b32 v16, 1, v1
v_mul_u32_u24 v16, 3584, v16
v_and_b32 v17, 1, v1
v_lshl_add_u32 v16, v17, 4, v16
s_lshl_b32 s{sT+11}, s{sCG}, 5
v_add_u32 v21, s{sT+11}, v16
s_lshl_b32 s{sT+11}, s{sPU}, 13
s_add_u32 s{sT+11}, s{sT+11}, 4096
v_lshl_add_u32 v22, v1, 3, s{sT+11}
s_and_b32 s{sT+11}, s{sCG}, {3 if OPT['ROT'] else 0}
s_lshl_b32 s{sT+11}, s{sT+11}, 2
s_add_u32 s{sT+12}, s{sT+11}, 16
s_lshl_b32 s{sT}, s2, 3
s_add_u32 s{sT}, s{sT}, {WS_ROUT}
v_mov_b32 v16, s{sT}
v_mov_b32 v18, 0
s_barrier
""")
a.wait(lgkm=0)
tagcalc()
a(f"""
s_cmp_lg_u32 s{sUNIT}, 0
s_cbranch_scc1 L_nonull
v_mov_b32 v19, s{sTAG}
s_mov_b64 exec, 1
global_store_dwordx2 v16, v[18:19], {P(sWS)} sc1
s_mov_b64 exec, -1
""")
a.label("L_nonull")
stamp(13)
a(f"s_cmp_eq_u32 s{sFFN}, 0\n s_cbranch_scc1 L_noffn")
for f in range(8):
    for h in range(2):
        a(f"global_load_dwordx2 {vr(WD+4*f+2*h,2)}, v22, {P(sWD)} offset:{f*1024+512*h-4096}{NTW}")
sleep(OPT["WDLY"])
a.label("L_dma")
a(f"""
s_and_b32 s{sT+13}, s{sT+11}, 15
s_lshl_b32 s{sT+14}, s{sT+13}, 10
s_add_u32 m0, s{sT+14}, s{sT+10}
s_mul_i32 s{sT+13}, s{sT+13}, {32*3584}
s_add_u32 s{sT+14}, s{sT+8}, s{sT+13}
s_addc_u32 s{sT+15}, s{sT+9}, 0
s_add_u32 s{sT+11}, s{sT+11}, 1
s_cmp_lg_u32 s{sT+11}, s{sT+12}
global_load_lds_dwordx4 v21, {P(sT+14)}{NTW}
s_cbranch_scc1 L_dma
""")
a.label("L_noffn")
stamp(1)
a(f"s_cmp_ge_u32 s{sUNIT}, 2\n s_cbranch_scc1 L_xt")
a(f"s_cmp_eq_u32 s{sFFN}, 1\n s_cbranch_scc1 L_ffnprep")
sleep(OPT["IDLEDLY"])
a(f"s_cmp_eq_u32 s{sUNIT}, 0\n s_cbranch_scc1 L_rpoll")
endpgm()
a.label("L_ffnprep")
a.reset()
pairs = [(0, 2), (4, 6), (1, 3), (5, 7)]
a(f"""
s_mov_b32 s{sT+2}, 0x05040100
s_mov_b32 s{sT+3}, 0x07060302
v_bfe_u32 v16, v1, 2, 2
v_lshrrev_b32 v17, 4, v1
v_lshl_add_u32 v16, v17, 3, v16
v_lshlrev_b32 v16, 5, v16
v_and_b32 v17, 1, v1
v_lshl_add_u32 v16, v17, 3, v16
v_bfe_u32 v17, v1, 1, 1
v_mul_u32_u24 v17, {L_WU-L_WG}, v17
s_lshl_b32 s{sT+4}, s{sUNIT}, 4
s_add_u32 s{sT+4}, s{sT+4}, {L_WG}
v_add3_u32 v20, v16, v17, s{sT+4}
v_mov_b32 v16, 1
s_waitcnt vmcnt(16)
""")
for pi, (fa, fb) in enumerate(pairs):
    for c in range(4):
        a(f"v_perm_b32 v{WDP+8*pi+2*c}, v{WD+4*fb+c}, v{WD+4*fa+c}, s{sT+2}")
        a(f"v_perm_b32 v{WDP+8*pi+2*c+1}, v{WD+4*fb+c}, v{WD+4*fa+c}, s{sT+3}")
a(f"s_waitcnt vmcnt(0)\n ds_write_b8 v{vFL}, v16 offset:{M_W}")
stamp(2)
lds_spin(18, vMI, M_W, 0x0101)
for ks in range(16):
    for hh in range(2):
        a(f"ds_read_b64_tr_b16 {vr(WF+4*ks+2*hh,2)}, v20 offset:{ks*1024+hh*128}")
stamp(4)
a.label("L_rpoll")
a.wait(lgkm=0)
a.reset()
a(f"""
v_add_u32 v20, {WS_ROUT}, v2
v_and_b32 v21, 15, v1
v_lshlrev_b32 v21, 6, v21
v_lshrrev_b32 v22, 4, v1
v_lshl_add_u32 v21, v22, 4, v21
s_mov_b32 s{sT+1}, 0
""")
a.label("L_rp1")
a(f"""
global_load_dwordx4 v[24:27], v20, {P(sWS)} sc1
global_load_dwordx4 v[28:31], v20, {P(sWS)} offset:1024 sc1
s_add_u32 s{sT+1}, s{sT+1}, 1
""")
a.wait(vm=0)
a(f"""
v_xor_b32 v25, s{sTAG}, v25
v_xor_b32 v27, s{sTAG}, v27
v_xor_b32 v29, s{sTAG}, v29
v_xor_b32 v31, s{sTAG}, v31
v_max3_u32 v24, v24, v26, v28
v_or3_b32 v25, v25, v27, v29
v_max_u32 v24, v24, v30
v_or_b32 v25, v25, v31
v_cmp_ne_u32 vcc, 0, v25
s_cbranch_vccz L_rp2
s_cmp_lt_u32 s{sT+1}, {OPT['POLLMAX']}
s_cbranch_scc1 L_rp1
""")
a.label("L_rp2")
for st in DPP4: a(f"v_max_u32_dpp v24, v24, v24 {st} row_mask:0xf bank_mask:0xf bound_ctrl:0")
a(f"""
v_max_u32_dpp v24, v24, v24 row_bcast:15 row_mask:0xa bank_mask:0xf
v_max_u32_dpp v24, v24, v24 row_bcast:31 row_mask:0xc bank_mask:0xf
v_readlane_b32 s{sKEY}, v24, 63
s_and_b32 s{sIDX}, s{sKEY}, 0x7ff
s_sub_u32 s{sIDX}, 2047, s{sIDX}
s_lshl_b32 s{sT+6}, s{sIDX}, 10
s_lshl_b32 s{sT+7}, s{sIDX}, 3
s_add_u32 s{sT+7}, s{sT+7}, {WS_STAT}
v_add_u32 v21, s{sT+6}, v21
v_mov_b32 v22, s{sT+7}
s_cmp_eq_u32 s{sFFN}, 0
s_cbranch_scc1 L_rp3
global_load_dwordx4 v[24:27], v21, {P(sX)}{NTX}
global_load_dwordx2 v[28:29], v22, {P(sWS)} sc1
""")
a.label("L_rp3")
a(f"""
s_cmp_lg_u32 s{sUNIT}, 0
s_cbranch_scc1 L_rp4
v_mov_b32 v30, 1
v_mov_b32 v31, s{sIDX}
s_mov_b64 exec, 1
ds_write_b64 v{vMI}, v[30:31] offset:{M_RT}
s_cmp_lg_u32 s2, 0
s_cbranch_scc1 L_rp5
v_mov_b32 v30, 0
v_mov_b32 v31, s{sTAG}
global_store_dword v30, v31, {P(sWS)} sc1
""")
a.label("L_rp5")
a("s_mov_b64 exec, -1")
a.label("L_rp4")
stamp(5)
a(f"s_cmp_eq_u32 s{sFFN}, 0\n s_cbranch_scc1 L_hop2b")
a.reset()
a(f"s_mov_b32 s{sT+1}, 0")
a.label("L_st1")
a.wait(vm=0)
a(f"""
v_xor_b32 v28, s{sTLO}, v28
v_xor_b32 v29, s{sTHI}, v29
v_or_b32 v30, v28, v29
v_and_b32 v30, 0xffff, v30
v_cmp_ne_u32 vcc, 0, v30
s_cbranch_vccz L_st2
s_add_u32 s{sT+1}, s{sT+1}, 1
s_cmp_ge_u32 s{sT+1}, {OPT['POLLMAX']}
s_cbranch_scc1 L_st2
global_load_dwordx2 v[28:29], v22, {P(sWS)} sc1
s_branch L_st1
""")
a.label("L_st2")
a.reset()
stamp(6)
FX = 36
a(f"v_rcp_f32 v32, v29")
for i in range(4):
    a(f"v_lshlrev_b32 v{FX+2*i}, 16, v{24+i}\n v_and_b32 v{FX+2*i+1}, 0xffff0000, v{24+i}")
a(f"v_mul_f32 v33, -v28, v32")
for i in range(4):
    a(f"v_pk_fma_f32 {vr(FX+2*i,2)}, {vr(FX+2*i,2)}, v[32:33], v[32:33] op_sel:[0,0,1] op_sel_hi:[1,0,1]")
for i in range(4): a(f"v_cvt_pk_bf16_f32 v{24+i}, v{FX+2*i}, v{FX+2*i+1}")
BB = [44, 48]; DG = 32
def bc(ks):
    for i in range(4):
        a(f"v_mov_b32_dpp v{BB[ks&1]+i}, v{24+i} row_newbcast:{ks} row_mask:0xf bank_mask:0xf")
bc(0)
for ks in range(16):
    if ks < 15: bc(ks + 1)
    a(f"v_mfma_f32_16x16x32_bf16 {vr(DG,4)}, {vr(WF+4*ks,4)}, {vr(BB[ks&1],4)}, {'0' if ks == 0 else vr(DG,4)}")
sTB = sT + 6
a(f"""
s_lshr_b32 s{sTB+1}, s{sTAG}, 8
s_lshr_b32 s{sTB+2}, s{sTAG}, 16
s_lshr_b32 s{sTB+3}, s{sTAG}, 24
s_mul_i32 s{sT}, s{sPU}, {PSTR}
s_add_u32 s{sT}, s{sT}, {WS_PART}
v_add_u32 v20, s{sT}, v2
v_mov_b32 v21, 0xff
v_permlane32_swap_b32 v{DG}, v{DG+1}
v_permlane32_swap_b32 v{DG+2}, v{DG+3}
v_mul_f32 v36, 0xbfb8aa3b, v{DG}
v_mul_f32 v37, 0xbfb8aa3b, v{DG+2}
v_exp_f32 v36, v36
v_exp_f32 v37, v37
v_mul_f32 v{DG}, v{DG}, v{DG+1}
v_add_f32 v36, 1.0, v36
v_add_f32 v37, 1.0, v37
v_rcp_f32 v36, v36
v_rcp_f32 v37, v37
v_mul_f32 v{DG+2}, v{DG+2}, v{DG+3}
v_mul_f32 v36, v36, v{DG}
v_mul_f32 v37, v37, v{DG+2}
v_cvt_pk_bf16_f32 v36, v36, v37
""")
sH = sT + 12
for pi in range(4): a(f"v_readlane_b32 s{sH+pi}, v36, {16*pi}")
Y = 40
for half in range(2):
    for pi in range(4):
        for c in range(4 * half, 4 * half + 4):
            a(f"v_dot2_f32_bf16 v{Y+c}, v{WDP+8*pi+c}, s{sH+pi}, {'0' if pi == 0 else 'v%d' % (Y+c)}")
    if half == 1:
        a(f"global_store_dwordx4 v20, {vr(Y,4)}, {P(sWS)} sc1")
    for c in range(4 * half, 4 * half + 4):
        a(f"v_bfi_b32 v{Y+c}, v21, s{sTAG if c % 4 == 0 else sTB + c % 4}, v{Y+c}")
a(f"global_store_dwordx4 v20, {vr(Y+4,4)}, {P(sWS)} offset:1024 sc1")
stamp(7)
a(f"s_cmp_eq_u32 s{sUNIT}, 0\n s_cbranch_scc1 L_hop2")
endpgm()
a.label("L_hop2b")
sleep(OPT["H2B"] - OPT["H2A"])
a.label("L_hop2")
a.reset()
a(f"""
s_lshr_b32 s{sT}, s{sIDX}, 8
s_add_u32 s{sT}, s{sT}, 6
s_and_b32 s{sT}, s{sT}, 7
s_lshr_b32 s{sT}, s{sT}, 2
s_xor_b32 s{sT}, s{sT}, 1
s_cmp_eq_u32 s{sT}, s{sHS}
s_cbranch_scc1 L_h1
""")
endpgm()
a.label("L_h1")
a(f"""
s_and_b32 s{sTB}, s{sTAG}, 0xff
s_bfe_u32 s{sTB+1}, s{sTAG}, 0x80008
s_bfe_u32 s{sTB+2}, s{sTAG}, 0x80010
s_lshr_b32 s{sTB+3}, s{sTAG}, 24
s_lshl_b32 s{sT}, s{sCG}, 4
s_add_u32 s{sT}, s{sT}, {WS_PART}
v_mul_u32_u24 v20, {PSTR}, v1
v_add_u32 v20, s{sT}, v20
v_add_u32 v21, {64*PSTR}, v20
v_add_u32 v22, {128*PSTR}, v20
v_add_u32 v23, {192*PSTR}, v20
v_mov_b32 v36, s{sTB}
v_mov_b32 v37, s{sTB+1}
v_mov_b32 v38, s{sTB+2}
v_mov_b32 v39, s{sTB+3}
s_and_b32 s{sT}, s{sKEY}, 0xfffff800
s_xor_b32 s{sT+2}, s{sT}, 0x80000000
s_not_b32 s{sT+3}, s{sT}
s_bitcmp1_b32 s{sT}, 31
s_cselect_b32 s{sT}, s{sT+2}, s{sT+3}
v_mov_b32 v44, s{sT}
v_mul_f32 v44, 0xbfb8aa3b, v44
v_exp_f32 v44, v44
s_mov_b32 s{sT+1}, 0
v_add_f32 v44, 1.0, v44
v_rcp_f32 v44, v44
s_lshl_b32 s{sT}, s{sIDX}, 10
s_lshl_b32 s{sT+2}, s{sCG}, 3
s_add_u32 s{sT}, s{sT}, s{sT+2}
v_lshrrev_b32 v45, 4, v1
v_and_b32 v46, 1, v45
v_lshrrev_b32 v45, 1, v45
v_lshl_add_u32 v45, v46, 1, v45
v_lshl_add_u32 v46, v45, 2, v{vMI}
v_lshl_add_u32 v45, v45, 1, s{sT}
""")
sleep(OPT["H2A"] - 2)
a.label("L_h2")
a(f"""
global_load_dwordx4 v[24:27], v20, {P(sWS)} sc1
global_load_dwordx4 v[28:31], v21, {P(sWS)} sc1
global_load_dwordx4 v[32:35], v22, {P(sWS)} sc1
s_mov_b32 exec_hi, 0
global_load_dwordx4 v[36:39], v23, {P(sWS)} sc1
s_mov_b32 exec_hi, -1
s_add_u32 s{sT+1}, s{sT+1}, 1
""")
a.wait(vm=0)
for i in range(4): a(f"v_xor_b32 v{40+i}, v{24+i}, v{28+i}")
for i in range(4): a(f"v_xor_b32 v{48+i}, v{32+i}, v{36+i}")
for i in range(4): a(f"v_xor_b32 v{16+i}, s{sTB+i}, v{24+i}")
a(f"""
v_or3_b32 v40, v40, v41, v42
v_or3_b32 v48, v48, v49, v50
v_or3_b32 v16, v16, v17, v18
v_xor_b32 v41, v24, v32
v_xor_b32 v42, v25, v33
v_xor_b32 v49, v26, v34
v_xor_b32 v50, v27, v35
v_or3_b32 v40, v40, v43, v48
v_or3_b32 v16, v16, v19, v51
v_or3_b32 v41, v41, v42, v49
v_or3_b32 v40, v40, v16, v50
v_or_b32 v40, v40, v41
v_and_b32 v40, 0xff, v40
v_cmp_ne_u32 vcc, 0, v40
s_cbranch_vccz L_h3
s_cmp_lt_u32 s{sT+1}, {OPT['POLLMAX']}
s_cbranch_scc1 L_h2
""")
a.label("L_h3")
stamp(8)
if STAMPS: a(f"s_mov_b32 s{sST+11}, s{sT+1}")
a(f"""
v_pk_add_f32 v[24:25], v[24:25], v[28:29]
v_pk_add_f32 v[26:27], v[26:27], v[30:31]
v_pk_add_f32 v[32:33], v[32:33], v[36:37]
v_pk_add_f32 v[34:35], v[34:35], v[38:39]
v_pk_add_f32 v[24:25], v[24:25], v[32:33]
v_pk_add_f32 v[26:27], v[26:27], v[34:35]
v_permlane32_swap_b32 v24, v25
v_permlane32_swap_b32 v26, v27
v_add_f32 v24, v24, v25
v_add_f32 v26, v26, v27
v_permlane16_swap_b32 v24, v26
v_add_f32 v24, v24, v26
""")
for st in DPP4: a(f"v_add_f32_dpp v24, v24, v24 {st} row_mask:0xf bank_mask:0xf bound_ctrl:0")
lds_spin(18, vMI, M_SV, 1)
a(f"""
ds_read_b32 v25, v46 offset:{M_SAVE}
v_fma_f32 v25, v24, v44, v25
v_cvt_pk_bf16_f32 v25, v25, v25
s_mov_b32 exec_lo, 0x80008000
s_mov_b32 exec_hi, 0x80008000
global_store_short v45, v25, {P(sOUT)}
""")
stamp(9)
endpgm()
a.label("L_xt")
a.reset()
XT, ST = 64, 96
sE = sT + 2
sJ = sT + 6
a(f"s_sub_u32 s{sUNIT}, s{sUNIT}, 2\n v_subrev_u32 v{vFL}, 2, v{vFL}")
for i in range(4):
    a(f"""
    s_bfe_u32 s{sE+i}, s{sTAG}, {0x30000 + 6*i}
    s_bfe_u32 s{sT}, s{sTAG}, {0x30000 + 6*i + 3}
    s_lshl_b32 s{sT}, s{sT}, 16
    s_or_b32 s{sE+i}, s{sE+i}, s{sT}
    """)
vUW, vTOK, vSTA, vYR, vUR, vOA = 24, 25, 26, 27, 28, 29
a(f"""
s_cmp_eq_u32 s{sHS}, 0
s_cselect_b32 s{sJ}, 0, 512
s_cselect_b32 s{sJ+2}, 512, 0
s_add_u32 s{sJ+1}, s{sJ}, 256
s_add_u32 s{sJ+2}, s{sJ+2}, 1024
s_add_u32 s{sJ+3}, s{sJ+2}, 256
s_lshl_b32 s{sT}, s{sCG}, 14
s_lshl_b32 s{sT+1}, s{sUNIT}, 10
s_add_u32 s{sT}, s{sT}, s{sT+1}
s_add_u32 s{sT}, s{sT}, {WS_XT + 4096}
v_add_u32 v20, s{sT}, v2
v_add_u32 v21, 0x2000, v20
v_and_b32 v17, 3, v1
v_mul_u32_u24 v17, {USTR}, v17
v_lshrrev_b32 v16, 2, v1
v_lshl_add_u32 v17, v16, 4, v17
s_lshl_b32 s{sT}, s{sUNIT}, 8
s_add_u32 s{sT}, s{sT}, {L_U + 512}
v_add_u32 v{vUW}, s{sT}, v17
s_lshl_b32 s{sT}, s{sUNIT}, 6
v_add_u32 v{vTOK}, s{sT}, v1
v_lshlrev_b32 v{vSTA}, 3, v{vTOK}
v_add_u32 v{vSTA}, {WS_STAT}, v{vSTA}
v_lshlrev_b32 v{vYR}, 2, v{vTOK}
v_lshlrev_b32 v{vUR}, 1, v{vTOK}
v_add_u32 v{vUR}, {L_U + 512}, v{vUR}
s_lshl_b32 s{sT}, s{sCG}, 3
v_lshl_add_u32 v{vOA}, v{vTOK}, 10, s{sT}
""")
for q in range(4):
    a(f"s_lshl_b32 s{sT}, s{sJ+q}, 3\n v_add_u32 v{30+q}, s{sT}, v{vSTA}")
for j in range(8): a(f"v_mov_b32 v{XT+24+j}, s{sE+j%4}")
lds_spin(18, vMI, M_RT, 1, width=2)
a(f"v_readfirstlane_b32 s{sIDX}, v19")
sleep(OPT["XTDLY"])
stamp(4)
a(f"s_mov_b32 s{sT+1}, 0")
a.label("L_x1")
for i in range(8):
    if i == 6: a(f"s_cmp_eq_u32 s{sHS}, 1\n s_cbranch_scc1 L_x1b")
    a(f"global_load_dwordx4 {vr(XT+4*i,4)}, v{20+i//4}, {P(sWS)} offset:{(i%4)*2048-4096} sc1")
a.label("L_x1b")
a(f"s_add_u32 s{sT+1}, s{sT+1}, 1")
for i in range(8):
    if i < 6: a(f"s_waitcnt vmcnt({5-i})" if False else "s_nop 0") if False else None
a.vmq = [set() for _ in range(0)]
for i in range(8):
    a(f"s_waitcnt vmcnt({max(5-i,0)})")
    for j in range(4): a(f"v_xor_b32 v{112+4*(i%2)+j}, s{sE+j}, v{XT+4*i+j}")
    a(f"ds_write_b128 v{vUW}, {vr(112+4*(i%2),4)} offset:{512*i}")
    b = 112 + 4 * (i % 2)
    if i == 0: a(f"v_or3_b32 v16, v{b}, v{b+1}, v{b+2}\n v_mov_b32 v17, v{b+3}")
    else: a(f"v_or3_b32 v16, v16, v{b}, v{b+1}\n v_or3_b32 v17, v17, v{b+2}, v{b+3}")
a(f"""
v_or_b32 v16, v16, v17
v_and_b32 v16, 0x70007, v16
v_cmp_ne_u32 vcc, 0, v16
s_cbranch_vccz L_x2
s_cmp_lt_u32 s{sT+1}, {OPT['POLLMAX']}
s_cbranch_scc1 L_x1
""")
a.label("L_x2")
a(f"v_mov_b32 v16, 1\n ds_write_b8 v{vFL}, v16 offset:{M_U}")
if STAMPS: a(f"s_mov_b32 s{sST+11}, s{sT+1}")
stamp(5)
a(f"s_mov_b32 s{sT+1}, 0")
a.label("L_x3")
for i in range(8):
    a(f"global_load_dwordx2 {vr(ST+2*i,2)}, v{30+i//2}, {P(sWS)} offset:{(i%2)*1024} sc1")
for i in range(8):
    a(f"v_xor_b32 v{ST+2*i}, s{sTLO}, v{ST+2*i}\n v_xor_b32 v{ST+2*i+1}, s{sTHI}, v{ST+2*i+1}")
    a(f"v_or3_b32 v16, {'0' if i == 0 else 'v16'}, v{ST+2*i}, v{ST+2*i+1}")
a(f"""
v_and_b32 v16, 0xffff, v16
v_cmp_ne_u32 vcc, 0, v16
s_cbranch_vccz L_x4
s_add_u32 s{sT+1}, s{sT+1}, 1
s_cmp_lt_u32 s{sT+1}, {OPT['POLLMAX']}
s_cbranch_scc1 L_x3
""")
a.label("L_x4")
a.reset()
INV = 36
sOB = sT + 12
for q in range(4):
    lds_spin(18, vMI, M_T + 4 * q, 0x01010101)
    if q == 0: a(f"ds_read_b128 {vr(INV,4)}, v{vMI} offset:{M_INV}")
    a(f"s_lshl_b32 s{sT}, s{sJ+q}, 1\n v_add_u32 v30, s{sT}, v{vUR}")
    a(f"s_lshl_b32 s{sT}, s{sJ+q}, 10\n s_add_u32 s{sOB}, s{sOUT}, s{sT}\n s_addc_u32 s{sOB+1}, s{sOUT+1}, 0")
    a(f"s_sub_u32 s{sT+11}, s{sIDX}, s{sJ+q}")
    for h in range(2):
        y, u = 112 + 8 * h, 116 + 8 * h
        for c in range(4):
            a(f"ds_read_b32 v{y+c}, v{vYR} offset:{L_KT + c*KT_SZ + q*1024 + h*512}")
            a(f"ds_read_u16_d16 v{u+c}, v30 offset:{c*USTR + h*256}")
    for h in range(2):
        y, u, i = 112 + 8 * h, 116 + 8 * h, 2 * q + h
        for c in range(4):
            a(f"v_fma_mix_f32 v{u+c}, v{u+c}, v{ST+2*i+1}, v{ST+2*i} op_sel_hi:[1,0,0]")
        if h == 1: a(f"s_sub_u32 s{sT+11}, s{sT+11}, 128")
        a(f"v_cmp_ne_u32 vcc, s{sT+11}, v{vTOK}")
        for c in range(4):
            a(f"v_fma_f32 v{y+c}, v{y+c}, v{INV+c}, v{u+c}")
        a(f"v_cvt_pk_bf16_f32 v{u}, v{y}, v{y+1}\n v_cvt_pk_bf16_f32 v{u+1}, v{y+2}, v{y+3}")
        if h == 1: a(f"s_add_u32 s{sOB}, s{sOB}, 0x20000\n s_addc_u32 s{sOB+1}, s{sOB+1}, 0")
        Lk = a.newlabel("nosave")
        a(f"""
        s_mov_b64 exec, vcc
        global_store_dwordx2 v{vOA}, {vr(u,2)}, {P(sOB)}
        s_not_b64 exec, exec
        s_cbranch_execz {Lk}
        v_mov_b32 v16, 1
        ds_write_b128 v{vMI}, {vr(y,4)} offset:{M_SAVE}
        ds_write_b32 v{vMI}, v16 offset:{M_SV}
        """)
        a.label(Lk)
        a("s_mov_b64 exec, -1")
    stamp(6 + q)
endpgm()

a.raw(".p2align 6")
a.label("L_conv")
a.reset()
a.smem_any = True
a.vmq = [{("v", 255)}]
PRM, BAND = 4, 12
KW, T2, T3, ACC, DT, BX2, BX3, URING = 36, 104, 128, 144, 160, 176, 208, 224
NRING = 6
vKTA, vWA, vWT2, vWT3, vKWB, vT, vKW, vTAB, vU, vCF, vK0, vDmp = 248, 249, 250, 251, 252, 253, 254, 247, 2, 3, 10, 11
sCH, sLD, sDS, sKWB = sT + 2, sT + 3, sT + 4, sT + 5
a(f"""
s_lshl_b32 s{sCH}, s{sCG}, 2
s_add_u32 s{sCH}, s{sCH}, s{sWAVE}
s_lshl_b32 s{sT+6}, s{sCH}, 8
v_lshl_add_u32 v36, v1, 2, s{sT+6}
s_lshr_b32 s{sT+6}, s{sCH}, 1
s_lshl_b32 s{sT+6}, s{sT+6}, 2
""")
a.wait(lgkm=0)
if STAMPS: a(f"s_mov_b32 s{sST}, s88")
for i, s_ in enumerate((sARE, sAIM, sBRE, sBIM, sCRE, sCIM)):
    a(f"global_load_dword v{PRM+i}, v36, {P(s_)}{NTP}")
a(f"""
s_load_dword s{sLD}, {P(sLDT)}, s{sT+6}
s_load_dword s{sDS}, {P(sDSK)}, s{sT+6}
""")
def wpf():
    a(f"""
    s_cmp_ge_u32 s{sWAVE}, 2
    s_cbranch_scc1 L_nopf
    s_cmp_eq_u32 s{sWAVE}, 0
    s_cselect_b32 s{sT+10}, s{sWG}, s{sWU}
    s_cselect_b32 s{sT+11}, s{sWG+1}, s{sWU+1}
    s_and_b32 s{sT+8}, s2, 7
    s_lshl_b32 s{sT+8}, s{sT+8}, 2
    v_and_b32 v38, 3, v1
    v_add_u32 v38, s{sT+8}, v38
    v_min_u32 v38, 27, v38
    s_and_b32 s{sT+8}, s2, 0xf8
    s_lshl_b32 s{sT+8}, s{sT+8}, 1
    v_lshrrev_b32 v39, 2, v1
    v_add_u32 v39, s{sT+8}, v39
    v_mul_u32_u24 v39, 3584, v39
    v_lshl_add_u32 v39, v38, 7, v39
    global_load_dword v{URING+1}, v39, {P(sT+10)}{NTF}
    """)
    a.label("L_nopf")
if not OPT["PFD"]: wpf()
a(f"""
s_barrier
v_mov_b32 v37, v2
v_add_u32 v{vTAB}, L_tab-L_pc, v2
s_mul_i32 s{sKWB}, s{sWAVE}, {KW_SZ}
s_add_u32 s{sKWB}, s{sKWB}, {L_KW}
v_mov_b32 v40, 0
v_mov_b32 v41, 0
v_mov_b32 v42, 0
v_mov_b32 v43, 0
v_add_u32 v39, s{sKWB}, v37
""")
for i in range(7): a(f"ds_write_b128 v39, v[40:43] offset:{1024*i}")
a(f"""
s_mul_i32 s{sT+6}, s{sWAVE}, {USTR}
s_add_u32 s{sT+6}, s{sT+6}, {L_U}
v_lshl_add_u32 v39, v1, 3, s{sT+6}
ds_write_b64 v39, v[40:41]
v_and_b32 v40, 15, v1
v_lshrrev_b32 v41, 4, v1
v_lshlrev_b32 v{vU}, 5, v40
v_lshl_add_u32 v{vU}, v41, 4, v{vU}
v_add_u32 v{vU}, s{sT+6}, v{vU}
s_mul_i32 s{sT+7}, s{sWAVE}, {KT_SZ}
s_mov_b32 m0, s{sT+7}
v_lshlrev_b32 v{vDmp}, 6, v40
v_lshl_add_u32 v{vDmp}, v41, 4, v{vDmp}
v_add_u32 v{vDmp}, s{sT+7}, v{vDmp}
v_and_b32 v42, 31, v1
v_lshrrev_b32 v43, 5, v1
v_mul_u32_u24 v{vKTA}, {ROWP}, v42
v_lshl_add_u32 v{vKTA}, v43, 4, v{vKTA}
v_add_u32 v{vKTA}, s{sT+7}, v{vKTA}
v_mov_b32 v{vKWB}, s{sKWB}
s_add_u32 s{sT+7}, s{sKWB}, {KW_N + 1088}
v_sub_u32 v{vWA}, s{sT+7}, v37
v_and_b32 v44, 1, v1
v_lshlrev_b32 v45, 8, v44
v_lshrrev_b32 v46, 1, v1
v_lshlrev_b32 v46, 2, v46
v_sub_u32 v45, v45, v46
s_add_u32 s{sT+7}, s{sKWB}, {47*4}
v_add_u32 v{vWT2}, s{sT+7}, v45
v_lshrrev_b32 v45, 1, v42
v_lshl_add_u32 v45, v43, 5, v45
v_lshlrev_b32 v45, 2, v45
v_lshlrev_b32 v46, 1, v44
v_sub_u32 v45, v46, v45
s_add_u32 s{sT+7}, s{sKWB}, {512 + 47*4}
v_add_u32 v{vWT3}, s{sT+7}, v45
v_lshlrev_b32 v45, 2, v41
v_sub_u32 v46, v45, v40
v_lshlrev_b32 v46, 2, v46
v_mul_u32_u24 v45, {KW_T1}, v44
v_sub_u32 v46, v46, v45
s_add_u32 s{sT+7}, s{sKWB}, {60 + KW_T1}
v_add_u32 v{vT}, s{sT+7}, v46
v_and_b32 v45, 3, v1
v_mul_u32_u24 v45, {KW_NS}, v45
v_lshl_add_u32 v45, v41, 4, v45
v_and_b32 v46, 12, v1
v_lshlrev_b32 v46, 1, v46
v_sub_u32 v45, v45, v46
s_add_u32 s{sT+7}, s{sKWB}, {KW_N + 1064 - 1024}
v_add_u32 v{vKW}, s{sT+7}, v45
v_lshlrev_b32 v45, 2, v1
v_add_u32 v45, {L_MISC + M_DUMMY}, v45
s_add_u32 s{sT+7}, s{sWAVE}, {L_MISC}
v_mov_b32 v46, s{sT+7}
v_cmp_eq_u32 vcc, 0, v1
""")
if STAMPS: a("s_memrealtime s[92:93]")
a.wait(lgkm=0)
if STAMPS: a(f"s_mov_b32 s{sST+10}, s92")
DTv, K1, K2, ONE = 82, 83, 84, 85
a(f"""
v_cndmask_b32 v{vCF}, v45, v46, vcc
s_lshl_b32 s{sT+7}, s{sLD}, 16
s_and_b32 s{sLD}, s{sLD}, 0xffff0000
s_lshl_b32 s{sT+8}, s{sDS}, 16
s_and_b32 s{sDS}, s{sDS}, 0xffff0000
s_bitcmp1_b32 s{sCH}, 0
s_cselect_b32 s{sLD}, s{sLD}, s{sT+7}
s_cselect_b32 s{sDS}, s{sDS}, s{sT+8}
v_mov_b32 v{DTv}, s{sLD}
v_mul_f32 v{DTv}, 0x3fb8aa3b, v{DTv}
v_exp_f32 v{DTv}, v{DTv}
v_mov_b32 v{ONE}, 0x3c00
v_cvt_pk_bf16_f32 v{DTv}, v{DTv}, v{DTv}
v_lshlrev_b32 v{DTv}, 16, v{DTv}
v_mul_f32 v{K1}, 0x3fb8aa3b, v{DTv}
v_mul_f32 v{K2}, 0x3e22f983, v{DTv}
v_add_f32 v{vK0}, 1.0, s{sDS}
v_and_b32 v86, 0x7fffffff, v{vK0}
v_cndmask_b32 v{vK0}, 0, v{vK0}, vcc
v_add_u32 v{URING}, 4096, v{vTAB}
""")
if OPT["PFD"]: wpf()
a(f"s_cmp_ge_u32 s{sWAVE}, 2\n s_cbranch_scc1 L_wa\n s_waitcnt vmcnt(1)\n s_branch L_wb")
a.label("L_wa")
a.wait(vm=0)
a.label("L_wb")
a.vmq = [{("v", URING + 1)}]
stamp(1)
Z = [36, 38]; W = [40, 42]; TB, TC = 44, 46
E1, E2, E8, E256, CUR, TMP, SV = 52, 54, 56, 58, 60, 62, 64
CV = list(range(88, 100)); cvi = [0]; pendw = []
def flushw():
    for (c, r) in pendw: a(f"ds_write_addtid_b32 v{c} offset:{r*ROWP}")
    pendw.clear()
def cmul(d, x, y):
    a(f"v_pk_mul_f32 {vr(TMP,2)}, {vr(x,2)}, {vr(y,2)} op_sel:[0,0] op_sel_hi:[1,0]")
    a(f"v_pk_fma_f32 {vr(d,2)}, {vr(x,2)}, {vr(y,2)}, {vr(TMP,2)} op_sel:[1,1,0] op_sel_hi:[0,1,1] neg_lo:[1,0,0]")
def put(rows, x, neg):
    c = CV[cvi[0] % len(CV)]; cvi[0] += 1
    a(f"v_cvt_pk_f16_f32 v{c}, v{x}, {'-' if neg else ''}v{x+1}")
    for r in rows: pendw.append((c, r))
    if len(pendw) >= OPT["KB"]: flushw()
def unp(d, src, hi):
    a(f"v_and_b32 v{d}, 0xffff0000, v{src}" if hi else f"v_lshlrev_b32 v{d}, 16, v{src}")
for s_ in range(2):
    unp(TB, PRM + 2, s_); unp(TB + 1, PRM + 3, s_); unp(TC, PRM + 4, s_); unp(TC + 1, PRM + 5, s_)
    unp(Z[s_], PRM, s_); unp(Z[s_] + 1, PRM + 1, s_)
    cmul(W[s_], TB, TC)
    a(f"v_mul_f32 v{Z[s_]}, v{Z[s_]}, v{K1}\n v_mul_f32 v{Z[s_]+1}, v{Z[s_]+1}, v{K2}")
SUM = 87
a(f"""
v_add_f32 v{SUM}, |v{W[0]}|, |v{W[0]+1}|
v_add_f32 v70, |v{W[1]}|, |v{W[1]+1}|
v_add_f32 v{SUM}, v{SUM}, v70
""")
red = [f"v_add_f32_dpp v{SUM}, v{SUM}, v{SUM} {st} row_mask:0xf bank_mask:0xf bound_ctrl:0" for st in DPP4]
red += [f"v_add_f32_dpp v{SUM}, v{SUM}, v{SUM} row_bcast:15 row_mask:0xa bank_mask:0xf", f"v_add_f32_dpp v{SUM}, v{SUM}, v{SUM} row_bcast:31 row_mask:0xc bank_mask:0xf"]
def evalE(s_, extra):
    zr, zi = Z[s_], Z[s_] + 1
    ex = list(extra)
    def X():
        if ex: a(ex.pop(0))
    for (d, lit) in ((E8, "0x41000000"), (E1, None), (E256, "0x43800000")):
        if lit:
            a(f"v_mul_f32 v70, {lit}, v{zi}"); a(f"v_mul_f32 v72, {lit}, v{zr}"); X()
            a("v_fract_f32 v70, v70"); a("v_exp_f32 v72, v72")
        else:
            a(f"v_fract_f32 v70, v{zi}"); a(f"v_exp_f32 v72, v{zr}")
        a(f"v_cos_f32 v{d}, v70"); a(f"v_sin_f32 v{d+1}, v70"); X()
        a(f"v_pk_mul_f32 {vr(d,2)}, {vr(d,2)}, v[72:73] op_sel_hi:[1,0]"); X()
    while ex: X()
FR = 160
def ktread(kind):
    flushw()
    for k in range(8):
        base = FR + 4 * k + (32 if kind == "B" else 0)
        a(f"ds_read_b128 {vr(base,4)}, v{vKTA} offset:{32*k + (24*ROWP if kind == 'B' else 0)}")
def kmfma(k, first):
    a(f"v_mfma_f32_32x32x16_f16 {vr(ACC,16)}, {vr(FR+4*k,4)}, {vr(FR+32+4*k,4)}, {'0' if first else vr(ACC,16)}")
def qrows(hook):
    pendw.append((ONE, 24))
    put([25], E8, False)
    for j in range(2, 32):
        cmul(CUR, E8 if j == 2 else CUR, E8); put([24 + j], CUR, False); hook(j)
def prows(s_):
    w = W[s_]
    put([0], w, True)
    for e in range(1, 8):
        cmul(CUR, w if e == 1 else CUR, E1); put([e if e < 4 else e + 4], CUR, True)
    cmul(E2, E1, E1)
    cmul(CUR, w, E256); put([4, 5], CUR, True)
    cmul(CUR, CUR, E2); put([6], CUR, True)
    cmul(SV, CUR, E2); put([7, 12, 13], SV, True)
    cmul(CUR, SV, E2); put([14], CUR, True)
    cmul(CUR, CUR, E2); put([15], CUR, True)
    cmul(SV, SV, E256); put([16], SV, True)
    cmul(CUR, CUR, E256); put([17], CUR, True)
    cmul(SV, SV, E256); put([20], SV, True)
    cmul(CUR, CUR, E256); put([21], CUR, True)
    for r in (18, 19, 22, 23):
        cmul(CUR, CUR, E256); put([r], CUR, True)
evalE(0, red)
sSUM = sT + 7
a(f"""
v_readlane_b32 s{sSUM}, v{SUM}, 63
v_fma_f32 v70, v{DTv}, s{sSUM}, v86
v_frexp_exp_i32_f32 v70, v70
v_sub_u32 v71, 14, v70
v_subrev_u32 v70, 14, v70
v_ldexp_f32 v72, v{DTv}, v71
v_ldexp_f32 v{vK0}, v{vK0}, v71
v_ldexp_f32 v70, 1.0, v70
s_lshl_b32 s{sT+8}, s{sWAVE}, 2
s_add_u32 s{sT+8}, s{sT+8}, {L_MISC + M_INV}
v_mov_b32 v71, s{sT+8}
v_pk_mul_f32 {vr(W[0],2)}, {vr(W[0],2)}, v[72:73] op_sel_hi:[1,0]
v_pk_mul_f32 {vr(W[1],2)}, {vr(W[1],2)}, v[72:73] op_sel_hi:[1,0]
s_mov_b64 exec, 1
ds_write_b32 v71, v70
s_mov_b64 exec, -1
""")
qrows(lambda j: None); prows(0)
ktread("A"); ktread("B")
evalE(1, [])
qrows(lambda j: kmfma((j - 2) // 3, j == 2) if (j - 2) % 3 == 0 and j < 26 else None)
ktread("B")
prows(1)
ktread("A")
for i in range(6):
    a(f"global_load_dwordx4 {vr(BAND+4*i,4)}, v{vTAB if i < 4 else URING}, {P(sPC)} offset:{(i%4)*1024}")
for k in range(8): kmfma(k, False)
stamp(2)
QA, QB, QC, QD = 40, 44, 48, 52
K = lambda i: ACC + i
a(f"""
v_add_f32 v{K(0)}, v{K(0)}, v{vK0}
v_mov_b32_dpp v36, v{K(7)} wave_shr:1 row_mask:0xf bank_mask:0xf bound_ctrl:0
v_cvt_pk_f16_f32 v{QA}, v{K(7)}, v{K(6)}
v_cvt_pk_f16_f32 v{QB}, v{K(6)}, v{K(5)}
v_cvt_pk_f16_f32 v{QA+1}, v{K(5)}, v{K(4)}
v_cvt_pk_f16_f32 v{QA+2}, v{K(3)}, v{K(2)}
v_cvt_pk_f16_f32 v{QA+3}, v{K(1)}, v{K(0)}
v_cvt_pk_f16_f32 v{QB+1}, v{K(4)}, v{K(3)}
v_cvt_pk_f16_f32 v{QB+2}, v{K(2)}, v{K(1)}
v_cvt_pk_f16_f32 v{QB+3}, v{K(0)}, v36
v_mov_b32_dpp v{QC+3}, v{QA} wave_shr:1 row_mask:0xf bank_mask:0xf bound_ctrl:0
v_mov_b32_dpp v{QD+3}, v{QB} wave_shr:1 row_mask:0xf bank_mask:0xf bound_ctrl:0
v_mov_b32 v{QC}, v{QA+1}
v_mov_b32 v{QC+1}, v{QA+2}
v_mov_b32 v{QC+2}, v{QA+3}
v_mov_b32 v{QD}, v{QB+1}
v_mov_b32 v{QD+1}, v{QB+2}
v_mov_b32 v{QD+2}, v{QB+3}
v_cvt_pk_f16_f32 v57, v{K(7)}, v{K(7)}
v_cvt_pk_f16_f32 v56, 0, v{K(7)}
v_cvt_pk_f16_f32 v58, v{K(8)}, v{K(9)}
v_cvt_pk_f16_f32 v59, v{K(10)}, v{K(11)}
v_cvt_pk_f16_f32 v60, v{K(9)}, v{K(9)}
ds_write_b128 v{vWA}, {vr(QA,4)} offset:{3*KW_NS}
ds_write_b128 v{vWA}, {vr(QB,4)} offset:{2*KW_NS}
ds_write_b128 v{vWA}, {vr(QC,4)} offset:{KW_NS}
ds_write_b128 v{vWA}, {vr(QD,4)}
s_mov_b32 exec_lo, 0
s_mov_b32 exec_hi, 0x80000000
ds_write_b64 v{vKWB}, v[56:57] offset:{KW_N + 3*KW_NS + 72}
ds_write_b32 v{vKWB}, v57 offset:{KW_N + 2*KW_NS + 72}
ds_write_b32 v{vKWB}, v57 offset:{KW_N + 2*KW_NS + 76}
ds_write_b32 v{vKWB}, v56 offset:{KW_N + KW_NS + 68}
ds_write_b32 v{vKWB}, v57 offset:{KW_N + KW_NS + 72}
ds_write_b32 v{vKWB}, v{QA} offset:{KW_N + KW_NS + 76}
ds_write_b32 v{vKWB}, v57 offset:{KW_N + 68}
ds_write_b32 v{vKWB}, v57 offset:{KW_N + 72}
ds_write_b32 v{vKWB}, v{QB} offset:{KW_N + 76}
s_mov_b64 exec, -1
ds_write_b32 v{vWT2}, v58
ds_write_b32 v{vWT2}, v58 offset:{KW_T1}
ds_write_b16 v{vWT3}, v59 offset:64
ds_write_b16_d16_hi v{vWT3}, v59
ds_write_b16 v{vWT3}, v59 offset:{64 + KW_T1}
ds_write_b16_d16_hi v{vWT3}, v59 offset:{KW_T1}
v_readlane_b32 s{sT+8}, v60, 63
""")
for mu in range(16, -1, -1):
    o = 1024 - 64 * mu
    a(f"ds_read_b64 {vr(KW+4*mu,2)}, v{vKW} offset:{o}\n ds_read_b64 {vr(KW+4*mu+2,2)}, v{vKW} offset:{o+8}")
lazy = []
for ab in range(2):
    for d in range(3):
        for h in range(2): lazy.append((T2 + 12 * ab + 4 * d, f"ds_read_b64 {vr(T2+12*ab+4*d+2*h,2)}, v{vT} offset:{4*(64*ab+16*d)+8*h}"))
for d in range(4):
    for h in range(2): lazy.append((T3 + 4 * d, f"ds_read_b64 {vr(T3+4*d+2*h,2)}, v{vT} offset:{4*(128+48-16*d)+8*h}"))
if not OPT["LAZY"]:
    for _, t in lazy: a(t)
    lazy = []
a(f"v_mov_b32 v{vK0}, {L_MISC}\n v_mov_b32 v{vKWB}, 1")
for i in range(4): a(f"v_and_b32 v{BAND+20+i}, s{sT+8}, v{BAND+20+i}")
stamp(3)
lds_spin(ACC, vK0, M_U, 0x0101)
stamp(4)
a(f"s_cmp_eq_u32 s{sHS}, 0\n s_cbranch_scc0 L_convY")

B3A, B5, B3B, B7, B9, SPK = [BAND + 4 * i for i in range(6)]
def conv_stream(tiles, order):
    acc = {J: ACC + 4 * q for q, J in enumerate(tiles)}
    slot = {J: q for q, J in enumerate(tiles)}
    started = set()
    q2 = sorted({m[1] for m in order if m[0] == "box" and m[2] in "ab"})
    frag = {}
    for i, Qb in enumerate(q2):
        frag[(Qb, "a")] = BX2 + 8 * i; frag[(Qb, "b")] = BX2 + 8 * i + 4
    for Qb in range(4): frag[(Qb, "g")] = BX3 + 4 * Qb
    M = []
    for m in order:
        if m[0] == "near": M.append(dict(u=("U", 8 * m[1] - m[2]), J=m[1], A=KW + 4 * m[2]))
        elif m[0] == "sp": M.append(dict(u=("U", 8 * m[1] - 32), J=m[1], A=SPK))
        elif m[0] == "box":
            Qb, t = m[1], m[2]
            lo = {"a": (("U", 8 * Qb), B3A), "b": (("U", 8 * Qb), B3B), "g": (("U", 8 * Qb), B7)}[t]
            hi = {"a": (("U", 8 * Qb), B5), "b": (("W", Qb), B5), "g": (("W", Qb), B9)}[t]
            M.append(dict(u=lo[0], band=lo[1], half=0, f=(Qb, t))); M.append(dict(u=hi[0], band=hi[1], half=1, f=(Qb, t)))
        elif m[0] == "far":
            J, Qb, t = m[1], m[2], m[3]
            Bq = T3 + 4 * (J - 4 - Qb) if t == "g" else T2 + (12 if t == "b" else 0) + 4 * (Qb - (J - 4))
            M.append(dict(J=J, fin=(Qb, t), B=Bq))
    reads = []; cur = {}
    for i, m in enumerate(M):
        if "u" in m:
            k = m["u"]
            if k in cur and i - reads[cur[k]]["last"] <= 24: reads[cur[k]]["last"] = i
            else: cur[k] = len(reads); reads.append(dict(key=k, first=i, last=i))
            m["rd"] = cur[k]
    last_of = {}; firstB = {}
    for i, m in enumerate(M):
        if "J" in m: last_of[m["J"]] = i
        if "B" in m: firstB.setdefault(m["B"], i)
    lz = sorted([(firstB[b], t) for b, t in lazy if b in firstB], key=lambda x: x[0])
    free = list(range(NRING)); nextr = 0; pend_cvt = []; pend_dump = []; dtfree = [0, 1]; dtof = {}; done_f = set()
    def issue_read():
        nonlocal nextr
        r = reads[nextr]; r["buf"] = URING + 4 * free.pop(0); nextr += 1
        off = 480 + 64 * r["key"][1] if r["key"][0] == "U" else 464 + 512 * r["key"][1]
        a(f"ds_read_b128 {vr(r['buf'],4)}, v{vU} offset:{off}")
    def do_cvt():
        t, f, j = pend_cvt.pop(0); d = DT + 8 * dtof[f]
        a(f"v_cvt_pk_f16_f32 v{frag[f]+j}, v{d+j}, v{d+4+j}")
        if j == 3: dtfree.append(dtof[f]); done_f.add(f)
    def do_dump():
        t, J = pend_dump.pop(0)
        a(f"ds_write_b128 v{vDmp}, {vr(acc[J],4)} offset:{1024*slot[J]}")
        a(f"ds_write_b8 v{vCF}, v{vKWB} offset:{M_T + 4*slot[J]}")
        if STAMPS > 1 or slot[J] == 3: stamp(5 + slot[J])
    while free and nextr < len(reads): issue_read()
    for i, m in enumerate(M):
        fill = 0
        if pend_dump and i - pend_dump[0][0] >= 4: do_dump(); fill += 2
        while lz and lz[0][0] - i <= 8: a(lz.pop(0)[1]); fill += 1
        while fill < 2 and pend_cvt and i - pend_cvt[0][0] >= 4: do_cvt(); fill += 1
        if fill < 2 and free and nextr < len(reads): issue_read(); fill += 2
        if fill == 0 and lz: a(lz.pop(0)[1]); fill += 1
        if "fin" in m:
            while m["fin"] not in done_f: do_cvt()
        if "band" in m and m["half"] == 0:
            while not dtfree: do_cvt()
            dtof[m["f"]] = dtfree.pop(0)
        if "rd" in m:
            while m["rd"] >= nextr:
                assert free, "ring exhausted"
                issue_read()
        if "band" in m:
            d = DT + 8 * dtof[m["f"]] + 4 * m["half"]
            a(f"v_mfma_f32_16x16x32_f16 {vr(d,4)}, {vr(reads[m['rd']]['buf'],4)}, {vr(m['band'],4)}, 0")
            if m["half"] == 1:
                for j in range(4): pend_cvt.append((i, m["f"], j))
        else:
            J = m["J"]; C = vr(acc[J], 4) if J in started else "0"; started.add(J)
            if "fin" in m: a(f"v_mfma_f32_16x16x32_f16 {vr(acc[J],4)}, {vr(frag[m['fin']],4)}, {vr(m['B'],4)}, {C}")
            else: a(f"v_mfma_f32_16x16x32_f16 {vr(acc[J],4)}, {vr(m['A'],4)}, {vr(reads[m['rd']]['buf'],4)}, {C}")
            if last_of[J] == i: pend_dump.append((i, J))
        if "rd" in m and reads[m["rd"]]["last"] == i: free.append((reads[m["rd"]]["buf"] - URING) // 4)
    while pend_dump: do_dump()
    assert not lz
    return len(M), len(reads)

def near_at(n, tiles):
    return [("near", J, 8 * J - n) for J in tiles if 0 <= 8 * J - n <= min(16, 8 * J + 7)]
oX = []
extra = {0: [("box", 0, "g")], 8: [("box", 1, "g")]}
for n in range(-7, 9): oX += near_at(n, [0, 1]) + extra.get(n, [])
oX += [("box", 2, "a"), ("sp", 6), ("box", 2, "b"), ("far", 6, 0, "g"), ("far", 7, 0, "g"), ("box", 2, "g"), ("far", 6, 1, "g"), ("far", 7, 1, "g"),
       ("box", 3, "a"), ("sp", 7), ("box", 3, "b"), ("far", 6, 2, "a"), ("far", 6, 2, "b"), ("box", 3, "g")]
extra = {32: [("box", 4, "a"), ("far", 6, 2, "g"), ("far", 7, 2, "g")], 33: [("far", 6, 3, "a"), ("far", 7, 3, "a")], 34: [("far", 6, 3, "b"), ("far", 7, 3, "b")],
         35: [("far", 7, 3, "g")], 36: [("far", 6, 4, "a")], 37: [("far", 7, 4, "a")],
         40: [("box", 5, "a"), ("box", 5, "b")], 41: [("far", 6, 4, "b")], 42: [("far", 7, 4, "b")], 49: [("far", 7, 5, "a")], 50: [("far", 7, 5, "b")]}
for n in range(32, 57):
    oX += near_at(n, [6, 7]) + extra.get(n, [])
    if n == 32: oX += [("box", 4, "b")]
oY = []
extra = {0: [("box", 0, "a"), ("sp", 4), ("box", 0, "b")], 3: [("far", 2, 0, "a"), ("far", 3, 0, "a"), ("far", 4, 0, "a")],
         4: [("far", 2, 0, "b"), ("far", 3, 0, "b"), ("far", 4, 0, "b")], 5: [("box", 0, "g")],
         8: [("box", 1, "a"), ("sp", 5), ("box", 1, "b")], 9: [("far", 4, 0, "g")], 10: [("far", 5, 0, "g"), ("box", 1, "g")],
         12: [("far", 3, 1, "a")], 13: [("far", 3, 1, "b")], 14: [("far", 4, 1, "a")],
         16: [("box", 2, "a"), ("box", 2, "b")], 17: [("far", 4, 1, "b")], 18: [("far", 5, 1, "a")], 19: [("far", 5, 1, "b")], 20: [("far", 5, 1, "g")],
         21: [("far", 4, 2, "a")], 22: [("far", 4, 2, "b")],
         24: [("box", 3, "a"), ("box", 3, "b")], 28: [("far", 5, 2, "a")], 29: [("far", 5, 2, "b")], 33: [("far", 5, 3, "a")], 34: [("far", 5, 3, "b")]}
for n in range(0, 41): oY += near_at(n, [2, 3, 4, 5]) + extra.get(n, [])
def check(order, tiles):
    want = set()
    for J in tiles:
        for mu in range(min(16, 8 * J + 7) + 1): want.add(("near", J, mu))
        if J >= 4: want.add(("sp", J))
        for d in range(3):
            if J - 4 + d >= 0: want |= {("far", J, J - 4 + d, "a"), ("far", J, J - 4 + d, "b")}
        for d in range(4):
            if J - 4 - d >= 0: want.add(("far", J, J - 4 - d, "g"))
    got = [m for m in order if m[0] != "box"]
    assert len(got) == len(set(got)) and set(got) == want, (want ^ set(got))
    seen = set()
    for m in order:
        if m[0] == "box": seen.add((m[1], m[2]))
        if m[0] == "far": assert (m[2], m[3]) in seen, m
check(oX, [0, 1, 6, 7]); check(oY, [2, 3, 4, 5])
sv = (list(a.vmq), list(a.dsq), list(a.hist))
nx = conv_stream([0, 1, 6, 7], oX)
endpgm(True)
a.raw(".p2align 3")
a.label("L_convY")
a.vmq, a.dsq, a.hist = sv
ny = conv_stream([2, 3, 4, 5], oY)
endpgm(True)
if STAMPS:
    a.label("L_flush")
    a.wait(vm=0, lgkm=0)
    a("s_memrealtime s[88:89]"); a.wait(lgkm=0); a(f"s_mov_b32 s{sST+15}, s88")
    a("s_mov_b64 exec, -1\n v_mov_b32 v2, 0")
    for k in range(16): a(f"v_writelane_b32 v2, s{sST+k}, {k}")
    a(f"s_lshl_b32 s{sT}, s2, 3\n s_add_u32 s{sT}, s{sT}, s{sWAVE}\n s_lshl_b32 s{sT}, s{sT}, 6\n s_add_u32 s{sT}, s{sT}, {WS_STAMP}")
    a(f"v_and_b32 v3, 63, v0\n v_lshlrev_b32 v3, 2, v3\n v_add_u32 v3, s{sT}, v3")
    a("s_mov_b64 exec, 0xffff")
    a(f"global_store_dword v3, v2, {P(sWS)}")
a.label("L_exit")
a("s_endpgm")
a.raw(".p2align 7")
a.label("L_tab")
for (start, w, one) in ((11, 3, 0x3c00), (6, 5, 0x3c00), (3, 3, 0x3c00), (5, 7, 0x3c00), (4, 9, 0x3c00), (12, 2, 0xffff)):
    for l in range(64):
        r, s_ = l & 15, l >> 4
        e = [one if r + start <= 8 * s_ + i < r + start + w else 0 for i in range(8)]
        a.raw("    .long " + ", ".join(hex(e[2 * j] | e[2 * j + 1] << 16) for j in range(4)))
a.label("L_end")
a.raw(f""".section .rodata,"a"
.p2align 6
.amdhsa_kernel {NAME}
  .amdhsa_next_free_vgpr 256
  .amdhsa_next_free_sgpr 100
  .amdhsa_accum_offset 256
  .amdhsa_group_segment_fixed_size 0
  .amdhsa_kernarg_size 136
  .amdhsa_user_sgpr_count 2
  .amdhsa_user_sgpr_kernarg_segment_ptr 1
  .amdhsa_system_sgpr_workgroup_id_x 1
  .amdhsa_float_denorm_mode_32 3
.end_amdhsa_kernel""")
open(sys.argv[1], "w").write(a.text())
print("LDS", LDS_SIZE, "nops", a.nops, "X mfma/reads", nx, "Y", ny, file=sys.stderr)
```

```python
import re

TRANS = ("v_exp_f32", "v_log_f32", "v_rcp_f32", "v_rsq_f32", "v_sqrt_f32", "v_sin_f32", "v_cos_f32")
MODRE = re.compile(r"\b(op_sel|op_sel_hi|neg_lo|neg_hi|quad_perm):\[[^\]]*\]")

def regs_of(tok):
    tok = tok.strip()
    tok = tok.lstrip("-")
    if tok.startswith("abs(") and tok.endswith(")"): tok = tok[4:-1]
    if tok.startswith("|") and tok.endswith("|"): tok = tok[1:-1]
    m = re.fullmatch(r"([vsa])(\d+)", tok)
    if m: return {(m.group(1), int(m.group(2)))}
    m = re.fullmatch(r"([vsa])\[(\d+):(\d+)\]", tok)
    if m: return {(m.group(1), i) for i in range(int(m.group(2)), int(m.group(3)) + 1)}
    if tok == "vcc": return {("s", "vcc")}
    if tok in ("exec", "exec_lo", "exec_hi"): return {("s", "exec")}
    if tok == "m0": return {("s", "m0")}
    return set()

class Ins:
    def __init__(self, text):
        self.text = text
        t = MODRE.sub("", text).strip()
        parts = t.split(None, 1)
        self.mn = mn = parts[0]
        ops = []
        if len(parts) > 1:
            for o in parts[1].split(","):
                o = o.strip()
                if o: ops.append(o.split()[0])
        self.ops = ops
        R = [regs_of(o) for o in ops]
        self.dst, self.src = set(), set()
        self.kind = "other"
        self.states = 1
        self.srcC = set(); self.srcAB = set(); self.data = set()
        if mn == "s_nop":
            self.kind = "nop"; self.states = int(ops[0], 0) + 1
        elif mn.startswith("v_mfma"):
            self.kind = "mfma"; self.dst = R[0]; self.srcAB = R[1] | R[2]; self.srcC = R[3]; self.src = self.srcAB | self.srcC
            self.passes = 8 if "32x32" in mn else 4
        elif mn.startswith("v_"):
            self.kind = "valu"
            if mn.startswith("v_permlane"):
                self.dst = R[0] | R[1]; self.src = R[0] | R[1]
            else:
                self.dst = R[0]
                for r in R[1:]: self.src |= r
                if mn.startswith(("v_fmac", "v_dot2c", "v_writelane")) or "_dpp" in mn: self.src |= R[0]
                if mn.startswith("v_cndmask") and len(ops) == 3: self.src.add(("s", "vcc"))
            self.trans = mn.replace("_e32", "").replace("_e64", "") in TRANS
            self.dpp = "_dpp" in mn
            self.dl = mn.startswith("v_dot")
        elif mn.startswith("ds_"):
            self.kind = "ds"
            if mn.startswith("ds_read") or "_rtn" in mn or "permute" in mn:
                self.dst = R[0]
                for r in R[1:]: self.src |= r
                if "d16" in mn: self.src |= R[0]
            else:
                for r in R: self.src |= r
            if "addtid" in mn: self.src.add(("s", "m0"))
        elif mn.startswith(("global_", "buffer_")):
            self.kind = "vmem"
            if "_lds" in mn:
                for r in R: self.src |= r
                self.src.add(("s", "m0"))
            elif "load" in mn:
                self.dst = R[0]
                for r in R[1:]: self.src |= r
            else:
                for r in R: self.src |= r
                if mn.endswith(("x3", "x4")): self.data = R[1] if mn.startswith("global") else R[0]
        elif mn.startswith(("s_load", "s_memtime", "s_memrealtime")):
            self.kind = "smem"; self.dst = R[0]
            for r in R[1:]: self.src |= r
        elif mn.startswith(("s_waitcnt", "s_barrier", "s_sleep", "s_setprio", "s_endpgm", "s_branch", "s_cbranch")):
            self.kind = "ctl"
        elif mn.startswith("s_"):
            self.kind = "salu"
            if mn.startswith(("s_cmp", "s_bitcmp")):
                for r in R: self.src |= r
            else:
                self.dst = R[0]
                for r in R[1:]: self.src |= r
                if "saveexec" in mn: self.dst = self.dst | {("s", "exec")}; self.src.add(("s", "exec"))
        else:
            raise ValueError("unknown instr " + text)

def need(p, c):
    n = 0
    V = lambda s: {r for r in s if r[0] in "va"}
    S = lambda s: {r for r in s if r[0] == "s"}
    if p.kind == "valu":
        pv, ps = V(p.dst), S(p.dst)
        if c.kind == "mfma" and pv & c.src: n = max(n, 2)
        if c.kind == "valu":
            if p.trans and not c.trans and pv & c.src: n = max(n, 1)
            if c.dpp and pv & c.src: n = max(n, 2)
            if c.mn.startswith("v_permlane") and pv & c.src: n = max(n, 2)
            if c.mn.startswith(("v_readlane", "v_readfirstlane")) and pv & c.src: n = max(n, 1)
            if ps & c.src: n = max(n, 4 if c.mn.startswith(("v_readlane", "v_writelane")) else 2)
            if p.dl and pv & (c.src | c.dst):
                same_c = c.mn == p.mn and not (pv & (regs_of(c.ops[1]) | regs_of(c.ops[2])))
                if not same_c: n = max(n, 3)
        if p.dl and c.kind in ("mfma", "ds", "vmem") and pv & c.src: n = max(n, 3)
        if c.kind == "vmem" and ps & c.src: n = max(n, 5)
        if c.kind == "ds" and p.trans and pv & c.src: n = max(n, 1)
        if c.kind == "vmem" and p.trans and pv & c.src: n = max(n, 1)
    if p.kind == "mfma":
        big = p.passes == 8
        if c.kind == "mfma":
            if p.dst & c.srcAB: n = max(n, 12 if big else 8)
            if p.dst & c.srcC and not (p.dst == c.srcC and p.mn == c.mn): n = max(n, 10 if big else 6)
            if p.dst & c.dst and not (p.dst & c.srcC): n = max(n, 10 if big else 6)
        elif c.kind in ("valu", "ds", "vmem"):
            if p.dst & (c.src | c.dst): n = max(n, 12 if big else 8)
            if c.kind == "valu" and p.srcC & c.dst: n = max(n, 7 if big else 3)
    if p.kind == "vmem" and p.data and c.kind == "valu" and p.data & c.dst: n = max(n, 2)
    if p.kind == "vmem" and p.data and c.kind in ("ds", "vmem", "mfma") and p.data & c.dst: n = max(n, 1)
    if p.kind == "salu" and ("s", "m0") in p.dst and ("s", "m0") in c.src and c.kind in ("ds", "vmem"): n = max(n, 1)
    return n

class Asm:
    def __init__(self):
        self.out = []
        self.hist = []
        self.vmq = []
        self.dsq = []
        self.smem = set()
        self.smem_any = False
        self.nops = 0
        self.lbl = 0
    def raw(self, s): self.out.append(s)
    def comment(self, s): self.out.append("    ; " + s)
    def label(self, name):
        self.out.append(name + ":")
    def newlabel(self, p="L"):
        self.lbl += 1; return f"{p}_{self.lbl}"
    def reset(self):
        self.vmq = []; self.dsq = []; self.smem = set(); self.smem_any = False
    def _emit(self, ins):
        self.out.append("    " + ins.text)
        self.hist.append(ins)
        if len(self.hist) > 24: self.hist.pop(0)
    def wait(self, vm=None, lgkm=None):
        t = "s_waitcnt"
        if vm is not None:
            t += f" vmcnt({vm})"
            if len(self.vmq) > vm: self.vmq = self.vmq[len(self.vmq) - vm:] if vm else []
        if lgkm is not None:
            t += f" lgkmcnt({lgkm})"
            if lgkm == 0: self.dsq = []; self.smem = set(); self.smem_any = False
            else:
                assert not self.smem_any, "counted lgkm wait with smem outstanding"
                if len(self.dsq) > lgkm: self.dsq = self.dsq[len(self.dsq) - lgkm:]
        self._emit(Ins(t))
    def __call__(self, text):
        for line in text.strip().split("\n"):
            line = line.split(";")[0].strip()
            if line: self.one(line)
    def prewait(self, regs):
        lg = None
        for i, d in enumerate(self.dsq):
            if d & regs: lg = len(self.dsq) - 1 - i
        if lg is not None: self.wait(None, min(lg, 15))
    def one(self, text):
        ins = Ins(text)
        if ins.mn == "s_waitcnt":
            vm = re.search(r"vmcnt\((\d+)\)", text); lg = re.search(r"lgkmcnt\((\d+)\)", text)
            return self.wait(int(vm.group(1)) if vm else None, int(lg.group(1)) if lg else None)
        touched = ins.src | ins.dst
        vm = lg = None
        for i, d in enumerate(self.vmq):
            if d & touched: vm = len(self.vmq) - 1 - i
        for i, d in enumerate(self.dsq):
            if d & touched: lg = len(self.dsq) - 1 - i
        if self.smem & touched or (lg is not None and self.smem_any): lg = 0
        if lg is not None and lg > 15: lg = None if False else 15
        if vm is not None or lg is not None: self.wait(vm, lg)
        dist = 0; req = 0
        for p in reversed(self.hist):
            r = need(p, ins) - dist
            if r > req: req = r
            dist += p.states
            if dist >= 20: break
        if req > 0:
            self.nops += req
            while req > 0:
                k = min(req, 16); self._emit(Ins(f"s_nop {k-1}")); req -= k
        self._emit(ins)
        if ins.kind == "vmem": self.vmq.append(set(ins.dst))
        elif ins.kind == "ds": self.dsq.append(set(ins.dst))
        elif ins.kind == "smem": self.smem |= ins.dst; self.smem_any = True
    def text(self): return "\n".join(self.out) + "\n"

def vr(a, n=1): return f"v{a}" if n == 1 else f"v[{a}:{a+n-1}]"
def sr(a, n=1): return f"s{a}" if n == 1 else f"s[{a}:{a+n-1}]"
```

```python
import sys
from asmlib import Asm, vr, sr

NAME = "parallel_sum__ssm_conv_s4__moe_arch_mod__prompt_kernel"
OPT = dict(STAMPS=0, PAD=0, POLLMAX=200000, LNHS=1, POLLDLY=0, IDLEDLY=30, XTDLY=2, H2A=14, H2B=40, WDLY=0, KB=4, LAZY=1, ACK=0, NT=0, NTC=0, NTX=0, PFD=0, ROT=0, Q16=1, DW4=0, WDL=1, PFE=0, PD2=32, KGDLY=0, VLD=0, PFW=1, STAG=0, SEQ=1, LAZYX=0, PADEV=-1, NTR=-1, NTP=-1, NTW=-1, NTF=-1)
for x in sys.argv[2:]:
    k, v = x.split("="); assert k in OPT, k; OPT[k] = int(v, 0)
STAMPS = OPT["STAMPS"]
NT = ' nt' if OPT['NT'] else ''
NTR, NTP, NTW, NTF = [(' nt' if OPT[k] else '') if OPT[k] >= 0 else NT for k in ('NTR', 'NTP', 'NTW', 'NTF')]
NTC = ' nt' if OPT['NTC'] else ''
NTX = ' nt' if OPT['NTX'] else ''

PSTR = 2048 + 128
WS_ROUT, WS_STAT, WS_PART, WS_XT, WS_STAMP = 0x1000, 0x2000, 0x10000, 0x100000, 0x400000
ROWP = 272; KT_SZ = 56 * ROWP
L_KT = 0
YJ = 264; YQ = 4 * YJ
KW_SZ = 7168; KW_T, KW_T1, KW_N, KW_NS = 0, 896 + 4, 1792, 1216
L_KW = L_KT + 4 * KT_SZ
L_U = L_KW + 4 * KW_SZ; USTR = 4640
L_LNI = L_U + 4 * USTR; LNP = 1056
L_WG = L_LNI
L_WU = L_WG + 16384 + 128
L_MISC = L_WU + 16384
M_CNT, M_KEY, M_W2, M_XS, M_W, M_U, M_ARR, M_T, M_SV, M_SAVE, M_INV, M_RT, M_DUMMY = 0, 4, 8, 12, 16, 20, 24, 32, 48, 64, 80, 96, 128
L_XS = L_MISC + M_DUMMY + 256 + 128
LDS_SIZE = L_XS + 1024
assert all(x % 16 == 0 for x in (L_MISC, L_U, L_LNI, L_KW, L_WU)) and LDS_SIZE <= 163840

sX, sARE, sAIM, sBRE, sBIM, sCRE, sCIM, sLDT, sDSK, sBX, sWR, sWG, sWU, sWD, sOUT, sDBG, sWS = [4 + 2 * i for i in range(17)]
sTAG, sWAVE, sCG, sHS, sFFN, sUNIT = 38, 39, 40, 41, 42, 43
sPC = 44
sTLO, sTHI, sPU, sKEY, sIDX = 46, 47, 48, 49, 50
sT = 52
sST = 72
P = lambda r: sr(r, 2)
DPP4 = ("row_shr:1", "row_shr:2", "row_shr:4", "row_shr:8")

a = Asm()
evn = [0]
def stamp(k):
    import inspect
    if OPT["PADEV"] == 999: print("event", evn[0], "stamp", k, "line", inspect.stack()[1].lineno, file=sys.stderr)
    if OPT["PADEV"] == evn[0]:
        a("s_memrealtime s[90:91]"); a.wait(lgkm=0)
    evn[0] += 1
    if STAMPS:
        a("s_memrealtime s[88:89]"); a.wait(lgkm=0); a(f"s_mov_b32 s{sST+k}, s88")
def sleep(n):
    while n > 0: a(f"s_sleep {min(n,127)}"); n -= 127
def endpgm(conv=False):
    if (conv and OPT["PAD"] and OPT["PADEV"] < 0) or OPT["PADEV"] >= 0:
        L = a.newlabel("pad"); a.wait(lgkm=0); a.label(L)
        a("s_memrealtime s[88:89]"); a.wait(lgkm=0)
        a(f"s_sub_u32 s88, s88, s90\n s_cmp_lt_u32 s88, {OPT['PAD']}\n s_sleep 2\n s_cbranch_scc1 {L}")
    if STAMPS: a("s_branch L_flush")
    else: a("s_endpgm")
def lds_spin(vtmp, vaddr, off, want, width=1):
    L, Dn = a.newlabel("spin"), a.newlabel("spun")
    a.wait(lgkm=0)
    a(f"s_mov_b32 s{sT+1}, 0")
    a.label(L)
    a(f"ds_read_b{32*width} {vr(vtmp, width)}, v{vaddr} offset:{off}")
    a.wait(lgkm=0)
    a(f"""v_readfirstlane_b32 s{sT}, v{vtmp}
    s_add_u32 s{sT+1}, s{sT+1}, 1
    s_cmp_eq_u32 s{sT}, {want}
    s_cbranch_scc1 {Dn}
    s_cmp_lt_u32 s{sT+1}, {OPT['POLLMAX']*16}
    s_sleep 1
    s_cbranch_scc1 {L}""")
    a.label(Dn)

a.raw(f"""; One persistent launch: 256 workgroups (one per CU) x 8 waves, 4 channels x 1024 outputs each.
; waves 4-7: layernorm + router (half of the workgroups) or a slice of the expert FFN (other half), hand-offs
; @launch grid=(256,1,1) block=(512,1,1) lds={LDS_SIZE}
.amdgcn_target "amdgcn-amd-amdhsa--gfx950"
.text
.globl {NAME}
.p2align 8
.type {NAME},@function
{NAME}:""")
a(f"""
s_cmp_ge_u32 s2, 0x100
s_cbranch_scc1 L_exit
s_load_dwordx16 s[4:19], s[0:1], 0
s_load_dwordx16 s[20:35], s[0:1], 64
s_load_dwordx2 s[36:37], s[0:1], 128
""")
if OPT["PAD"] and OPT["PADEV"] < 0: a("s_memrealtime s[90:91]")
if OPT["PADEV"] >= 0: a("s_mov_b32 s90, 0")
if STAMPS: a("s_memrealtime s[88:89]")
a(f"s_getpc_b64 {P(sPC)}")
a.label("L_pc")
a(f"""
v_lshrrev_b32 v2, 6, v0
s_and_b32 s{sT+1}, s2, 0xf8
v_add_lshl_u32 v3, v2, s{sT+1}, 7
v_readfirstlane_b32 s{sWAVE}, v2
v_min_u32 v3, L_end-L_pc-4, v3
global_load_dword v255, v3, {P(sPC)}{NTC}
v_and_b32 v1, 63, v0
s_and_b32 s{sT}, s2, 7
s_lshl_b32 s{sCG}, s{sT}, 4
s_bfe_u32 s{sT+2}, s2, 0x40003
s_add_u32 s{sCG}, s{sCG}, s{sT+2}
s_lshr_b32 s{sHS}, s2, 7
v_lshlrev_b32 v2, 4, v1
""")
if STAMPS:
    for k in range(16): a(f"s_mov_b32 s{sST+k}, 0")
a(f"""
s_cmp_lt_u32 s{sWAVE}, 4
s_cbranch_scc1 L_conv
""")

XR, WR = 4, 20
WD, WDP, WF = 64, 96, 128
vFL, vMI = 60, 61
a(f"""
s_setprio 3
s_sub_u32 s{sUNIT}, s{sWAVE}, 4
s_lshl_b32 s{sT+3}, s{sCG}, 14
s_lshl_b32 s{sT+4}, s{sUNIT}, 12
s_add_u32 s{sT+3}, s{sT+3}, s{sT+4}
v_add_u32 v3, s{sT+3}, v2
v_mov_b32 v{vMI}, {L_MISC}
s_cmp_lg_u32 s{sUNIT}, 3
s_cbranch_scc1 L_noinit
v_lshl_add_u32 v16, v1, 2, v{vMI}
v_mov_b32 v17, 0
ds_write_b32 v16, v17
""")
a.label("L_noinit")
a.wait(lgkm=0)
if STAMPS: a(f"s_mov_b32 s{sST}, s88")
a(f"""
s_load_dword s{sTAG}, {P(sWS)}, 0
s_cmp_lg_u32 s{sHS}, {OPT['LNHS']}
s_cbranch_scc1 L_noln
""")
for r in range(4): a(f"global_load_dwordx4 {vr(XR+4*r,4)}, v3, {P(sX)} offset:{1024*r}{NTR}")
a(f"global_load_dwordx4 {vr(WR,4)}, v2, {P(sWR)}{NTR}")
if STAMPS: a("s_memrealtime s[96:97]")
def flagaddr():
    a(f"""
    v_lshlrev_b32 v24, 2, v1
    v_add_u32 v24, {L_MISC+M_DUMMY}, v24
    v_add_u32 v{vFL}, s{sUNIT}, v{vMI}
    v_cmp_eq_u32 vcc, 0, v1
    s_mov_b32 s{sFFN}, 0
    s_nop 0
    v_cndmask_b32 v{vFL}, v24, v{vFL}, vcc
    """)
def tagcalc():
    a(f"""
    s_add_u32 s{sTAG}, s{sTAG}, 1
    s_and_b32 s{sTLO}, s{sTAG}, 0xffff
    s_lshr_b32 s{sTHI}, s{sTAG}, 16
    """)
flagaddr()
vTK, vC9, vMK, vSA, vIW, vTR, vXS, vRA = 52, 53, 54, 55, 56, 57, 58, 59
a(f"""
s_lshl_b32 s{sT+5}, s{sCG}, 4
s_lshl_b32 s{sT+6}, s{sUNIT}, 2
s_add_u32 s{sT+5}, s{sT+5}, s{sT+6}
v_lshrrev_b32 v25, 4, v1
v_add_u32 v{vSA}, s{sT+5}, v25
v_sub_u32 v{vTK}, 2047, v{vSA}
v_lshlrev_b32 v{vSA}, 3, v{vSA}
v_add_u32 v{vSA}, {WS_STAT}, v{vSA}
v_mov_b32 v{vC9}, 0x3b000000
v_mov_b32 v{vMK}, 0xfff8fff8
s_mul_i32 s{sT+6}, s{sUNIT}, {4*LNP}
s_lshr_b32 s{sT+7}, s{sUNIT}, 1
s_lshl_b32 s{sT+7}, s{sT+7}, 7
s_add_u32 s{sT+6}, s{sT+6}, s{sT+7}
s_add_u32 s{sT+6}, s{sT+6}, {L_LNI}
v_add_u32 v{vIW}, s{sT+6}, v2
v_bfe_u32 v24, v1, 2, 2
v_mul_u32_u24 v24, {LNP}, v24
v_lshl_add_u32 v24, v25, 4, v24
v_and_b32 v26, 1, v1
v_mul_u32_u24 v26, {8*LNP+128}, v26
v_bfe_u32 v27, v1, 1, 1
v_lshl_add_u32 v26, v27, 3, v26
s_lshl_b32 s{sT+6}, s{sUNIT}, 8
s_add_u32 s{sT+6}, s{sT+6}, {L_LNI}
v_add3_u32 v{vTR}, v24, v26, s{sT+6}
v_lshrrev_b32 v24, 3, v1
v_lshlrev_b32 v24, 14, v24
v_and_b32 v26, 7, v1
v_lshl_add_u32 v24, v26, 4, v24
s_lshl_b32 s{sT+6}, s{sUNIT}, 19
s_lshl_b32 s{sT+7}, s{sCG}, 7
s_add_u32 s{sT+6}, s{sT+6}, s{sT+7}
s_add_u32 s{sT+6}, s{sT+6}, {WS_XT}
v_add_u32 v{vXS}, s{sT+6}, v24
s_lshl_b32 s{sT+6}, s2, 3
s_add_u32 s{sT+6}, s{sT+6}, {WS_ROUT}
v_mov_b32 v{vRA}, s{sT+6}
""")
sC9, sC1, sTG, sRS = sT + 2, sT + 3, sT + 4, sT + 8
a(f"s_mov_b32 s{sC9}, 0x3b003b00\n s_mov_b32 s{sC1}, 0x3f803f80")
if STAMPS: a("s_memrealtime s[92:93]")
a("s_barrier")
a.wait(lgkm=0)
if STAMPS: a(f"s_mov_b32 s{sST+10}, s92\n s_mov_b32 s{sST+14}, s96")
tagcalc()
a(f"s_and_b32 s{sT}, s{sUNIT}, 1\n s_mul_i32 s{sT}, s{sT}, 12\n s_lshr_b32 s{sT}, s{sTAG}, s{sT}")
for r in range(4):
    a(f"s_bfe_u32 s{sTG+r}, s{sT}, {0x30000+3*r}\n s_mul_i32 s{sTG+r}, s{sTG+r}, 0x10001")
a.wait(vm=0)
stamp(1)
S = lambda v, r: 24 + 4 * v + r
Wv, W2 = 36, 37
for i in range(4):
    z = lambda r: "0" if i == 0 else f"v{r}"
    for r in range(4):
        x = XR + 4 * r + i
        a(f"""
        v_dot2_f32_bf16 v{S(0,r)}, v{x}, s{sC9}, {z(S(0,r))}
        v_dot2_f32_bf16 v{S(1,r)}, v{x}, v{x}, {z(S(1,r))}
        v_dot2_f32_bf16 v{S(2,r)}, v{x}, v{WR+i}, {z(S(2,r))}
        """)
        if r == 0: a(f"v_dot2_f32_bf16 v{Wv}, v{WR+i}, s{sC1}, {z(Wv)}")
a(f"v_mov_b32 v{W2}, v{Wv}")
for v in range(3):
    a(f"v_permlane32_swap_b32 v{S(v,0)}, v{S(v,2)}\n v_permlane32_swap_b32 v{S(v,1)}, v{S(v,3)}")
a(f"v_permlane32_swap_b32 v{Wv}, v{W2}")
for v in range(3):
    a(f"v_add_f32 v{S(v,0)}, v{S(v,0)}, v{S(v,2)}\n v_add_f32 v{S(v,1)}, v{S(v,1)}, v{S(v,3)}")
    if v == 0: a(f"v_add_f32 v{Wv}, v{Wv}, v{W2}")
    if v == 1: a(f"v_mov_b32 v{W2}, v{Wv}")
for v in range(3): a(f"v_permlane16_swap_b32 v{S(v,0)}, v{S(v,1)}")
a(f"v_permlane16_swap_b32 v{Wv}, v{W2}")
for v in range(3): a(f"v_add_f32 v{S(v,0)}, v{S(v,0)}, v{S(v,1)}")
a(f"v_add_f32 v{Wv}, v{Wv}, v{W2}")
A1, A2, A3 = S(0, 0), S(1, 0), S(2, 0)
for st in DPP4:
    for r in (A1, A2, A3, Wv):
        a(f"v_add_f32_dpp v{r}, v{r}, v{r} {st} row_mask:0xf bank_mask:0xf bound_ctrl:0")
MB, SB, RS, NM, T0, T1, KEY, T2_ = 38, 39, 40, 41, 42, 43, 44, 45
a(f"""
v_mul_f32 v{T0}, v{A2}, v{vC9}
v_fma_f32 v{T0}, -v{A1}, v{A1}, v{T0}
v_max_f32 v{T0}, 0, v{T0}
v_cvt_pk_bf16_f32 v{T1}, v{A1}, v{T0}
v_and_b32 v{T0}, 0xffff0000, v{T1}
v_lshlrev_b32 v{MB}, 16, v{T1}
v_add_f32 v{T0}, 0x3727c5ac, v{T0}
v_cvt_pk_bf16_f32 v{T0}, v{T0}, v{T0}
v_lshlrev_b32 v{T0}, 16, v{T0}
v_sqrt_f32 v{T0}, v{T0}
v_fma_f32 v{KEY}, -v{MB}, v{Wv}, v{A3}
v_cvt_pk_bf16_f32 v{T0}, v{T0}, v{T0}
v_lshlrev_b32 v{SB}, 16, v{T0}
v_rcp_f32 v{RS}, v{SB}
v_or_b32 v{T0}, s{sTLO}, v{MB}
v_mul_f32 v{KEY}, v{KEY}, v{RS}
v_or_b32 v{T1}, s{sTHI}, v{SB}
v_ashrrev_i32 v{T2_}, 31, v{KEY}
v_or_b32 v{T2_}, 0x80000000, v{T2_}
v_xor_b32 v{KEY}, v{KEY}, v{T2_}
v_and_b32 v{KEY}, 0xfffff800, v{KEY}
v_or_b32 v{KEY}, v{KEY}, v{vTK}
v_mov_b32 v46, 1
s_mov_b32 exec_lo, 0x80008000
s_mov_b32 exec_hi, 0x80008000
ds_max_u32 v{vMI}, v{KEY} offset:{M_KEY}
s_mov_b64 exec, 0x8000
ds_add_rtn_u32 v47, v{vMI}, v46 offset:{M_ARR}
s_mov_b32 exec_lo, 0x80008000
s_mov_b32 exec_hi, 0x80008000
global_store_dwordx2 v{vSA}, {vr(T0,2)}, {P(sWS)} sc1
s_mov_b64 exec, -1
v_mul_f32 v{NM}, -v{MB}, v{RS}
""")
for r in range(4):
    a(f"v_readlane_b32 s{sRS+2*r}, v{RS}, {16*r+15}")
for r in range(4):
    a(f"v_readlane_b32 s{sRS+2*r+1}, v{NM}, {16*r+15}")
UX = 64
def xnrow(r, part):
    for i in range(4):
        x, u = XR + 4 * r + i, UX + 8 * r + 2 * i
        if part == 0: a(f"v_lshlrev_b32 v{u}, 16, v{x}\n v_and_b32 v{u+1}, 0xffff0000, v{x}")
        if part == 1: a(f"v_pk_fma_f32 {vr(u,2)}, {vr(u,2)}, {P(sRS+2*r)}, {P(sRS+2*r)} op_sel:[0,0,1] op_sel_hi:[1,0,1]")
        if part == 2: a(f"v_cvt_pk_f16_f32 v{x}, v{u}, v{u+1}")
        if part == 3: a(f"v_add_u32 v{x}, 0x40004, v{x}")
        if part == 4: a(f"v_and_or_b32 v{x}, v{x}, v{vMK}, s{sTG+r}")
xnrow(0, 0)
a(f"v_readlane_b32 s{sT}, v47, 15\n s_cmp_lg_u32 s{sT}, 3\n s_cbranch_scc1 L_norout")
a(f"""
ds_read_b32 v48, v{vMI} offset:{M_KEY}
v_mov_b32 v49, s{sTAG}
s_mov_b64 exec, 1
""")
a(f"global_store_dwordx2 v{vRA}, v[48:49], {P(sWS)} sc1\n s_mov_b64 exec, -1")
a.label("L_norout")
stamp(13)
for r in range(4):
    for part in range(1 if r == 0 else 0, 5): xnrow(r, part)
for r in range(4): a(f"ds_write_b128 v{vIW}, {vr(XR+4*r,4)} offset:{r*LNP}")
a(f"ds_write_b8 v{vFL}, v46 offset:{M_CNT}")
a(f"v_add_u32 v24, 0x20000, v{vXS}\n v_add_u32 v25, 0x40000, v{vXS}\n v_add_u32 v26, 0x60000, v{vXS}")
stamp(2)
lds_spin(28, vMI, M_CNT, 0x01010101)
for b in range(4):
    a(f"ds_read_b64_tr_b16 {vr(XR+4*b,2)}, v{vTR} offset:{64*b}")
    a(f"ds_read_b64_tr_b16 {vr(XR+4*b+2,2)}, v{vTR} offset:{64*b+4*LNP}")
for b in range(4):
    a(f"global_store_dwordx4 v{vXS if b == 0 else 23+b}, {vr(XR+4*b,4)}, {P(sWS)} sc1")
stamp(3)
if OPT["ACK"]: a.wait(vm=0); stamp(12)
a(f"s_cmp_ge_u32 s{sUNIT}, 2\n s_cbranch_scc1 L_xt")
sleep(OPT["POLLDLY"])
a(f"s_cmp_eq_u32 s{sUNIT}, 0\n s_cbranch_scc1 L_rpoll")
endpgm()

a.label("L_noln")
a.reset(); a.smem_any = True
a(f"""
s_cmp_lg_u32 s{sUNIT}, 2
s_cbranch_scc1 L_notm
v_mov_b32 v16, s{sT+3}
global_load_dword v252, v16, {P(sX)}
""")
a.label("L_notm")
flagaddr()
a(f"""
s_lshl_b32 s{sPU}, s{sCG}, 1
s_add_u32 s{sPU}, s{sPU}, s{sUNIT}
s_cmp_lt_u32 s{sCG}, 112
s_cselect_b32 s{sFFN}, 1, 0
s_cmp_lt_u32 s{sUNIT}, 2
s_cselect_b32 s{sFFN}, s{sFFN}, 0
s_bitcmp0_b32 s{sUNIT}, 0
s_cselect_b32 s{sT+8}, s{sWG}, s{sWU}
s_cselect_b32 s{sT+9}, s{sWG+1}, s{sWU+1}
s_cselect_b32 s{sT+10}, 0, {L_WU-L_WG}
s_add_u32 s{sT+10}, s{sT+10}, {L_WG}
v_lshrrev_b32 v16, 1, v1
v_mul_u32_u24 v16, 3584, v16
v_and_b32 v17, 1, v1
v_lshl_add_u32 v16, v17, 4, v16
s_lshl_b32 s{sT+11}, s{sCG}, 5
v_add_u32 v21, s{sT+11}, v16
s_lshl_b32 s{sT+11}, s{sPU}, 13
s_add_u32 s{sT+11}, s{sT+11}, 4096
v_lshl_add_u32 v22, v1, 3, s{sT+11}
s_lshr_b32 s{sT+11}, s{sUNIT}, 1
s_add_u32 s{sT+12}, s{sT+11}, 16
s_lshl_b32 s{sT}, s2, 3
s_add_u32 s{sT}, s{sT}, {WS_ROUT}
v_mov_b32 v16, s{sT}
v_mov_b32 v18, 0
s_barrier
""")
a.wait(lgkm=0)
tagcalc()
a(f"""
s_cmp_lg_u32 s{sUNIT}, 0
s_cbranch_scc1 L_nonull
v_mov_b32 v19, s{sTAG}
s_mov_b64 exec, 1
global_store_dwordx2 v16, v[18:19], {P(sWS)} sc1
s_mov_b64 exec, -1
""")
a.label("L_nonull")
stamp(13)
NDMA = 8 if OPT["DW4"] else 16
def wdl():
    a(f"s_cmp_eq_u32 s{sFFN}, 0\n s_cbranch_scc1 L_nowd")
    for f in range(8):
        for h in range(2):
            a(f"global_load_dwordx2 {vr(WD+4*f+2*h,2)}, v22, {P(sWD)} offset:{f*1024+512*h-4096}{NTW}")
    a.label("L_nowd")
a(f"s_cmp_ge_u32 s{sCG}, 112\n s_cbranch_scc1 L_noffn")
if not OPT["DW4"]: a(f"s_cmp_eq_u32 s{sFFN}, 0\n s_cbranch_scc1 L_noffn")
sleep(OPT["PFD"])
if not OPT["WDL"]: wdl()
sleep(OPT["WDLY"])
a.label("L_dma")
a(f"""
s_lshl_b32 s{sT+14}, s{sT+11}, 10
s_add_u32 m0, s{sT+14}, s{sT+10}
s_mul_i32 s{sT+13}, s{sT+11}, {32*3584}
s_add_u32 s{sT+14}, s{sT+8}, s{sT+13}
s_addc_u32 s{sT+15}, s{sT+9}, 0
s_add_u32 s{sT+11}, s{sT+11}, {2 if OPT['DW4'] else 1}
s_cmp_lg_u32 s{sT+11}, s{sT+12}
global_load_lds_dwordx4 v21, {P(sT+14)}{NTW}
s_cbranch_scc1 L_dma
""")
if OPT["WDL"]: wdl()
if OPT["DW4"]:
    a(f"""
    s_cmp_lt_u32 s{sUNIT}, 2
    s_cbranch_scc1 L_noffn
    v_mov_b32 v16, 1
    s_waitcnt vmcnt(4)
    ds_write_b8 v{vFL}, v16 offset:{M_W}
    s_waitcnt vmcnt(0)
    ds_write_b8 v{vFL}, v16 offset:{M_W2}
    """)
a.label("L_noffn")
stamp(1)
a(f"s_cmp_ge_u32 s{sUNIT}, 2\n s_cbranch_scc1 L_xt")
a(f"s_cmp_eq_u32 s{sFFN}, 1\n s_cbranch_scc1 L_ffnprep")
a(f"s_cmp_eq_u32 s{sUNIT}, 0\n s_cbranch_scc1 L_hop2c")
endpgm()
a.label("L_ffnprep")
a.reset()
pairs = [(0, 2), (4, 6), (1, 3), (5, 7)]
a(f"""
s_mov_b32 s{sT+2}, 0x05040100
s_mov_b32 s{sT+3}, 0x07060302
v_bfe_u32 v16, v1, 2, 2
v_lshrrev_b32 v17, 4, v1
v_lshl_add_u32 v16, v17, 3, v16
v_lshlrev_b32 v16, 5, v16
v_and_b32 v17, 1, v1
v_lshl_add_u32 v16, v17, 3, v16
v_bfe_u32 v17, v1, 1, 1
v_mul_u32_u24 v17, {L_WU-L_WG}, v17
s_lshl_b32 s{sT+4}, s{sUNIT}, 4
s_add_u32 s{sT+4}, s{sT+4}, {L_WG}
v_add3_u32 v20, v16, v17, s{sT+4}
v_mov_b32 v16, 1
""")
def perms():
    for pi, (fa, fb) in enumerate(pairs):
        for c in range(4):
            a(f"v_perm_b32 v{WDP+8*pi+2*c}, v{WD+4*fb+c}, v{WD+4*fa+c}, s{sT+2}")
            a(f"v_perm_b32 v{WDP+8*pi+2*c+1}, v{WD+4*fb+c}, v{WD+4*fa+c}, s{sT+3}")
if not OPT["WDL"]: a(f"s_waitcnt vmcnt({NDMA})"); perms()
WX = 16 if OPT['WDL'] else 0
for hf, (cnt, fl) in enumerate(((NDMA // 2 + WX, M_W), (WX, M_W2))):
    a(f"s_waitcnt vmcnt({cnt})\n ds_write_b8 v{vFL}, v16 offset:{fl}")
    if hf == 1: stamp(2)
    lds_spin(18, vMI, fl, 0x01010101 if OPT['DW4'] else 0x0101)
    for ks in range(8 * hf, 8 * hf + 8):
        for hh in range(2):
            a(f"ds_read_b64_tr_b16 {vr(WF+4*ks+2*hh,2)}, v20 offset:{ks*1024+hh*128}")
if OPT["WDL"]: a("s_waitcnt vmcnt(0)"); perms()
a(f"v_lshrrev_b32 v21, 4, v1\n v_lshlrev_b32 v21, 4, v21\n v_add_u32 v21, {L_XS}, v21")
stamp(4)
lds_spin(18, vMI, M_XS, 1)
stamp(6)
DG = 32
XB = lambda ks: 192 + 4 * (ks % 8)
for ks in range(3): a(f"ds_read_b128 {vr(XB(ks),4)}, v21 offset:{64*ks}")
nx_ = 3
for ks in range(16):
    a.prewait({("v", XB(ks) + j) for j in range(4)})
    for _ in range(2):
        if nx_ < 16 and nx_ - ks < 8: a(f"ds_read_b128 {vr(XB(nx_),4)}, v21 offset:{64*nx_}"); nx_ += 1
    a(f"v_mfma_f32_16x16x32_bf16 {vr(DG,4)}, {vr(WF+4*ks,4)}, {vr(XB(ks),4)}, {'0' if ks == 0 else vr(DG,4)}")
sTB = sT + 6
a(f"""
s_lshr_b32 s{sTB+1}, s{sTAG}, 8
s_lshr_b32 s{sTB+2}, s{sTAG}, 16
s_lshr_b32 s{sTB+3}, s{sTAG}, 24
s_mul_i32 s{sT}, s{sPU}, {PSTR}
s_add_u32 s{sT}, s{sT}, {WS_PART}
v_add_u32 v20, s{sT}, v2
v_mov_b32 v21, 0xff
v_permlane32_swap_b32 v{DG}, v{DG+1}
v_permlane32_swap_b32 v{DG+2}, v{DG+3}
v_mul_f32 v36, 0xbfb8aa3b, v{DG}
v_mul_f32 v37, 0xbfb8aa3b, v{DG+2}
v_exp_f32 v36, v36
v_exp_f32 v37, v37
v_mul_f32 v{DG}, v{DG}, v{DG+1}
v_add_f32 v36, 1.0, v36
v_add_f32 v37, 1.0, v37
v_rcp_f32 v36, v36
v_rcp_f32 v37, v37
v_mul_f32 v{DG+2}, v{DG+2}, v{DG+3}
v_mul_f32 v36, v36, v{DG}
v_mul_f32 v37, v37, v{DG+2}
v_cvt_pk_bf16_f32 v36, v36, v37
""")
sH = sT + 12
for pi in range(4): a(f"v_readlane_b32 s{sH+pi}, v36, {16*pi}")
Y = 40
for half in range(2):
    for pi in range(4):
        for c in range(4 * half, 4 * half + 4):
            a(f"v_dot2_f32_bf16 v{Y+c}, v{WDP+8*pi+c}, s{sH+pi}, {'0' if pi == 0 else 'v%d' % (Y+c)}")
    if half == 1:
        a(f"global_store_dwordx4 v20, {vr(Y,4)}, {P(sWS)} sc1")
    for c in range(4 * half, 4 * half + 4):
        a(f"v_bfi_b32 v{Y+c}, v21, s{sTAG if c % 4 == 0 else sTB + c % 4}, v{Y+c}")
a(f"global_store_dwordx4 v20, {vr(Y+4,4)}, {P(sWS)} offset:1024 sc1")
stamp(7)
a(f"s_cmp_eq_u32 s{sUNIT}, 0\n s_cbranch_scc1 L_hop2")
endpgm()
a.label("L_rpoll")
a.wait(vm=0, lgkm=0)
a.reset()
a(f"s_cmp_eq_u32 s{sHS}, {OPT['LNHS']}\n s_cbranch_scc1 L_rp0")
if OPT["DW4"]: a(f"s_cmp_lt_u32 s{sCG}, 112\n s_cbranch_scc1 L_rp0")
sleep(OPT["PD2"])
a.label("L_rp0")
a(f"v_add_u32 v40, {WS_ROUT}, v2\n s_mov_b32 s{sT+1}, 0")
a.label("L_rp1")
a(f"""
global_load_dwordx4 v[44:47], v40, {P(sWS)} sc1
global_load_dwordx4 v[48:51], v40, {P(sWS)} offset:1024 sc1
s_add_u32 s{sT+1}, s{sT+1}, 1
""")
a.wait(vm=0)
a(f"""
v_xor_b32 v45, s{sTAG}, v45
v_xor_b32 v47, s{sTAG}, v47
v_xor_b32 v49, s{sTAG}, v49
v_xor_b32 v51, s{sTAG}, v51
v_max3_u32 v44, v44, v46, v48
v_or3_b32 v45, v45, v47, v49
v_max_u32 v44, v44, v50
v_or_b32 v45, v45, v51
v_cmp_ne_u32 vcc, 0, v45
s_cbranch_vccz L_rp2
s_cmp_lt_u32 s{sT+1}, {OPT['POLLMAX']}
s_cbranch_scc1 L_rp1
""")
a.label("L_rp2")
for st in DPP4: a(f"v_max_u32_dpp v44, v44, v44 {st} row_mask:0xf bank_mask:0xf bound_ctrl:0")
a(f"""
v_max_u32_dpp v44, v44, v44 row_bcast:15 row_mask:0xa bank_mask:0xf
v_max_u32_dpp v44, v44, v44 row_bcast:31 row_mask:0xc bank_mask:0xf
v_readlane_b32 s{sKEY}, v44, 63
s_and_b32 s{sIDX}, s{sKEY}, 0x7ff
s_sub_u32 s{sIDX}, 2047, s{sIDX}
s_lshl_b32 s{sT+14}, s{sIDX}, 10
s_lshl_b32 s{sT+15}, s{sIDX}, 3
s_add_u32 s{sT+15}, s{sT+15}, {WS_STAT}
v_add_u32 v41, s{sT+14}, v2
v_mov_b32 v42, s{sT+15}
s_cmp_lt_u32 s{sCG}, 112
s_cselect_b32 s{sT+16}, 1, 0
s_cmp_lg_u32 s{sHS}, {OPT['LNHS']}
s_cselect_b32 s{sT+16}, s{sT+16}, 0
s_cmp_eq_u32 s{sT+16}, 0
s_cbranch_scc1 L_rp3
global_load_dwordx4 v[44:47], v41, {P(sX)}{NTX}
global_load_dwordx2 v[48:49], v42, {P(sWS)} sc1
""")
a.label("L_rp3")
a(f"""
v_mov_b32 v112, 1
v_mov_b32 v113, s{sIDX}
v_mov_b32 v114, s{sKEY}
s_mov_b64 exec, 1
ds_write_b96 v{vMI}, v[112:114] offset:{M_RT}
s_cmp_lg_u32 s2, 0
s_cbranch_scc1 L_rp5
v_mov_b32 v116, 0
v_mov_b32 v117, s{sTAG}
global_store_dword v116, v117, {P(sWS)} sc1
""")
a.label("L_rp5")
a("s_mov_b64 exec, -1")
if STAMPS: a(f"s_mov_b32 s{sST+13}, s{sT+1}")
stamp(14)
a(f"s_cmp_eq_u32 s{sHS}, {OPT['LNHS']}\n s_cbranch_scc1 L_hop2b")
a(f"s_cmp_eq_u32 s{sT+16}, 0\n s_cbranch_scc1 L_xt1")
a.reset()
a(f"v_add_u32 v41, {L_XS}, v2\n s_mov_b32 s{sT+1}, 0")
a.label("L_st1")
a.wait(vm=0)
a(f"""
v_xor_b32 v48, s{sTLO}, v48
v_xor_b32 v49, s{sTHI}, v49
v_or_b32 v50, v48, v49
v_and_b32 v50, 0xffff, v50
v_cmp_ne_u32 vcc, 0, v50
s_cbranch_vccz L_st2
s_add_u32 s{sT+1}, s{sT+1}, 1
s_cmp_ge_u32 s{sT+1}, {OPT['POLLMAX']}
s_cbranch_scc1 L_st2
global_load_dwordx2 v[48:49], v42, {P(sWS)} sc1
s_branch L_st1
""")
a.label("L_st2")
a.reset()
FX = 116
a(f"v_rcp_f32 v50, v49")
for i in range(4):
    a(f"v_lshlrev_b32 v{FX+2*i}, 16, v{44+i}\n v_and_b32 v{FX+2*i+1}, 0xffff0000, v{44+i}")
a(f"v_mul_f32 v51, -v48, v50")
for i in range(4):
    a(f"v_pk_fma_f32 {vr(FX+2*i,2)}, {vr(FX+2*i,2)}, v[50:51], v[50:51] op_sel:[0,0,1] op_sel_hi:[1,0,1]")
for i in range(4): a(f"v_cvt_pk_bf16_f32 v{44+i}, v{FX+2*i}, v{FX+2*i+1}")
a(f"""
ds_write_b128 v41, v[44:47]
s_mov_b64 exec, 1
ds_write_b32 v{vMI}, v112 offset:{M_XS}
s_mov_b64 exec, -1
""")
stamp(10)
a("s_branch L_xt2")
a.label("L_hop2c")
lds_spin(18, vMI, M_RT, 1)
a.label("L_hop2b")
sleep(OPT["H2B"] - OPT["H2A"])
a.label("L_hop2")
a.reset()
a(f"""
ds_read_b96 v[16:18], v{vMI} offset:{M_RT}
v_readfirstlane_b32 s{sIDX}, v17
v_readfirstlane_b32 s{sKEY}, v18
s_lshr_b32 s{sT}, s{sIDX}, 8
s_add_u32 s{sT}, s{sT}, 6
s_and_b32 s{sT}, s{sT}, 7
s_lshr_b32 s{sT}, s{sT}, 2
s_xor_b32 s{sT}, s{sT}, 1
s_cmp_eq_u32 s{sT}, s{sHS}
s_cbranch_scc1 L_h1
""")
endpgm()
a.label("L_h1")
a(f"""
s_and_b32 s{sTB}, s{sTAG}, 0xff
s_bfe_u32 s{sTB+1}, s{sTAG}, 0x80008
s_bfe_u32 s{sTB+2}, s{sTAG}, 0x80010
s_lshr_b32 s{sTB+3}, s{sTAG}, 24
s_lshl_b32 s{sT}, s{sCG}, 4
s_add_u32 s{sT}, s{sT}, {WS_PART}
v_mul_u32_u24 v20, {PSTR}, v1
v_add_u32 v20, s{sT}, v20
v_add_u32 v21, {64*PSTR}, v20
v_add_u32 v22, {128*PSTR}, v20
v_add_u32 v23, {192*PSTR}, v20
v_mov_b32 v36, s{sTB}
v_mov_b32 v37, s{sTB+1}
v_mov_b32 v38, s{sTB+2}
v_mov_b32 v39, s{sTB+3}
s_and_b32 s{sT}, s{sKEY}, 0xfffff800
s_xor_b32 s{sT+2}, s{sT}, 0x80000000
s_not_b32 s{sT+3}, s{sT}
s_bitcmp1_b32 s{sT}, 31
s_cselect_b32 s{sT}, s{sT+2}, s{sT+3}
v_mov_b32 v44, s{sT}
v_mul_f32 v44, 0xbfb8aa3b, v44
v_exp_f32 v44, v44
s_mov_b32 s{sT+1}, 0
v_add_f32 v44, 1.0, v44
v_rcp_f32 v44, v44
s_lshl_b32 s{sT}, s{sIDX}, 10
s_lshl_b32 s{sT+2}, s{sCG}, 3
s_add_u32 s{sT}, s{sT}, s{sT+2}
v_lshrrev_b32 v45, 4, v1
v_and_b32 v46, 1, v45
v_lshrrev_b32 v45, 1, v45
v_lshl_add_u32 v45, v46, 1, v45
v_lshl_add_u32 v46, v45, 2, v{vMI}
v_lshl_add_u32 v45, v45, 1, s{sT}
""")
sleep(OPT["H2A"] - 2)
a.label("L_h2")
a(f"""
global_load_dwordx4 v[24:27], v20, {P(sWS)} sc1
global_load_dwordx4 v[28:31], v21, {P(sWS)} sc1
global_load_dwordx4 v[32:35], v22, {P(sWS)} sc1
s_mov_b32 exec_hi, 0
global_load_dwordx4 v[36:39], v23, {P(sWS)} sc1
s_mov_b32 exec_hi, -1
s_add_u32 s{sT+1}, s{sT+1}, 1
""")
a.wait(vm=0)
for i in range(4): a(f"v_xor_b32 v{40+i}, v{24+i}, v{28+i}")
for i in range(4): a(f"v_xor_b32 v{48+i}, v{32+i}, v{36+i}")
for i in range(4): a(f"v_xor_b32 v{16+i}, s{sTB+i}, v{24+i}")
a(f"""
v_or3_b32 v40, v40, v41, v42
v_or3_b32 v48, v48, v49, v50
v_or3_b32 v16, v16, v17, v18
v_xor_b32 v41, v24, v32
v_xor_b32 v42, v25, v33
v_xor_b32 v49, v26, v34
v_xor_b32 v50, v27, v35
v_or3_b32 v40, v40, v43, v48
v_or3_b32 v16, v16, v19, v51
v_or3_b32 v41, v41, v42, v49
v_or3_b32 v40, v40, v16, v50
v_or_b32 v40, v40, v41
v_and_b32 v40, 0xff, v40
v_cmp_ne_u32 vcc, 0, v40
s_cbranch_vccz L_h3
s_cmp_lt_u32 s{sT+1}, {OPT['POLLMAX']}
s_cbranch_scc1 L_h2
""")
a.label("L_h3")
stamp(8)
if STAMPS: a(f"s_mov_b32 s{sST+11}, s{sT+1}")
a(f"""
v_pk_add_f32 v[24:25], v[24:25], v[28:29]
v_pk_add_f32 v[26:27], v[26:27], v[30:31]
v_pk_add_f32 v[32:33], v[32:33], v[36:37]
v_pk_add_f32 v[34:35], v[34:35], v[38:39]
v_pk_add_f32 v[24:25], v[24:25], v[32:33]
v_pk_add_f32 v[26:27], v[26:27], v[34:35]
v_permlane32_swap_b32 v24, v25
v_permlane32_swap_b32 v26, v27
v_add_f32 v24, v24, v25
v_add_f32 v26, v26, v27
v_permlane16_swap_b32 v24, v26
v_add_f32 v24, v24, v26
""")
for st in DPP4: a(f"v_add_f32_dpp v24, v24, v24 {st} row_mask:0xf bank_mask:0xf bound_ctrl:0")
lds_spin(18, vMI, M_SV, 1)
a(f"""
ds_read_b32 v25, v46 offset:{M_SAVE}
v_fma_f32 v25, v24, v44, v25
v_cvt_pk_bf16_f32 v25, v25, v25
s_mov_b32 exec_lo, 0x80008000
s_mov_b32 exec_hi, 0x80008000
global_store_short v45, v25, {P(sOUT)}
""")
stamp(9)
endpgm()
a.label("L_xt")
a.reset()
XT, ST = 64, 96
sE = sT + 2
sJ = sT + 6
a(f"s_sub_u32 s{sUNIT}, s{sUNIT}, 2\n v_subrev_u32 v{vFL}, 2, v{vFL}")
for i in range(4):
    a(f"""
    s_bfe_u32 s{sE+i}, s{sTAG}, {0x30000 + 6*i}
    s_bfe_u32 s{sT}, s{sTAG}, {0x30000 + 6*i + 3}
    s_lshl_b32 s{sT}, s{sT}, 16
    s_or_b32 s{sE+i}, s{sE+i}, s{sT}
    """)
vUW, vTOK, vSTA, vYR, vUR, vOA = 24, 25, 26, 27, 28, 29
a(f"""
s_cmp_eq_u32 s{sHS}, 0
s_cselect_b32 s{sJ}, 0, 512
s_cselect_b32 s{sJ+2}, 512, 0
s_add_u32 s{sJ+1}, s{sJ}, 256
s_add_u32 s{sJ+2}, s{sJ+2}, 1024
s_add_u32 s{sJ+3}, s{sJ+2}, 256
s_lshl_b32 s{sT}, s{sCG}, 14
s_lshl_b32 s{sT+1}, s{sUNIT}, 10
s_add_u32 s{sT}, s{sT}, s{sT+1}
s_add_u32 s{sT}, s{sT}, {WS_XT + 4096}
v_add_u32 v20, s{sT}, v2
v_add_u32 v21, 0x2000, v20
v_and_b32 v17, 3, v1
v_mul_u32_u24 v17, {USTR}, v17
v_lshrrev_b32 v16, 2, v1
v_lshl_add_u32 v17, v16, 4, v17
s_lshl_b32 s{sT}, s{sUNIT}, 8
s_add_u32 s{sT}, s{sT}, {L_U + 512}
v_add_u32 v{vUW}, s{sT}, v17
s_lshl_b32 s{sT}, s{sUNIT}, 6
v_add_u32 v{vTOK}, s{sT}, v1
v_lshlrev_b32 v{vSTA}, 3, v{vTOK}
v_add_u32 v{vSTA}, {WS_STAT}, v{vSTA}
v_and_b32 v16, 3, v1
v_mul_u32_u24 v16, {YJ}, v16
v_bfe_u32 v17, v1, 2, 2
v_lshl_add_u32 v16, v17, 6, v16
v_lshrrev_b32 v17, 4, v{vTOK}
v_lshl_add_u32 v{vYR}, v17, 2, v16
v_lshlrev_b32 v{vUR}, 1, v{vTOK}
v_add_u32 v{vUR}, {L_U + 512}, v{vUR}
s_lshl_b32 s{sT}, s{sCG}, 3
v_lshl_add_u32 v{vOA}, v{vTOK}, 10, s{sT}
""")
for q in range(4):
    a(f"s_lshl_b32 s{sT}, s{sJ+q}, 3\n v_add_u32 v{30+q}, s{sT}, v{vSTA}")
for j in range(8): a(f"v_mov_b32 v{XT+24+j}, s{sE+j%4}")
a(f"""
s_cmp_eq_u32 s{sHS}, {OPT['LNHS']}
s_cselect_b32 s{sT}, 1, s{sUNIT}
s_cmp_eq_u32 s{sT}, 0
s_cbranch_scc1 L_rpoll
""")
lds_spin(18, vMI, M_RT, 1, width=2)
a(f"v_readfirstlane_b32 s{sIDX}, v19")
a.label("L_xt1")
sleep(OPT["XTDLY"])
a.label("L_xt2")
a.reset()
stamp(4)
a(f"s_mov_b32 s{sT+1}, 0")
a.label("L_x1")
for i in range(8):
    if i == 6: a(f"s_cmp_eq_u32 s{sHS}, 1\n s_cbranch_scc1 L_x1b")
    a(f"global_load_dwordx4 {vr(XT+4*i,4)}, v{20+i//4}, {P(sWS)} offset:{(i%4)*2048-4096} sc1")
a.label("L_x1b")
a(f"s_add_u32 s{sT+1}, s{sT+1}, 1")
for i in range(8):
    if i < 6: a(f"s_waitcnt vmcnt({5-i})" if False else "s_nop 0") if False else None
a.vmq = [set() for _ in range(0)]
for i in range(8):
    a(f"s_waitcnt vmcnt({max(5-i,0)})")
    for j in range(4): a(f"v_xor_b32 v{112+4*(i%2)+j}, s{sE+j}, v{XT+4*i+j}")
    a(f"ds_write_b128 v{vUW}, {vr(112+4*(i%2),4)} offset:{512*i}")
    b = 112 + 4 * (i % 2)
    if i == 0: a(f"v_or3_b32 v16, v{b}, v{b+1}, v{b+2}\n v_mov_b32 v17, v{b+3}")
    else: a(f"v_or3_b32 v16, v16, v{b}, v{b+1}\n v_or3_b32 v17, v17, v{b+2}, v{b+3}")
a(f"""
v_or_b32 v16, v16, v17
v_and_b32 v16, 0x70007, v16
v_cmp_ne_u32 vcc, 0, v16
s_cbranch_vccz L_x2
s_cmp_lt_u32 s{sT+1}, {OPT['POLLMAX']}
s_cbranch_scc1 L_x1
""")
a.label("L_x2")
a(f"v_mov_b32 v16, 1\n ds_write_b8 v{vFL}, v16 offset:{M_U}")
if STAMPS: a(f"s_mov_b32 s{sST+11}, s{sT+1}")
stamp(5)
a(f"s_mov_b32 s{sT+1}, 0")
a.label("L_x3")
for i in range(8):
    a(f"global_load_dwordx2 {vr(ST+2*i,2)}, v{30+i//2}, {P(sWS)} offset:{(i%2)*1024} sc1")
for i in range(8):
    a(f"v_xor_b32 v{ST+2*i}, s{sTLO}, v{ST+2*i}\n v_xor_b32 v{ST+2*i+1}, s{sTHI}, v{ST+2*i+1}")
    a(f"v_or3_b32 v16, {'0' if i == 0 else 'v16'}, v{ST+2*i}, v{ST+2*i+1}")
a(f"""
v_and_b32 v16, 0xffff, v16
v_cmp_ne_u32 vcc, 0, v16
s_cbranch_vccz L_x4
s_add_u32 s{sT+1}, s{sT+1}, 1
s_cmp_lt_u32 s{sT+1}, {OPT['POLLMAX']}
s_cbranch_scc1 L_x3
""")
a.label("L_x4")
a.reset()
stamp(2)
INV = 36
sOB = sT + 12
for q in range(4):
    lds_spin(18, vMI, M_T + 4 * q, 0x01010101)
    if q == 0: stamp(3)
    if q == 3: stamp(12)
    if q == 0: a(f"ds_read_b128 {vr(INV,4)}, v{vMI} offset:{M_INV}")
    a(f"s_lshl_b32 s{sT}, s{sJ+q}, 1\n v_add_u32 v30, s{sT}, v{vUR}")
    a(f"s_lshl_b32 s{sT}, s{sJ+q}, 10\n s_add_u32 s{sOB}, s{sOUT}, s{sT}\n s_addc_u32 s{sOB+1}, s{sOUT+1}, 0")
    a(f"s_sub_u32 s{sT+11}, s{sIDX}, s{sJ+q}")
    for h in range(2):
        y, u = 112 + 8 * h, 116 + 8 * h
        for c in range(4):
            a(f"ds_read_b32 v{y+c}, v{vYR} offset:{L_KT + c*KT_SZ + q*YQ + h*32}")
            a(f"ds_read_u16_d16 v{u+c}, v30 offset:{c*USTR + h*256}")
    for h in range(2):
        y, u, i = 112 + 8 * h, 116 + 8 * h, 2 * q + h
        for c in range(4):
            a(f"v_fma_mix_f32 v{u+c}, v{u+c}, v{ST+2*i+1}, v{ST+2*i} op_sel_hi:[1,0,0]")
        if h == 1: a(f"s_sub_u32 s{sT+11}, s{sT+11}, 128")
        a(f"v_cmp_ne_u32 vcc, s{sT+11}, v{vTOK}")
        for c in range(4):
            a(f"v_fma_f32 v{y+c}, v{y+c}, v{INV+c}, v{u+c}")
        a(f"v_cvt_pk_bf16_f32 v{u}, v{y}, v{y+1}\n v_cvt_pk_bf16_f32 v{u+1}, v{y+2}, v{y+3}")
        if h == 1: a(f"s_add_u32 s{sOB}, s{sOB}, 0x20000\n s_addc_u32 s{sOB+1}, s{sOB+1}, 0")
        Lk = a.newlabel("nosave")
        a(f"""
        s_mov_b64 exec, vcc
        global_store_dwordx2 v{vOA}, {vr(u,2)}, {P(sOB)}
        s_not_b64 exec, exec
        s_cbranch_execz {Lk}
        v_mov_b32 v16, 1
        ds_write_b128 v{vMI}, {vr(y,4)} offset:{M_SAVE}
        ds_write_b32 v{vMI}, v16 offset:{M_SV}
        """)
        a.label(Lk)
        a("s_mov_b64 exec, -1")
    stamp(6 + q)
endpgm()

a.raw(".p2align 6")
a.label("L_conv")
a.reset()
a.smem_any = True
a.vmq = [{("v", 255)}]
PRM, BAND = 4, 12
KW, T2, T3, ACC, DT, BX2, BX3, URING = 36, 104, 128, 144, 160, 176, 208, 224
NRING = 6
vKTA, vWA, vWT2, vWT3, vKWB, vT, vKW, vTAB, vU, vCF, vK0, vDmp = 248, 249, 250, 251, 252, 253, 254, 247, 2, 3, 10, 11
sCH, sLD, sDS, sKWB, sUB = sT + 2, sT + 3, sT + 4, sT + 5, sT + 9
a(f"""
s_lshl_b32 s{sCH}, s{sCG}, 2
s_add_u32 s{sCH}, s{sCH}, s{sWAVE}
s_lshl_b32 s{sT+6}, s{sCH}, 8
v_lshl_add_u32 v36, v1, 2, s{sT+6}
s_lshr_b32 s{sT+6}, s{sCH}, 1
s_lshl_b32 s{sT+6}, s{sT+6}, 2
""")
a.wait(lgkm=0)
if STAMPS: a(f"s_mov_b32 s{sST}, s88")
for i, s_ in enumerate((sARE, sAIM, sBRE, sBIM, sCRE, sCIM)):
    a(f"global_load_dword v{PRM+i}, v36, {P(s_)}{NTP}")
a(f"""
s_load_dword s{sLD}, {P(sLDT)}, s{sT+6}
s_load_dword s{sDS}, {P(sDSK)}, s{sT+6}
""")
def wpf(L_skip, mode):
    if mode == 1: a(f"s_cmp_ge_u32 s{sWAVE}, 2\n s_cbranch_scc1 {L_skip}")
    if mode == 2: a(f"s_cmp_lt_u32 s{sWAVE}, 2\n s_cbranch_scc1 {L_skip}")
    a(f"""
    s_cmp_lg_u32 s{sHS}, {OPT['LNHS']}
    s_cbranch_scc1 {L_skip}
    s_cmp_ge_u32 s{sCG}, 112
    s_cbranch_scc1 {L_skip}
    s_bitcmp0_b32 s{sWAVE}, 0
    s_cselect_b32 s{sT+10}, s{sWG}, s{sWU}
    s_cselect_b32 s{sT+11}, s{sWG+1}, s{sWU+1}
    s_lshr_b32 s{sT+7}, s{sCG}, 4
    s_lshl_b32 s{sT+7}, s{sT+7}, 9
    s_and_b32 s{sT+8}, s{sCG}, 15
    s_lshr_b32 s{sT+12}, s{sWAVE}, 1
    s_lshl_b32 s{sT+12}, s{sT+12}, 4
    s_add_u32 s{sT+8}, s{sT+8}, s{sT+12}
    s_mul_i32 s{sT+8}, s{sT+8}, {16*3584}
    s_add_u32 s{sT+7}, s{sT+7}, s{sT+8}
    v_lshrrev_b32 v38, 2, v1
    v_mul_u32_u24 v38, 3584, v38
    v_and_b32 v39, 3, v1
    v_lshl_add_u32 v38, v39, 7, v38
    v_add_u32 v38, s{sT+7}, v38
    global_load_dword v{URING+1}, v38, {P(sT+10)}{NTF}
    """)
if OPT["PFW"] and OPT["PFE"]: wpf("L_w1", 0 if OPT["PFE"] == 1 else 1); a.label("L_w1")
a(f"""
v_add_u32 v{vTAB}, L_tab-L_pc, v2
s_mul_i32 s{sKWB}, s{sWAVE}, {KW_SZ}
s_add_u32 s{sKWB}, s{sKWB}, {L_KW}
s_mul_i32 s{sT+7}, s{sWAVE}, {KT_SZ}
s_mov_b32 m0, s{sT+7}
v_and_b32 v42, 31, v1
v_lshrrev_b32 v43, 5, v1
v_mul_u32_u24 v{vKTA}, {ROWP}, v42
v_lshl_add_u32 v{vKTA}, v43, 4, v{vKTA}
v_add_u32 v{vKTA}, s{sT+7}, v{vKTA}
v_mov_b32 v40, 0
v_mov_b32 v41, 0
v_mov_b32 v42, 0
v_mov_b32 v43, 0
v_add_u32 v39, s{sKWB}, v2
ds_write_b128 v39, v[40:43]
ds_write_b128 v39, v[40:43] offset:768
s_mul_i32 s{sUB}, s{sWAVE}, {USTR}
s_add_u32 s{sUB}, s{sUB}, {L_U}
v_lshl_add_u32 v39, v1, 3, s{sUB}
ds_write_b64 v39, v[40:41]
v_lshrrev_b32 v38, 4, v1
v_mul_u32_u24 v38, {KW_NS}, v38
v_and_b32 v39, 15, v1
v_lshl_add_u32 v38, v39, 3, v38
v_cmp_lt_u32 vcc, 8, v39
s_add_u32 s{sT+7}, s{sKWB}, {KW_N}
v_add_u32 v38, s{sT+7}, v38
v_add_u32 v39, {1104 - 72}, v38
v_cndmask_b32 v38, v38, v39, vcc
ds_write_b64 v38, v[40:41]
v_cmp_eq_u32 vcc, 0, v1
s_barrier
""")
late = f"""
v_and_b32 v40, 15, v1
v_lshrrev_b32 v41, 4, v1
v_and_b32 v42, 31, v1
v_lshrrev_b32 v43, 5, v1
v_and_b32 v44, 1, v1
v_mov_b32 v{vKWB}, s{sKWB}
s_add_u32 s{sT+7}, s{sKWB}, {KW_N + 1088}
v_sub_u32 v{vWA}, s{sT+7}, v2
v_lshlrev_b32 v45, 8, v44
v_lshrrev_b32 v46, 1, v1
v_lshlrev_b32 v46, 2, v46
v_sub_u32 v45, v45, v46
s_add_u32 s{sT+7}, s{sKWB}, {47*4}
v_add_u32 v{vWT2}, s{sT+7}, v45
v_lshrrev_b32 v45, 1, v42
v_lshl_add_u32 v45, v43, 5, v45
v_lshlrev_b32 v45, 2, v45
v_lshlrev_b32 v46, 1, v44
v_sub_u32 v45, v46, v45
s_add_u32 s{sT+7}, s{sKWB}, {512 + 47*4}
v_add_u32 v{vWT3}, s{sT+7}, v45
v_lshlrev_b32 v45, 2, v41
v_sub_u32 v46, v45, v40
v_lshlrev_b32 v46, 2, v46
v_mul_u32_u24 v45, {KW_T1}, v44
v_sub_u32 v46, v46, v45
s_add_u32 s{sT+7}, s{sKWB}, {60 + KW_T1}
v_add_u32 v{vT}, s{sT+7}, v46
v_and_b32 v45, 3, v1
v_mul_u32_u24 v45, {KW_NS}, v45
v_lshl_add_u32 v45, v41, 4, v45
v_and_b32 v46, 12, v1
v_lshlrev_b32 v46, 1, v46
v_sub_u32 v45, v45, v46
s_add_u32 s{sT+7}, s{sKWB}, {KW_N + 1064 - 1024}
v_add_u32 v{vKW}, s{sT+7}, v45
v_lshlrev_b32 v{vU}, 5, v40
v_lshl_add_u32 v{vU}, v41, 4, v{vU}
v_add_u32 v{vU}, s{sUB}, v{vU}
v_lshlrev_b32 v45, 2, v1
v_add_u32 v45, {L_MISC + M_DUMMY}, v45
s_add_u32 s{sT+7}, s{sWAVE}, {L_MISC}
v_mov_b32 v46, s{sT+7}
v_cndmask_b32 v{vCF}, v45, v46, vcc
""".strip().split("\n")
if STAMPS: a("s_memrealtime s[92:93]")
a.wait(lgkm=0)
if STAMPS: a(f"s_mov_b32 s{sST+10}, s92")
DTv, K1, K2, ONE = 82, 83, 84, 85
a(f"""
s_lshl_b32 s{sT+7}, s{sLD}, 16
s_and_b32 s{sLD}, s{sLD}, 0xffff0000
s_lshl_b32 s{sT+8}, s{sDS}, 16
s_and_b32 s{sDS}, s{sDS}, 0xffff0000
s_bitcmp1_b32 s{sCH}, 0
s_cselect_b32 s{sLD}, s{sLD}, s{sT+7}
s_cselect_b32 s{sDS}, s{sDS}, s{sT+8}
v_mov_b32 v{DTv}, s{sLD}
v_mul_f32 v{DTv}, 0x3fb8aa3b, v{DTv}
v_exp_f32 v{DTv}, v{DTv}
v_mov_b32 v{ONE}, 0x3c00
v_cvt_pk_bf16_f32 v{DTv}, v{DTv}, v{DTv}
v_lshlrev_b32 v{DTv}, 16, v{DTv}
v_mul_f32 v{K1}, 0x3fb8aa3b, v{DTv}
v_mul_f32 v{K2}, 0x3e22f983, v{DTv}
v_add_f32 v{vK0}, 1.0, s{sDS}
v_and_b32 v86, 0x7fffffff, v{vK0}
v_cndmask_b32 v{vK0}, 0, v{vK0}, vcc
v_add_u32 v{URING}, 4096, v{vTAB}
""")
if OPT["PFW"]:
    if OPT["PFE"] == 0: wpf("L_wa", 0)
    if OPT["PFE"] == 2: wpf("L_w2", 2); a.label("L_w2")
    a(f"""
    s_cmp_lg_u32 s{sHS}, {OPT['LNHS']}
    s_cbranch_scc1 L_wa
    s_cmp_ge_u32 s{sCG}, 112
    s_cbranch_scc1 L_wa
    s_waitcnt vmcnt(1)
    s_branch L_wb
    """)
    a.label("L_wa")
a.wait(vm=0)
a.label("L_wb")
a.vmq = [{("v", URING + 1)}]
sleep(OPT["KGDLY"])
if OPT["STAG"]:
    Ls = a.newlabel("stag"); a(f"s_mov_b32 s{sT+7}, s{sWAVE}"); a.label(Ls)
    a(f"s_cmp_eq_u32 s{sT+7}, 0\n s_cbranch_scc1 {Ls}x\n s_sleep {OPT['STAG']}\n s_sub_u32 s{sT+7}, s{sT+7}, 1\n s_branch {Ls}"); a.label(Ls + "x")
stamp(1)
def cyc(k):
    if STAMPS:
        a("s_memtime s[94:95]"); a.wait(lgkm=0)
        if k is None: a("s_mov_b32 s93, s94")
        else: a(f"s_sub_u32 s{sST+k}, s94, s93")
cyc(None)
Z = [36, 38]; W = [40, 42]; TB, TC = 44, 46
E1, E2, E8, E256, CUR, TMP, SV = 52, 54, 56, 58, 60, 62, 64
CV = list(range(88, 100)); cvi = [0]; pendw = []
def flushw():
    for (c, r) in pendw: a(f"ds_write_addtid_b32 v{c} offset:{r*ROWP}")
    pendw.clear()
def cmul(d, x, y):
    a(f"v_pk_mul_f32 {vr(TMP,2)}, {vr(x,2)}, {vr(y,2)} op_sel:[0,0] op_sel_hi:[1,0]")
    a(f"v_pk_fma_f32 {vr(d,2)}, {vr(x,2)}, {vr(y,2)}, {vr(TMP,2)} op_sel:[1,1,0] op_sel_hi:[0,1,1] neg_lo:[1,0,0]")
def put(rows, x, neg):
    c = CV[cvi[0] % len(CV)]; cvi[0] += 1
    a(f"v_cvt_pk_f16_f32 v{c}, v{x}, {'-' if neg else ''}v{x+1}")
    for r in rows: pendw.append((c, r))
    if len(pendw) >= OPT["KB"]: flushw()
def unp(d, src, hi):
    a(f"v_and_b32 v{d}, 0xffff0000, v{src}" if hi else f"v_lshlrev_b32 v{d}, 16, v{src}")
for s_ in range(2):
    unp(TB, PRM + 2, s_); unp(TB + 1, PRM + 3, s_); unp(TC, PRM + 4, s_); unp(TC + 1, PRM + 5, s_)
    unp(Z[s_], PRM, s_); unp(Z[s_] + 1, PRM + 1, s_)
    cmul(W[s_], TB, TC)
    a(f"v_mul_f32 v{Z[s_]}, v{Z[s_]}, v{K1}\n v_mul_f32 v{Z[s_]+1}, v{Z[s_]+1}, v{K2}")
SUM = 87
a(f"""
v_add_f32 v{SUM}, |v{W[0]}|, |v{W[0]+1}|
v_add_f32 v70, |v{W[1]}|, |v{W[1]+1}|
v_add_f32 v{SUM}, v{SUM}, v70
""")
red = [f"v_add_f32_dpp v{SUM}, v{SUM}, v{SUM} {st} row_mask:0xf bank_mask:0xf bound_ctrl:0" for st in DPP4]
red += [f"v_add_f32_dpp v{SUM}, v{SUM}, v{SUM} row_bcast:15 row_mask:0xa bank_mask:0xf", f"v_add_f32_dpp v{SUM}, v{SUM}, v{SUM} row_bcast:31 row_mask:0xc bank_mask:0xf"]
def evalE(s_, extra):
    zr, zi = Z[s_], Z[s_] + 1
    ex = list(extra)
    def X():
        if ex: a(ex.pop(0))
    for (d, lit) in ((E8, "0x41000000"), (E1, None), (E256, "0x43800000")):
        if lit:
            a(f"v_mul_f32 v70, {lit}, v{zi}"); a(f"v_mul_f32 v72, {lit}, v{zr}"); X()
            a("v_fract_f32 v70, v70"); a("v_exp_f32 v72, v72")
        else:
            a(f"v_fract_f32 v70, v{zi}"); a(f"v_exp_f32 v72, v{zr}")
        a(f"v_cos_f32 v{d}, v70"); a(f"v_sin_f32 v{d+1}, v70"); X()
        a(f"v_pk_mul_f32 {vr(d,2)}, {vr(d,2)}, v[72:73] op_sel_hi:[1,0]"); X()
    while ex: X()
FR = 160
def ktread(kind):
    flushw()
    for k in range(8):
        base = FR + 4 * k + (32 if kind == "B" else 0)
        a(f"ds_read_b128 {vr(base,4)}, v{vKTA} offset:{32*k + (24*ROWP if kind == 'B' else 0)}")
def kmfma(k, first):
    a(f"v_mfma_f32_32x32x16_f16 {vr(ACC,16)}, {vr(FR+4*k,4)}, {vr(FR+32+4*k,4)}, {'0' if first else vr(ACC,16)}")
H16 = [None, 74, 75, 76]; G1, H2, T16 = 66, 68, 77
def qrows(hook):
    pendw.append((ONE, 24))
    if not OPT["Q16"]:
        put([25], E8, False)
        for j in range(2, 32):
            cmul(CUR, E8 if j == 2 else CUR, E8); put([24 + j], CUR, False); hook(j)
        return
    cmul(H2, E8, E8); cmul(CUR, H2, E8); cmul(G1, H2, H2)
    for v_, x in ((1, E8), (2, H2), (3, CUR)):
        a(f"v_cvt_pk_f16_f32 v{H16[v_]}, v{x}, v{x+1}"); pendw.append((H16[v_], 24 + v_))
    flushw(); hook(0)
    for u_ in range(1, 8):
        if u_ > 1: cmul(CUR, G1 if u_ == 2 else CUR, G1)
        g = CV[cvi[0] % len(CV)]; cvi[0] += 1
        x = G1 if u_ == 1 else CUR
        a(f"v_cvt_pk_f16_f32 v{g}, v{x}, v{x+1}"); pendw.append((g, 24 + 4 * u_))
        for v_ in (1, 2, 3):
            c = CV[cvi[0] % len(CV)]; cvi[0] += 1
            a(f"v_pk_mul_f16 v{T16}, v{g}, v{H16[v_]} op_sel:[0,0] op_sel_hi:[1,0]")
            a(f"v_pk_fma_f16 v{c}, v{g}, v{H16[v_]}, v{T16} op_sel:[1,1,0] op_sel_hi:[0,1,1] neg_lo:[1,0,0]")
            pendw.append((c, 24 + 4 * u_ + v_))
        flushw(); hook(u_)
def prows(s_):
    w = W[s_]
    put([0], w, True)
    for e in range(1, 8):
        cmul(CUR, w if e == 1 else CUR, E1); put([e if e < 4 else e + 4], CUR, True)
    cmul(E2, E1, E1)
    cmul(CUR, w, E256); put([4, 5], CUR, True)
    cmul(CUR, CUR, E2); put([6], CUR, True)
    cmul(SV, CUR, E2); put([7, 12, 13], SV, True)
    cmul(CUR, SV, E2); put([14], CUR, True)
    cmul(CUR, CUR, E2); put([15], CUR, True)
    cmul(SV, SV, E256); put([16], SV, True)
    cmul(CUR, CUR, E256); put([17], CUR, True)
    cmul(SV, SV, E256); put([20], SV, True)
    cmul(CUR, CUR, E256); put([21], CUR, True)
    for r in (18, 19, 22, 23):
        cmul(CUR, CUR, E256); put([r], CUR, True)
evalE(0, red)
sSUM = sT + 7
a(f"""
v_readlane_b32 s{sSUM}, v{SUM}, 63
v_fma_f32 v70, v{DTv}, s{sSUM}, v86
v_frexp_exp_i32_f32 v70, v70
v_sub_u32 v71, 14, v70
v_subrev_u32 v70, 14, v70
v_ldexp_f32 v72, v{DTv}, v71
v_ldexp_f32 v{vK0}, v{vK0}, v71
v_ldexp_f32 v70, 1.0, v70
s_lshl_b32 s{sT+8}, s{sWAVE}, 2
s_add_u32 s{sT+8}, s{sT+8}, {L_MISC + M_INV}
v_mov_b32 v71, s{sT+8}
v_pk_mul_f32 {vr(W[0],2)}, {vr(W[0],2)}, v[72:73] op_sel_hi:[1,0]
v_pk_mul_f32 {vr(W[1],2)}, {vr(W[1],2)}, v[72:73] op_sel_hi:[1,0]
s_mov_b64 exec, 1
ds_write_b32 v71, v70
s_mov_b64 exec, -1
""")
cyc(5)
qrows(lambda j: None); prows(0)
cyc(6)
ktread("A"); ktread("B")
evalE(1, [])
if OPT["Q16"]: qrows(lambda j: kmfma(j, j == 0))
else: qrows(lambda j: kmfma((j - 2) // 3, j == 2) if (j - 2) % 3 == 0 and j < 26 else None)
ktread("B")
prows(1)
cyc(7)
ktread("A")
for i in range(6):
    a(f"global_load_dwordx4 {vr(BAND+4*i,4)}, v{vTAB if i < 4 else URING}, {P(sPC)} offset:{(i%4)*1024}")
for t in late[:16]: a(t)
late = late[16:]
for k in range(8):
    kmfma(k, False)
    for t in late[:4]: a(t)
    late = late[4:]
assert not late
stamp(2)
cyc(9)
QA, QB, QC, QD = 40, 44, 48, 52
K = lambda i: ACC + i
a(f"""
v_add_f32 v{K(0)}, v{K(0)}, v{vK0}
v_mov_b32_dpp v36, v{K(7)} wave_shr:1 row_mask:0xf bank_mask:0xf bound_ctrl:0
v_cvt_pk_f16_f32 v{QA}, v{K(7)}, v{K(6)}
v_cvt_pk_f16_f32 v{QB}, v{K(6)}, v{K(5)}
v_cvt_pk_f16_f32 v{QA+1}, v{K(5)}, v{K(4)}
v_cvt_pk_f16_f32 v{QA+2}, v{K(3)}, v{K(2)}
v_cvt_pk_f16_f32 v{QA+3}, v{K(1)}, v{K(0)}
v_cvt_pk_f16_f32 v{QB+1}, v{K(4)}, v{K(3)}
v_cvt_pk_f16_f32 v{QB+2}, v{K(2)}, v{K(1)}
v_cvt_pk_f16_f32 v{QB+3}, v{K(0)}, v36
v_mov_b32_dpp v{QC+3}, v{QA} wave_shr:1 row_mask:0xf bank_mask:0xf bound_ctrl:0
v_mov_b32_dpp v{QD+3}, v{QB} wave_shr:1 row_mask:0xf bank_mask:0xf bound_ctrl:0
v_mov_b32 v{QC}, v{QA+1}
v_mov_b32 v{QC+1}, v{QA+2}
v_mov_b32 v{QC+2}, v{QA+3}
v_mov_b32 v{QD}, v{QB+1}
v_mov_b32 v{QD+1}, v{QB+2}
v_mov_b32 v{QD+2}, v{QB+3}
v_cvt_pk_f16_f32 v57, v{K(7)}, v{K(7)}
v_cvt_pk_f16_f32 v56, 0, v{K(7)}
v_cvt_pk_f16_f32 v58, v{K(8)}, v{K(9)}
v_cvt_pk_f16_f32 v59, v{K(10)}, v{K(11)}
v_cvt_pk_f16_f32 v60, v{K(9)}, v{K(9)}
ds_write_b128 v{vWA}, {vr(QA,4)} offset:{3*KW_NS}
ds_write_b128 v{vWA}, {vr(QB,4)} offset:{2*KW_NS}
ds_write_b128 v{vWA}, {vr(QC,4)} offset:{KW_NS}
ds_write_b128 v{vWA}, {vr(QD,4)}
s_mov_b32 exec_lo, 0
s_mov_b32 exec_hi, 0x80000000
ds_write_b64 v{vKWB}, v[56:57] offset:{KW_N + 3*KW_NS + 72}
ds_write_b32 v{vKWB}, v57 offset:{KW_N + 2*KW_NS + 72}
ds_write_b32 v{vKWB}, v57 offset:{KW_N + 2*KW_NS + 76}
ds_write_b32 v{vKWB}, v56 offset:{KW_N + KW_NS + 68}
ds_write_b32 v{vKWB}, v57 offset:{KW_N + KW_NS + 72}
ds_write_b32 v{vKWB}, v{QA} offset:{KW_N + KW_NS + 76}
ds_write_b32 v{vKWB}, v57 offset:{KW_N + 68}
ds_write_b32 v{vKWB}, v57 offset:{KW_N + 72}
ds_write_b32 v{vKWB}, v{QB} offset:{KW_N + 76}
s_mov_b64 exec, -1
ds_write_b32 v{vWT2}, v58
ds_write_b32 v{vWT2}, v58 offset:{KW_T1}
ds_write_b16 v{vWT3}, v59 offset:64
ds_write_b16_d16_hi v{vWT3}, v59
ds_write_b16 v{vWT3}, v59 offset:{64 + KW_T1}
ds_write_b16_d16_hi v{vWT3}, v59 offset:{KW_T1}
v_readlane_b32 s{sT+8}, v60, 63
""")
for mu in range(16, -1, -1):
    o = 1024 - 64 * mu
    a(f"ds_read_b64 {vr(KW+4*mu,2)}, v{vKW} offset:{o}\n ds_read_b64 {vr(KW+4*mu+2,2)}, v{vKW} offset:{o+8}")
lazy = []
for ab in range(2):
    for d in range(3):
        for h in range(2): lazy.append((T2 + 12 * ab + 4 * d, f"ds_read_b64 {vr(T2+12*ab+4*d+2*h,2)}, v{vT} offset:{4*(64*ab+16*d)+8*h}"))
for d in range(4):
    for h in range(2): lazy.append((T3 + 4 * d, f"ds_read_b64 {vr(T3+4*d+2*h,2)}, v{vT} offset:{4*(128+48-16*d)+8*h}"))
if not OPT["LAZY"]:
    for _, t in lazy: a(t)
    lazy = []
a(f"v_mov_b32 v{vK0}, {L_MISC}\n v_mov_b32 v{vKWB}, 1")
for i in range(4): a(f"v_and_b32 v{BAND+20+i}, s{sT+8}, v{BAND+20+i}")
stamp(3)
cyc(11)
a(f"s_cmp_eq_u32 s{sHS}, 0\n s_cbranch_scc0 L_convY")
def uwait():
    lds_spin(ACC, vK0, M_U, 0x0101)
    stamp(4)
    cyc(12)

B3A, B5, B3B, B7, B9, SPK = [BAND + 4 * i for i in range(6)]
def conv_stream(tiles, order, ring, lazy):
    acc = {J: ACC + 4 * q for q, J in enumerate(tiles)}
    slot = {J: q for q, J in enumerate(tiles)}
    started = set()
    q2 = sorted({m[1] for m in order if m[0] == "box" and m[2] in "ab"})
    frag = {}
    for i, Qb in enumerate(q2):
        frag[(Qb, "a")] = BX2 + 8 * i; frag[(Qb, "b")] = BX2 + 8 * i + 4
    for Qb in range(4): frag[(Qb, "g")] = BX3 + 4 * Qb
    M = []
    for m in order:
        if m[0] == "near": M.append(dict(u=("U", 8 * m[1] - m[2]), J=m[1], A=KW + 4 * m[2]))
        elif m[0] == "sp": M.append(dict(u=("U", 8 * m[1] - 32), J=m[1], A=SPK))
        elif m[0] == "box":
            Qb, t = m[1], m[2]
            lo = {"a": (("U", 8 * Qb), B3A), "b": (("U", 8 * Qb), B3B), "g": (("U", 8 * Qb), B7)}[t]
            hi = {"a": (("U", 8 * Qb), B5), "b": (("W", Qb), B5), "g": (("W", Qb), B9)}[t]
            M.append(dict(u=lo[0], band=lo[1], half=0, f=(Qb, t))); M.append(dict(u=hi[0], band=hi[1], half=1, f=(Qb, t)))
        elif m[0] == "far":
            J, Qb, t = m[1], m[2], m[3]
            Bq = T3 + 4 * (J - 4 - Qb) if t == "g" else T2 + (12 if t == "b" else 0) + 4 * (Qb - (J - 4))
            M.append(dict(J=J, fin=(Qb, t), B=Bq))
    reads = []; cur = {}
    for i, m in enumerate(M):
        if "u" in m:
            k = m["u"]
            if k in cur and i - reads[cur[k]]["last"] <= 7: reads[cur[k]]["last"] = i
            else: cur[k] = len(reads); reads.append(dict(key=k, first=i, last=i))
            m["rd"] = cur[k]
    last_of = {}; firstB = {}
    for i, m in enumerate(M):
        if "J" in m: last_of[m["J"]] = i
        if "B" in m: firstB.setdefault(m["B"], i)
    lz = sorted([(firstB[b], t) for b, t in lazy if b in firstB], key=lambda x: x[0])
    free = list(ring); nextr = 0; pend_cvt = []; pend_dump = []; dtfree = [0, 1]; dtof = {}; done_f = set()
    now = lambda: len(a.out)
    def issue_read():
        nonlocal nextr
        r = reads[nextr]; r["buf"] = free.pop(0); nextr += 1
        off = 480 + 64 * r["key"][1] if r["key"][0] == "U" else 464 + 512 * r["key"][1]
        a(f"ds_read_b128 {vr(r['buf'],4)}, v{vU} offset:{off}")
    def do_cvt():
        t, f, j = pend_cvt.pop(0); d = DT + 8 * dtof[f]
        a(f"v_cvt_pk_f16_f32 v{frag[f]+j}, v{d+j}, v{d+4+j}")
        if j == 3: dtfree.append(dtof[f]); done_f.add(f)
    def do_dump():
        t, txt, last = pend_dump.pop(0)
        a(txt)
        if last: stamp(8); cyc(13)
    for _ in range(3): issue_read()
    for i, m in enumerate(M):
        rg = set()
        if "rd" in m and m["rd"] < nextr: rg |= {("v", reads[m["rd"]]["buf"] + j) for j in range(4)}
        if "B" in m: rg |= {("v", m["B"] + j) for j in range(4)}
        a.prewait(rg)
        ds = va = dd = 0
        cvt_ok = lambda: pend_cvt and now() - pend_cvt[0][0] >= 8
        cvt_due = cvt_ok() and any("fin" in x and x["fin"] == pend_cvt[0][1] or x.get("half") == 0 for x in M[i:i + 5])
        rd_ok = lambda d: free and nextr < len(reads) and reads[nextr]["first"] - i <= d
        if rd_ok(8): issue_read(); ds += 1
        if not (cvt_due and ds == 0):
            if ds < 2 and lz and lz[0][0] - i <= 12: a(lz.pop(0)[1]); ds += 1; dd += 1
            if ds < 2 and rd_ok(7): issue_read(); ds += 1
            while ds < 2 and pend_dump and now() - pend_dump[0][0] >= 8: do_dump(); ds += 1
        while va + ds < 2 and cvt_ok(): do_cvt(); va += 1
        if va == 0:
            if ds < 2 and rd_ok(99): issue_read(); ds += 1
            if ds < 2 and lz and not dd: a(lz.pop(0)[1]); ds += 1
        while lz and lz[0][0] - i <= 1: a(lz.pop(0)[1])
        if "fin" in m:
            while m["fin"] not in done_f: do_cvt()
        if "band" in m and m["half"] == 0:
            while not dtfree: do_cvt()
            dtof[m["f"]] = dtfree.pop(0)
        if "rd" in m:
            while m["rd"] >= nextr:
                assert free, "ring exhausted"
                issue_read()
        if "band" in m:
            d = DT + 8 * dtof[m["f"]] + 4 * m["half"]
            a(f"v_mfma_f32_16x16x32_f16 {vr(d,4)}, {vr(reads[m['rd']]['buf'],4)}, {vr(m['band'],4)}, 0")
            if m["half"] == 1:
                for j in range(4): pend_cvt.append((now(), m["f"], j))
        else:
            J = m["J"]; C = vr(acc[J], 4) if J in started else "0"; started.add(J)
            if "fin" in m: a(f"v_mfma_f32_16x16x32_f16 {vr(acc[J],4)}, {vr(frag[m['fin']],4)}, {vr(m['B'],4)}, {C}")
            else: a(f"v_mfma_f32_16x16x32_f16 {vr(acc[J],4)}, {vr(m['A'],4)}, {vr(reads[m['rd']]['buf'],4)}, {C}")
            if last_of[J] == i:
                for j in range(4): pend_dump.append((now(), f"ds_write_addtid_b32 v{acc[J]+j} offset:{YQ*slot[J] + YJ*j}", False))
                pend_dump.append((now(), f"ds_write_b8 v{vCF}, v{vKWB} offset:{M_T + 4*slot[J]}", slot[J] == 3))
        if "rd" in m and reads[m["rd"]]["last"] == i: free.append(reads[m["rd"]]["buf"])
    while pend_dump: do_dump()
    assert not lz
    return len(M), len(reads)

def near_at(n, tiles):
    return [("near", J, 8 * J - n) for J in tiles if 0 <= 8 * J - n <= min(16, 8 * J + 7)]
oX = []
extra = {0: [("box", 0, "g")], 8: [("box", 1, "g")]}
for n in range(-7, 9): oX += near_at(n, [0, 1]) + extra.get(n, [])
oX += [("box", 2, "a"), ("sp", 6), ("box", 2, "b"), ("far", 6, 0, "g"), ("far", 7, 0, "g"), ("box", 2, "g"), ("far", 6, 1, "g"), ("far", 7, 1, "g"),
       ("box", 3, "a"), ("sp", 7), ("box", 3, "b"), ("far", 6, 2, "a"), ("far", 6, 2, "b"), ("box", 3, "g")]
extra = {32: [("box", 4, "a"), ("far", 6, 2, "g"), ("far", 7, 2, "g")], 33: [("far", 6, 3, "a"), ("far", 7, 3, "a")], 34: [("far", 6, 3, "b"), ("far", 7, 3, "b")],
         35: [("far", 7, 3, "g")], 36: [("far", 6, 4, "a")], 37: [("far", 7, 4, "a")],
         40: [("box", 5, "a"), ("box", 5, "b")], 41: [("far", 6, 4, "b")], 42: [("far", 7, 4, "b")], 49: [("far", 7, 5, "a")], 50: [("far", 7, 5, "b")]}
for n in range(32, 57):
    oX += near_at(n, [6, 7]) + extra.get(n, [])
    if n == 32: oX += [("box", 4, "b")]
oY = []
extra = {0: [("box", 0, "a"), ("sp", 4), ("box", 0, "b")], 3: [("far", 2, 0, "a"), ("far", 3, 0, "a"), ("far", 4, 0, "a")],
         4: [("far", 2, 0, "b"), ("far", 3, 0, "b"), ("far", 4, 0, "b")], 5: [("box", 0, "g")],
         8: [("box", 1, "a"), ("sp", 5), ("box", 1, "b")], 9: [("far", 4, 0, "g")], 10: [("far", 5, 0, "g"), ("box", 1, "g")],
         12: [("far", 3, 1, "a")], 13: [("far", 3, 1, "b")], 14: [("far", 4, 1, "a")],
         16: [("box", 2, "a"), ("box", 2, "b")], 17: [("far", 4, 1, "b")], 18: [("far", 5, 1, "a")], 19: [("far", 5, 1, "b")], 20: [("far", 5, 1, "g")],
         21: [("far", 4, 2, "a")], 22: [("far", 4, 2, "b")],
         24: [("box", 3, "a"), ("box", 3, "b")], 28: [("far", 5, 2, "a")], 29: [("far", 5, 2, "b")], 33: [("far", 5, 3, "a")], 34: [("far", 5, 3, "b")]}
for n in range(0, 41): oY += near_at(n, [2, 3, 4, 5]) + extra.get(n, [])
def weave(near, ins):
    o = []
    for i, m in enumerate(near): o += ins.get(i, []) + [m]
    return o + ins.get(len(near), [])
N = lambda J, lo=0: [("near", J, mu) for mu in range(min(16, 8 * J + 7), lo - 1, -1)]
F = lambda J, Qb, t: ("far", J, Qb, t)
Bx = lambda Qb, t: ("box", Qb, t)
if OPT["SEQ"]:
    oY = weave(N(2), {1: [Bx(0, "a"), Bx(0, "b")], 8: [], 9: [F(2, 0, "a")], 11: [F(2, 0, "b")]})
    oY += weave(N(3), {1: [Bx(1, "a"), Bx(1, "b")], 3: [F(3, 0, "a")], 5: [F(3, 0, "b")], 9: [F(3, 1, "a")], 11: [F(3, 1, "b")], 13: [Bx(0, "g"), ("sp", 4)]})
    oY += weave(N(4), {1: [Bx(2, "a"), Bx(2, "b")], 2: [F(4, 0, "a")], 3: [F(4, 0, "b")], 5: [F(4, 1, "a")], 7: [F(4, 1, "b")], 9: [F(4, 0, "g")], 11: [F(4, 2, "a")], 12: [F(4, 2, "b")], 13: [Bx(1, "g"), ("sp", 5)]})
    oY += weave(N(5), {1: [Bx(3, "a"), Bx(3, "b")], 2: [F(5, 1, "a")], 3: [F(5, 1, "b")], 5: [F(5, 2, "a")], 7: [F(5, 2, "b")], 9: [F(5, 0, "g")], 10: [F(5, 1, "g")], 12: [F(5, 3, "a")], 14: [F(5, 3, "b")]})
    oX = N(0) + [Bx(0, "g")]
    oX += weave(N(1), {16: [Bx(1, "g")]})
    oX += [Bx(2, "a"), ("sp", 6), Bx(2, "b"), F(6, 0, "g"), Bx(2, "g"), F(6, 1, "g"), Bx(3, "a"), ("sp", 7), Bx(3, "b")]
    oX += weave(N(6), {1: [Bx(4, "a"), Bx(4, "b")], 2: [F(6, 2, "a")], 3: [F(6, 2, "b")], 5: [F(6, 2, "g")], 6: [F(6, 3, "a")], 7: [F(6, 3, "b")], 10: [F(6, 4, "a")], 12: [F(6, 4, "b")], 13: [Bx(3, "g")]})
    oX += weave(N(7), {1: [Bx(5, "a"), Bx(5, "b")], 2: [F(7, 0, "g")], 3: [F(7, 1, "g")], 4: [F(7, 2, "g")], 5: [F(7, 3, "a")], 6: [F(7, 3, "b")], 7: [F(7, 4, "a")], 8: [F(7, 4, "b")], 9: [F(7, 3, "g")], 11: [F(7, 5, "a")], 13: [F(7, 5, "b")]})
def check(order, tiles):
    want = set()
    for J in tiles:
        for mu in range(min(16, 8 * J + 7) + 1): want.add(("near", J, mu))
        if J >= 4: want.add(("sp", J))
        for d in range(3):
            if J - 4 + d >= 0: want |= {("far", J, J - 4 + d, "a"), ("far", J, J - 4 + d, "b")}
        for d in range(4):
            if J - 4 - d >= 0: want.add(("far", J, J - 4 - d, "g"))
    got = [m for m in order if m[0] != "box"]
    assert len(got) == len(set(got)) and set(got) == want, (want ^ set(got))
    seen = set()
    for m in order:
        if m[0] == "box": seen.add((m[1], m[2]))
        if m[0] == "far": assert (m[2], m[3]) in seen, m
check(oX, [0, 1, 6, 7]); check(oY, [2, 3, 4, 5])
sv = (list(a.vmq), list(a.dsq), list(a.hist))
RING = [URING + 4 * i for i in range(6)] + [248, 4]
if not OPT["LAZYX"]:
    for _, t in lazy: a(t)
uwait()
nx = conv_stream([0, 1, 6, 7], oX, RING, lazy if OPT["LAZYX"] else [])
endpgm(True)
a.raw(".p2align 3")
a.label("L_convY")
a.vmq, a.dsq, a.hist = sv
uwait()
ny = conv_stream([2, 3, 4, 5], oY, RING + [216, 220, 136, 140], lazy)
endpgm(True)
if STAMPS:
    a.label("L_flush")
    a.wait(vm=0, lgkm=0)
    a("s_memrealtime s[88:89]"); a.wait(lgkm=0); a(f"s_mov_b32 s{sST+15}, s88")
    a("s_mov_b64 exec, -1\n v_mov_b32 v2, 0")
    for k in range(16): a(f"v_writelane_b32 v2, s{sST+k}, {k}")
    a(f"s_lshl_b32 s{sT}, s2, 3\n s_add_u32 s{sT}, s{sT}, s{sWAVE}\n s_lshl_b32 s{sT}, s{sT}, 6\n s_add_u32 s{sT}, s{sT}, {WS_STAMP}")
    a(f"v_and_b32 v3, 63, v0\n v_lshlrev_b32 v3, 2, v3\n v_add_u32 v3, s{sT}, v3")
    a("s_mov_b64 exec, 0xffff")
    a(f"global_store_dword v3, v2, {P(sWS)}")
    a(f"v_mov_b32 v4, s{sPC}\n v_mov_b32 v5, s{sPC+1}\n v_mov_b32 v6, 0x480000\n global_store_dwordx2 v6, v[4:5], {P(sWS)}")
a.label("L_exit")
a("s_endpgm")
a.raw(".p2align 7")
a.label("L_tab")
for (start, w, one) in ((11, 3, 0x3c00), (6, 5, 0x3c00), (3, 3, 0x3c00), (5, 7, 0x3c00), (4, 9, 0x3c00), (12, 2, 0xffff)):
    for l in range(64):
        r, s_ = l & 15, l >> 4
        e = [one if r + start <= 8 * s_ + i < r + start + w else 0 for i in range(8)]
        a.raw("    .long " + ", ".join(hex(e[2 * j] | e[2 * j + 1] << 16) for j in range(4)))
a.label("L_end")
a.raw(f""".section .rodata,"a"
.p2align 6
.amdhsa_kernel {NAME}
  .amdhsa_next_free_vgpr 256
  .amdhsa_next_free_sgpr 100
  .amdhsa_accum_offset 256
  .amdhsa_group_segment_fixed_size 0
  .amdhsa_kernarg_size 136
  .amdhsa_user_sgpr_count 2
  .amdhsa_user_sgpr_kernarg_segment_ptr 1
  .amdhsa_system_sgpr_workgroup_id_x 1
  .amdhsa_float_denorm_mode_32 3
.end_amdhsa_kernel""")
open(sys.argv[1], "w").write(a.text())
print("LDS", LDS_SIZE, "nops", a.nops, "X mfma/reads", nx, "Y", ny, file=sys.stderr)
```

```python
import sys
from asmlib import Asm, vr, sr

NAME = "parallel_sum__ssm_conv_s4__moe_arch_mod__prompt_kernel"
OPT = dict(STAMPS=0, PAD=0, POLLMAX=200000, LNHS=0, POLLDLY=7, BKO=3, EP=3, CP=0, HOT=1, OVL=0, BE=2, GP=3, GO=1, GOD=10, GOM=0, IDLEDLY=30, XTDLY=8, H2A=26, H2B=36, WDLY=0, KB=4, LAZY=1, ACK=0, NT=0, NTC=0, NTX=0, PFD=3, ROT=0, Q16=1, DW4=0, WDL=1, XNP=0, PIPE=1, LZW=1, PFE=0, PD2=32, KGDLY=0, VLD=0, PFW=1, STAG=0, SEQ=1, LAZYX=0, PADEV=-1, NTR=-1, NTP=-1, NTW=-1, NTF=-1)
for x in sys.argv[2:]:
    k, v = x.split("="); assert k in OPT, k; OPT[k] = int(v, 0)
STAMPS = OPT["STAMPS"]
NT = ' nt' if OPT['NT'] else ''
NTR, NTP, NTW, NTF = [(' nt' if OPT[k] else '') if OPT[k] >= 0 else NT for k in ('NTR', 'NTP', 'NTW', 'NTF')]
NTC = ' nt' if OPT['NTC'] else ''
NTX = ' nt' if OPT['NTX'] else ''

PQ = 224 * 64
WS_NUL = 0x1800
WS_GO = 0x8000
WS_ROUT, WS_STAT, WS_PART, WS_XT, WS_STAMP = 0x1000, 0x2000, 0x10000, 0x100000, 0x400000
ROWP = 272; KT_SZ = 56 * ROWP
L_KT = 0
YJ = 264; YQ = 4 * YJ
KW_SZ = 7168; KW_T, KW_T1, KW_N, KW_NS = 0, 896 + 4, 1792, 1216
L_KW = L_KT + 4 * KT_SZ
L_U = L_KW + 4 * KW_SZ; USTR = 4640
L_LNI = L_U + 4 * USTR; LNP = 1056
L_WG = L_LNI
L_WU = L_WG + 16384 + 128
L_MISC = L_WU + 16384
M_CNT, M_KEY, M_W2, M_XS, M_W, M_U, M_ARR, M_T, M_SV, M_SAVE, M_INV, M_RT, M_DUMMY = 0, 4, 8, 12, 16, 20, 24, 32, 48, 64, 80, 96, 128
L_XS = L_MISC + M_DUMMY + 256 + 128
L_TAB = L_XS + 1024
LDS_SIZE = L_TAB + 6144
assert all(x % 16 == 0 for x in (L_MISC, L_U, L_LNI, L_KW, L_WU)) and LDS_SIZE <= 163840

sX, sARE, sAIM, sBRE, sBIM, sCRE, sCIM, sLDT, sDSK, sBX, sWR, sWG, sWU, sWD, sOUT, sDBG, sWS = [4 + 2 * i for i in range(17)]
sTAG, sWAVE, sCG, sHS, sFFN, sUNIT = 38, 39, 40, 41, 42, 43
sPC = 44
sTLO, sTHI, sPU, sKEY, sIDX = 46, 47, 48, 49, 50
sT = 52
SS = lambda k: 70 + 2 * k
P = lambda r: sr(r, 2)
DPP4 = ("row_shr:1", "row_shr:2", "row_shr:4", "row_shr:8")

a = Asm()
evn = [0]
def stamp(k):
    import inspect
    if OPT["PADEV"] == 999: print("event", evn[0], "stamp", k, "line", inspect.stack()[1].lineno, file=sys.stderr)
    if OPT["PADEV"] == evn[0]:
        a("s_memrealtime s[90:91]"); a.wait(lgkm=0)
    evn[0] += 1
    if STAMPS == 1: a.raw(f"    s_memrealtime s[{SS(k)}:{SS(k)+1}]")
def sleep(n):
    while n > 0: a(f"s_sleep {min(n,127)}"); n -= 127
def endpgm(conv=False):
    if (conv and OPT["PAD"] and OPT["PADEV"] < 0) or OPT["PADEV"] >= 0:
        L = a.newlabel("pad"); a.wait(lgkm=0); a.label(L)
        a("s_memrealtime s[88:89]"); a.wait(lgkm=0)
        a(f"s_sub_u32 s88, s88, s90\n s_cmp_lt_u32 s88, {OPT['PAD']}\n s_sleep 2\n s_cbranch_scc1 {L}")
    if STAMPS: a("s_branch L_flush")
    else: a("s_endpgm")
def lds_spin(vtmp, vaddr, off, want, width=1, hot=False):
    L, Dn = a.newlabel("spin"), a.newlabel("spun")
    a.wait(lgkm=0)
    a(f"s_mov_b32 s{sT+1}, 0")
    a.label(L)
    a(f"ds_read_b{32*width} {vr(vtmp, width)}, v{vaddr} offset:{off}")
    a.wait(lgkm=0)
    a(f"""v_readfirstlane_b32 s{sT}, v{vtmp}
    s_add_u32 s{sT+1}, s{sT+1}, 1
    s_cmp_eq_u32 s{sT}, {want}
    s_cbranch_scc1 {Dn}
    s_cmp_lt_u32 s{sT+1}, {OPT['POLLMAX']*16}
    {'' if hot and OPT['HOT'] else 's_sleep 1'}
    s_cbranch_scc1 {L}""")
    a.label(Dn)

a.raw(f"""; One persistent launch: 256 workgroups (one per CU) x 8 waves, 4 channels x 1024 outputs each.
; waves 4-7: layernorm + router (half of the workgroups) or a slice of the expert FFN (other half), hand-offs
; @launch grid=(256,1,1) block=(512,1,1) lds={LDS_SIZE}
.amdgcn_target "amdgcn-amd-amdhsa--gfx950"
.text
.globl {NAME}
.p2align 8
.type {NAME},@function
{NAME}:""")
a(f"""
s_cmp_ge_u32 s2, 0x100
s_cbranch_scc1 L_exit
s_load_dwordx16 s[4:19], s[0:1], 0
s_load_dwordx16 s[20:35], s[0:1], 64
s_load_dwordx2 s[36:37], s[0:1], 128
""")
if OPT["PAD"] and OPT["PADEV"] < 0: a("s_memrealtime s[90:91]")
if OPT["PADEV"] >= 0: a("s_mov_b32 s90, 0")
if STAMPS: a.raw("    s_memrealtime s[70:71]")
a(f"s_getpc_b64 {P(sPC)}")
a.label("L_pc")
a(f"""
v_lshrrev_b32 v2, 6, v0
s_and_b32 s{sT+1}, s2, 0xf8
v_add_lshl_u32 v3, v2, s{sT+1}, 7
v_readfirstlane_b32 s{sWAVE}, v2
v_min_u32 v3, L_end-L_pc-4, v3
global_load_dword v255, v3, {P(sPC)}{NTC}
v_and_b32 v1, 63, v0
s_and_b32 s{sT}, s2, 7
s_lshl_b32 s{sCG}, s{sT}, 4
s_bfe_u32 s{sT+2}, s2, 0x40003
s_add_u32 s{sCG}, s{sCG}, s{sT+2}
s_lshr_b32 s{sHS}, s2, 7
v_lshlrev_b32 v2, 4, v1
""")
if STAMPS:
    for k in range(1, 16): a(f"s_mov_b32 s{SS(k)}, 0")
a(f"""
s_cmp_lt_u32 s{sWAVE}, 4
s_cbranch_scc1 L_conv
""")

XR, WR = 4, 20
WD, WDP, WF = 64, 96, 128
vFL, vMI = 60, 61
a(f"""
s_setprio 3
s_sub_u32 s{sUNIT}, s{sWAVE}, 4
s_lshl_b32 s{sT+3}, s{sCG}, 14
s_lshl_b32 s{sT+4}, s{sUNIT}, 12
s_add_u32 s{sT+3}, s{sT+3}, s{sT+4}
v_add_u32 v3, s{sT+3}, v2
v_mov_b32 v{vMI}, {L_MISC}
s_cmp_lg_u32 s{sUNIT}, 3
s_cbranch_scc1 L_noinit
v_lshl_add_u32 v16, v1, 2, v{vMI}
v_mov_b32 v17, 0
ds_write_b32 v16, v17
""")
a.label("L_noinit")
a.wait(lgkm=0)
a(f"""
s_load_dword s{sTAG}, {P(sWS)}, 0
s_cmp_lg_u32 s{sHS}, {OPT['LNHS']}
s_cbranch_scc1 L_noln
""")
for r in range(4): a(f"global_load_dwordx4 {vr(XR+4*r,4)}, v3, {P(sX)} offset:{1024*r}{NTR}")
a(f"global_load_dwordx4 {vr(WR,4)}, v2, {P(sWR)}{NTR}")
def flagaddr():
    a(f"""
    v_lshlrev_b32 v24, 2, v1
    v_add_u32 v24, {L_MISC+M_DUMMY}, v24
    v_add_u32 v{vFL}, s{sUNIT}, v{vMI}
    v_cmp_eq_u32 vcc, 0, v1
    s_mov_b32 s{sFFN}, 0
    s_nop 0
    v_cndmask_b32 v{vFL}, v24, v{vFL}, vcc
    """)
def tagcalc():
    a(f"""
    s_add_u32 s{sTAG}, s{sTAG}, 1
    s_and_b32 s{sTLO}, s{sTAG}, 0xffff
    s_lshr_b32 s{sTHI}, s{sTAG}, 16
    """)
flagaddr()
vTK, vC9, vMK, vSA, vIW, vTR, vXS, vRA = 52, 53, 54, 55, 56, 57, 58, 59
a(f"""
s_lshl_b32 s{sT+5}, s{sCG}, 4
s_lshl_b32 s{sT+6}, s{sUNIT}, 2
s_add_u32 s{sT+5}, s{sT+5}, s{sT+6}
v_lshrrev_b32 v25, 4, v1
v_add_u32 v{vSA}, s{sT+5}, v25
v_sub_u32 v{vTK}, 2047, v{vSA}
v_lshlrev_b32 v{vSA}, 3, v{vSA}
v_add_u32 v{vSA}, {WS_STAT}, v{vSA}
v_mov_b32 v{vC9}, 0x3b000000
v_mov_b32 v{vMK}, 0xfff8fff8
s_mul_i32 s{sT+6}, s{sUNIT}, {4*LNP}
s_lshr_b32 s{sT+7}, s{sUNIT}, 1
s_lshl_b32 s{sT+7}, s{sT+7}, 7
s_add_u32 s{sT+6}, s{sT+6}, s{sT+7}
s_add_u32 s{sT+6}, s{sT+6}, {L_LNI}
v_add_u32 v{vIW}, s{sT+6}, v2
v_bfe_u32 v24, v1, 2, 2
v_mul_u32_u24 v24, {LNP}, v24
v_lshl_add_u32 v24, v25, 4, v24
v_and_b32 v26, 1, v1
v_mul_u32_u24 v26, {8*LNP+128}, v26
v_bfe_u32 v27, v1, 1, 1
v_lshl_add_u32 v26, v27, 3, v26
s_mul_i32 s{sT+16}, s{sUNIT}, 5
s_sub_u32 s{sT+16}, s{sT+16}, 4
s_cmp_eq_u32 s{sUNIT}, 1
s_cselect_b32 s{sT+16}, 0, s{sT+16}
s_lshl_b32 s{sT+6}, s{sT+16}, 6
s_add_u32 s{sT+6}, s{sT+6}, {L_LNI}
v_add3_u32 v{vTR}, v24, v26, s{sT+6}
v_lshrrev_b32 v24, 3, v1
v_lshlrev_b32 v24, 14, v24
v_and_b32 v26, 7, v1
v_lshl_add_u32 v24, v26, 4, v24
s_lshl_b32 s{sT+6}, s{sT+16}, 17
s_lshl_b32 s{sT+7}, s{sCG}, 7
s_add_u32 s{sT+6}, s{sT+6}, s{sT+7}
s_add_u32 s{sT+6}, s{sT+6}, {WS_XT}
v_add_u32 v{vXS}, s{sT+6}, v24
s_lshl_b32 s{sT+6}, s{sCG}, 4
s_add_u32 s{sT+6}, s{sT+6}, {WS_ROUT}
v_mov_b32 v{vRA}, s{sT+6}
v_add_u32 v99, {WS_ROUT}, v2
""")
sC9, sC1, sTG, sRS = sT + 2, sT + 3, sT + 4, sT + 8
a(f"s_mov_b32 s{sC9}, 0x3b003b00\n s_mov_b32 s{sC1}, 0x3f803f80")
stamp(10)
a("s_barrier")
a.wait(lgkm=0)
tagcalc()
a(f"s_and_b32 s{sT}, s{sUNIT}, 1\n s_mul_i32 s{sT}, s{sT}, 12\n s_lshr_b32 s{sT}, s{sTAG}, s{sT}")
for r in range(4):
    a(f"s_bfe_u32 s{sTG+r}, s{sT}, {0x30000+3*r}\n s_mul_i32 s{sTG+r}, s{sTG+r}, 0x10001")
a.wait(vm=0)
stamp(1)
S = lambda v, r: 24 + 4 * v + r
Wv, W2 = 36, 37
for i in range(4):
    z = lambda r: "0" if i == 0 else f"v{r}"
    for r in range(4):
        x = XR + 4 * r + i
        a(f"""
        v_dot2_f32_bf16 v{S(0,r)}, v{x}, s{sC9}, {z(S(0,r))}
        v_dot2_f32_bf16 v{S(1,r)}, v{x}, v{x}, {z(S(1,r))}
        v_dot2_f32_bf16 v{S(2,r)}, v{x}, v{WR+i}, {z(S(2,r))}
        """)
        if r == 0: a(f"v_dot2_f32_bf16 v{Wv}, v{WR+i}, s{sC1}, {z(Wv)}")
a(f"v_mov_b32 v{W2}, v{Wv}")
for v in range(3):
    a(f"v_permlane32_swap_b32 v{S(v,0)}, v{S(v,2)}\n v_permlane32_swap_b32 v{S(v,1)}, v{S(v,3)}")
a(f"v_permlane32_swap_b32 v{Wv}, v{W2}")
for v in range(3):
    a(f"v_add_f32 v{S(v,0)}, v{S(v,0)}, v{S(v,2)}\n v_add_f32 v{S(v,1)}, v{S(v,1)}, v{S(v,3)}")
    if v == 0: a(f"v_add_f32 v{Wv}, v{Wv}, v{W2}")
    if v == 1: a(f"v_mov_b32 v{W2}, v{Wv}")
for v in range(3): a(f"v_permlane16_swap_b32 v{S(v,0)}, v{S(v,1)}")
a(f"v_permlane16_swap_b32 v{Wv}, v{W2}")
for v in range(3): a(f"v_add_f32 v{S(v,0)}, v{S(v,0)}, v{S(v,1)}")
a(f"v_add_f32 v{Wv}, v{Wv}, v{W2}")
A1, A2, A3 = S(0, 0), S(1, 0), S(2, 0)
for st in DPP4:
    for r in (A1, A2, A3, Wv):
        a(f"v_add_f32_dpp v{r}, v{r}, v{r} {st} row_mask:0xf bank_mask:0xf bound_ctrl:0")
MB, SB, RS, NM, T0, T1, KEY, T2_ = 38, 39, 40, 41, 42, 43, 44, 45
a(f"""
v_mul_f32 v{T0}, v{A2}, v{vC9}
v_fma_f32 v{T0}, -v{A1}, v{A1}, v{T0}
v_max_f32 v{T0}, 0, v{T0}
v_cvt_pk_bf16_f32 v{T1}, v{A1}, v{T0}
v_and_b32 v{T0}, 0xffff0000, v{T1}
v_lshlrev_b32 v{MB}, 16, v{T1}
v_add_f32 v{T0}, 0x3727c5ac, v{T0}
v_cvt_pk_bf16_f32 v{T0}, v{T0}, v{T0}
v_lshlrev_b32 v{T0}, 16, v{T0}
v_sqrt_f32 v{T0}, v{T0}
v_fma_f32 v{KEY}, -v{MB}, v{Wv}, v{A3}
v_cvt_pk_bf16_f32 v{T0}, v{T0}, v{T0}
v_lshlrev_b32 v{SB}, 16, v{T0}
v_rcp_f32 v{RS}, v{SB}
v_or_b32 v{T0}, s{sTLO}, v{MB}
v_mul_f32 v{KEY}, v{KEY}, v{RS}
v_or_b32 v{T1}, s{sTHI}, v{SB}
v_ashrrev_i32 v{T2_}, 31, v{KEY}
v_or_b32 v{T2_}, 0x80000000, v{T2_}
v_xor_b32 v{KEY}, v{KEY}, v{T2_}
v_and_b32 v{KEY}, 0xfffff800, v{KEY}
v_or_b32 v{KEY}, v{KEY}, v{vTK}
v_mov_b32 v46, 1
s_mov_b32 exec_lo, 0x80008000
s_mov_b32 exec_hi, 0x80008000
ds_max_u32 v{vMI}, v{KEY} offset:{M_KEY}
s_mov_b64 exec, 0x8000
ds_add_rtn_u32 v47, v{vMI}, v46 offset:{M_ARR}
s_mov_b32 exec_lo, 0x80008000
s_mov_b32 exec_hi, 0x80008000
global_store_dwordx2 v{vSA}, {vr(T0,2)}, {P(sWS)} sc1
s_mov_b64 exec, -1
v_mul_f32 v{NM}, -v{MB}, v{RS}
""")
for r in range(4):
    a(f"v_readlane_b32 s{sRS+2*r}, v{RS}, {16*r+15}")
for r in range(4):
    a(f"v_readlane_b32 s{sRS+2*r+1}, v{NM}, {16*r+15}")
UX = 64
def xnrow(r, part):
    for i in range(4):
        x, u = XR + 4 * r + i, UX + 8 * r + 2 * i
        if part == 0: a(f"v_lshlrev_b32 v{u}, 16, v{x}\n v_and_b32 v{u+1}, 0xffff0000, v{x}")
        if part == 1: a(f"v_pk_fma_f32 {vr(u,2)}, {vr(u,2)}, {P(sRS+2*r)}, {P(sRS+2*r)} op_sel:[0,0,1] op_sel_hi:[1,0,1]")
        if part == 2: a(f"v_cvt_pk_f16_f32 v{x}, v{u}, v{u+1}")
        if part == 3: a(f"v_add_u32 v{x}, 0x40004, v{x}")
        if part == 4: a(f"v_and_or_b32 v{x}, v{x}, v{vMK}, s{sTG+r}")
xnrow(0, 0)
a(f"v_readlane_b32 s{sT}, v47, 15\n s_cmp_lg_u32 s{sT}, 3\n s_cbranch_scc1 L_norout")
a(f"""
ds_read_b32 v48, v{vMI} offset:{M_KEY}
v_mov_b32 v49, s{sTAG}
s_mov_b64 exec, 1
""")
a(f"global_store_dwordx2 v{vRA}, v[48:49], {P(sWS)} sc1\n s_mov_b64 exec, -1")
a.label("L_norout")
stamp(13)
def rloads():
    a(f"""
    global_load_dwordx2 v[100:101], v99, {P(sWS)} sc1
    global_load_dwordx2 v[102:103], v99, {P(sWS)} offset:1024 sc1
    """)
a(f"s_setprio {OPT['XNP']}")
for r in range(4):
    for part in range(1 if r == 0 else 0, 5): xnrow(r, part)
a("s_setprio 3")
for r in range(4): a(f"ds_write_b128 v{vIW}, {vr(XR+4*r,4)} offset:{r*LNP}")
a(f"ds_write_b8 v{vFL}, v46 offset:{M_CNT}")
stamp(2)
a(f"s_cmp_eq_u32 s{sUNIT}, 0\n s_cbranch_scc1 L_rpln")
lds_spin(28, vMI, M_CNT, 0x01010101, hot=True)
for b in range(6):
    if b == 5: a(f"s_cmp_lg_u32 s{sUNIT}, 1\n s_cbranch_scc1 L_b5a")
    a(f"ds_read_b64_tr_b16 {vr(UX+4*b,2)}, v{vTR} offset:{64*b}")
    a(f"ds_read_b64_tr_b16 {vr(UX+4*b+2,2)}, v{vTR} offset:{64*b+4*LNP}")
a.label("L_b5a")
dq = list(a.dsq)
for b in range(6):
    if b == 5: a(f"s_cmp_lg_u32 s{sUNIT}, 1\n s_cbranch_scc1 L_xt")
    a(f"s_add_u32 s{sT+16}, s{sWS}, {0x20000*b}\n s_addc_u32 s{sT+17}, s{sWS+1}, 0")
    a.wait(lgkm=max(8 - 2 * b, 0))
    a.dsq = []
    a(f"global_store_dwordx4 v{vXS}, {vr(UX+4*b,4)}, {P(sT+16)} sc1")
    if b == 4: stamp(3)
endpgm()

a.label("L_noln")
a.reset(); a.smem_any = True
a(f"""
s_cmp_lg_u32 s{sUNIT}, 2
s_cbranch_scc1 L_notm
v_mov_b32 v16, s{sT+3}
global_load_dword v252, v16, {P(sX)}
""")
a.label("L_notm")
flagaddr()
a(f"""
s_lshl_b32 s{sPU}, s{sCG}, 1
s_add_u32 s{sPU}, s{sPU}, s{sUNIT}
s_cmp_lt_u32 s{sCG}, 112
s_cselect_b32 s{sFFN}, 1, 0
s_cmp_lt_u32 s{sUNIT}, 2
s_cselect_b32 s{sFFN}, s{sFFN}, 0
s_bitcmp0_b32 s{sUNIT}, 0
s_cselect_b32 s{sT+8}, s{sWG}, s{sWU}
s_cselect_b32 s{sT+9}, s{sWG+1}, s{sWU+1}
s_cselect_b32 s{sT+10}, 0, {L_WU-L_WG}
s_add_u32 s{sT+10}, s{sT+10}, {L_WG}
v_lshrrev_b32 v16, 1, v1
v_mul_u32_u24 v16, 3584, v16
v_and_b32 v17, 1, v1
v_lshl_add_u32 v16, v17, 4, v16
s_lshl_b32 s{sT+11}, s{sCG}, 5
v_add_u32 v21, s{sT+11}, v16
s_lshl_b32 s{sT+11}, s{sPU}, 13
s_add_u32 s{sT+11}, s{sT+11}, 4096
v_lshl_add_u32 v22, v1, 3, s{sT+11}
s_lshr_b32 s{sT+11}, s{sUNIT}, 1
s_add_u32 s{sT+12}, s{sT+11}, 16
s_lshl_b32 s{sT}, s{sCG}, 3
s_add_u32 s{sT}, s{sT}, {WS_NUL}
v_mov_b32 v16, s{sT}
v_mov_b32 v18, 0
s_barrier
""")
a.wait(lgkm=0)
tagcalc()
a(f"""
s_cmp_lg_u32 s{sUNIT}, 0
s_cbranch_scc1 L_nonull
v_mov_b32 v19, s{sTAG}
s_mov_b64 exec, 1
global_store_dwordx2 v16, v[18:19], {P(sWS)} sc1
s_mov_b64 exec, -1
""")
a.label("L_nonull")
stamp(13)
NDMA = 8 if OPT["DW4"] else 16
def wdl(guard=True):
    if guard: a(f"s_cmp_eq_u32 s{sFFN}, 0\n s_cbranch_scc1 L_nowd")
    for f in range(8):
        for h in range(2):
            a(f"global_load_dwordx2 {vr(WD+4*f+2*h,2)}, v22, {P(sWD)} offset:{f*1024+512*h-4096}{NTW}")
    a.label("L_nowd")
a(f"s_cmp_ge_u32 s{sCG}, 112\n s_cbranch_scc1 L_noffn")
if not OPT["DW4"]: a(f"s_cmp_eq_u32 s{sFFN}, 0\n s_cbranch_scc1 L_noffn")
sleep(OPT["PFD"])
if not OPT["WDL"]: wdl()
sleep(OPT["WDLY"])
a.label("L_dma")
a(f"""
s_lshl_b32 s{sT+14}, s{sT+11}, 10
s_add_u32 m0, s{sT+14}, s{sT+10}
s_mul_i32 s{sT+13}, s{sT+11}, {32*3584}
s_add_u32 s{sT+14}, s{sT+8}, s{sT+13}
s_addc_u32 s{sT+15}, s{sT+9}, 0
s_add_u32 s{sT+11}, s{sT+11}, {2 if OPT['DW4'] else 1}
s_cmp_lg_u32 s{sT+11}, s{sT+12}
global_load_lds_dwordx4 v21, {P(sT+14)}{NTW}
s_cbranch_scc1 L_dma
""")
if OPT["WDL"] == 1: wdl()
if OPT["DW4"]:
    a(f"""
    s_cmp_lt_u32 s{sUNIT}, 2
    s_cbranch_scc1 L_noffn
    v_mov_b32 v16, 1
    s_waitcnt vmcnt(4)
    ds_write_b8 v{vFL}, v16 offset:{M_W}
    s_waitcnt vmcnt(0)
    ds_write_b8 v{vFL}, v16 offset:{M_W2}
    """)
a.label("L_noffn")
stamp(1)
a(f"s_cmp_ge_u32 s{sUNIT}, 2\n s_cbranch_scc1 L_xt")
a(f"s_cmp_eq_u32 s{sFFN}, 1\n s_cbranch_scc1 L_ffnprep")
a(f"s_cmp_eq_u32 s{sUNIT}, 0\n s_cbranch_scc1 L_hop2c")
a(f"s_cmp_eq_u32 s{sCG}, 127\n s_cbranch_scc1 L_bump")
endpgm()
a.label("L_bump")
lds_spin(18, vMI, M_RT, 1)
a(f"v_add_u32 v20, {WS_NUL}, v2\n s_mov_b32 s{sT+1}, 0")
a.label("L_bp1")
a(f"""
global_load_dwordx4 v[24:27], v20, {P(sWS)} sc1
s_add_u32 s{sT+1}, s{sT+1}, 1
v_xor_b32 v25, s{sTAG}, v25
v_xor_b32 v27, s{sTAG}, v27
v_or_b32 v25, v25, v27
v_cmp_ne_u32 vcc, 0, v25
s_cbranch_vccz L_bp2
s_cmp_lt_u32 s{sT+1}, {OPT['POLLMAX']}
s_sleep 8
s_cbranch_scc1 L_bp1
""")
a.label("L_bp2")
a(f"""
v_mov_b32 v20, 0
v_mov_b32 v21, s{sTAG}
s_mov_b64 exec, 1
global_store_dword v20, v21, {P(sWS)} sc1
""")
endpgm()
a.label("L_ffnprep")
a.reset()
pairs = [(0, 2), (4, 6), (1, 3), (5, 7)]
a(f"""
s_mov_b32 s{sT+2}, 0x05040100
s_mov_b32 s{sT+3}, 0x07060302
v_bfe_u32 v16, v1, 2, 2
v_lshrrev_b32 v17, 4, v1
v_lshl_add_u32 v16, v17, 3, v16
v_lshlrev_b32 v16, 5, v16
v_and_b32 v17, 1, v1
v_lshl_add_u32 v16, v17, 3, v16
v_bfe_u32 v17, v1, 1, 1
v_mul_u32_u24 v17, {L_WU-L_WG}, v17
s_lshl_b32 s{sT+4}, s{sUNIT}, 4
s_add_u32 s{sT+4}, s{sT+4}, {L_WG}
v_add3_u32 v20, v16, v17, s{sT+4}
v_mov_b32 v16, 1
""")
def perms():
    for pi, (fa, fb) in enumerate(pairs):
        for c in range(4):
            a(f"v_perm_b32 v{WDP+8*pi+2*c}, v{WD+4*fb+c}, v{WD+4*fa+c}, s{sT+2}")
            a(f"v_perm_b32 v{WDP+8*pi+2*c+1}, v{WD+4*fb+c}, v{WD+4*fa+c}, s{sT+3}")
if not OPT["WDL"]: a(f"s_waitcnt vmcnt({NDMA})"); perms()
WX = 16 if OPT['WDL'] == 1 else 0
for hf, (cnt, fl) in enumerate(((NDMA // 2 + WX, M_W), (WX, M_W2))):
    a(f"s_waitcnt vmcnt({cnt})\n ds_write_b8 v{vFL}, v16 offset:{fl}")
    if hf == 1 and OPT['WDL'] == 2: wdl(False)
    if hf == 1: stamp(2)
    lds_spin(18, vMI, fl, 0x01010101 if OPT['DW4'] else 0x0101)
    for ks in range(8 * hf, 8 * hf + 8):
        for hh in range(2):
            a(f"ds_read_b64_tr_b16 {vr(WF+4*ks+2*hh,2)}, v20 offset:{ks*1024+hh*128}")
if OPT["WDL"]: a("s_waitcnt vmcnt(0)"); perms()
a(f"v_lshrrev_b32 v21, 4, v1\n v_lshlrev_b32 v21, 4, v21\n v_add_u32 v21, {L_XS}, v21")
stamp(4)
if OPT["GO"]: a(f"s_lshl_b32 s{sT+4}, s{sCG}, 7\n s_add_u32 s{sT+4}, s{sT+4}, {WS_GO}\n v_mov_b32 v22, s{sT+4}\n v_mov_b32 v23, s{sTAG}")
lds_spin(18, vMI, M_XS, 1, hot=True)
if OPT["GO"]:
    a(f"""
    s_lshr_b32 exec_lo, s{sUNIT}, 0
    s_mov_b32 exec_hi, 0
    s_cbranch_execz L_nogo
    global_store_dword v22, v23, {P(sWS)} sc1
    """)
    a.label("L_nogo")
    a("s_mov_b64 exec, -1")
stamp(6)
DG = 32
XB = lambda ks: 192 + 4 * (ks % 8)
for ks in range(3): a(f"ds_read_b128 {vr(XB(ks),4)}, v21 offset:{64*ks}")
nx_ = 3
for ks in range(16):
    a.prewait({("v", XB(ks) + j) for j in range(4)})
    for _ in range(2):
        if nx_ < 16 and nx_ - ks < 8: a(f"ds_read_b128 {vr(XB(nx_),4)}, v21 offset:{64*nx_}"); nx_ += 1
    a(f"v_mfma_f32_16x16x32_bf16 {vr(DG,4)}, {vr(WF+4*ks,4)}, {vr(XB(ks),4)}, {'0' if ks == 0 else vr(DG,4)}")
sTB = sT + 6
a(f"""
s_lshr_b32 s{sTB+1}, s{sTAG}, 8
s_lshr_b32 s{sTB+2}, s{sTAG}, 16
s_lshr_b32 s{sTB+3}, s{sTAG}, 24
s_lshl_b32 s{sT}, s{sPU}, 6
s_add_u32 s{sT}, s{sT}, {WS_PART}
v_lshrrev_b32 v20, 2, v1
v_mul_u32_u24 v20, {PQ}, v20
v_and_b32 v21, 3, v1
v_lshl_add_u32 v20, v21, 4, v20
v_add_u32 v20, s{sT}, v20
v_add_u32 v22, {16*PQ}, v20
v_mov_b32 v21, 0xff
v_permlane32_swap_b32 v{DG}, v{DG+1}
v_permlane32_swap_b32 v{DG+2}, v{DG+3}
v_mul_f32 v36, 0xbfb8aa3b, v{DG}
v_mul_f32 v37, 0xbfb8aa3b, v{DG+2}
v_exp_f32 v36, v36
v_exp_f32 v37, v37
v_mul_f32 v{DG}, v{DG}, v{DG+1}
v_add_f32 v36, 1.0, v36
v_add_f32 v37, 1.0, v37
v_rcp_f32 v36, v36
v_rcp_f32 v37, v37
v_mul_f32 v{DG+2}, v{DG+2}, v{DG+3}
v_mul_f32 v36, v36, v{DG}
v_mul_f32 v37, v37, v{DG+2}
v_cvt_pk_bf16_f32 v36, v36, v37
""")
sH = sT + 12
for pi in range(4): a(f"v_readlane_b32 s{sH+pi}, v36, {16*pi}")
Y = 40
for half in range(2):
    for pi in range(4):
        for c in range(4 * half, 4 * half + 4):
            a(f"v_dot2_f32_bf16 v{Y+c}, v{WDP+8*pi+c}, s{sH+pi}, {'0' if pi == 0 else 'v%d' % (Y+c)}")
    if half == 1:
        a(f"global_store_dwordx4 v20, {vr(Y,4)}, {P(sWS)} sc1")
    for c in range(4 * half, 4 * half + 4):
        a(f"v_bfi_b32 v{Y+c}, v21, s{sTAG if c % 4 == 0 else sTB + c % 4}, v{Y+c}")
a(f"global_store_dwordx4 v22, {vr(Y+4,4)}, {P(sWS)} sc1")
stamp(7)
a(f"s_cmp_eq_u32 s{sUNIT}, 0\n s_cbranch_scc1 L_hop2")
endpgm()
a.label("L_rpln")
sleep(OPT["POLLDLY"])
a("s_branch L_rp0")
a.label("L_rpoll")
a.wait(vm=0, lgkm=0)
a.reset()
if OPT["DW4"]: a(f"s_cmp_lt_u32 s{sCG}, 112\n s_cbranch_scc1 L_rp0")
sleep(OPT["PD2"])
a.label("L_rp0")
a(f"v_add_u32 v99, {WS_ROUT}, v2\n s_mov_b32 s{sT+1}, 0")
a.label("L_rp1")
rloads()
a.label("L_rp1b")
a(f"s_add_u32 s{sT+1}, s{sT+1}, 1")
a.wait(vm=0)
a(f"""
v_xor_b32 v101, s{sTAG}, v101
v_xor_b32 v103, s{sTAG}, v103
v_max_u32 v44, v100, v102
v_or_b32 v101, v101, v103
v_cmp_ne_u32 vcc, 0, v101
s_cbranch_vccz L_rp2
s_cmp_lt_u32 s{sT+1}, {OPT['POLLMAX']}
s_sleep {OPT['BKO']}
s_cbranch_scc1 L_rp1
""")
a.label("L_rp2")
for st in DPP4: a(f"v_max_u32_dpp v44, v44, v44 {st} row_mask:0xf bank_mask:0xf bound_ctrl:0")
a(f"""
v_max_u32_dpp v44, v44, v44 row_bcast:15 row_mask:0xa bank_mask:0xf
v_max_u32_dpp v44, v44, v44 row_bcast:31 row_mask:0xc bank_mask:0xf
v_readlane_b32 s{sKEY}, v44, 63
s_and_b32 s{sIDX}, s{sKEY}, 0x7ff
s_sub_u32 s{sIDX}, 2047, s{sIDX}
s_lshl_b32 s{sT+14}, s{sIDX}, 10
s_lshl_b32 s{sT+15}, s{sIDX}, 3
s_add_u32 s{sT+15}, s{sT+15}, {WS_STAT}
v_add_u32 v41, s{sT+14}, v2
v_mov_b32 v42, s{sT+15}
s_cmp_lt_u32 s{sCG}, 112
s_cselect_b32 s{sT+16}, 1, 0
s_cmp_lg_u32 s{sHS}, {OPT['LNHS']}
s_cselect_b32 s{sT+16}, s{sT+16}, 0
s_cmp_eq_u32 s{sT+16}, 0
s_cbranch_scc1 L_rp3
global_load_dwordx4 v[44:47], v41, {P(sX)}{NTX}
global_load_dwordx2 v[48:49], v42, {P(sWS)} sc1
""")
a.label("L_rp3")
a(f"""
v_mov_b32 v112, 1
v_mov_b32 v113, s{sIDX}
v_mov_b32 v114, s{sKEY}
s_mov_b64 exec, 1
ds_write_b96 v{vMI}, v[112:114] offset:{M_RT}
s_mov_b64 exec, -1
""")
if STAMPS: a.wait(lgkm=0); a(f"s_mov_b32 s{SS(13)}, s{sT+1}")
stamp(14)
a(f"s_cmp_eq_u32 s{sHS}, {OPT['LNHS']}\n s_cbranch_scc1 L_hop2b")
a(f"s_cmp_eq_u32 s{sT+16}, 0\n s_cbranch_scc1 L_xt1")
if OPT["OVL"]: a("s_branch L_xt2")
a.label("L_st0")
a.reset()
a(f"v_add_u32 v41, {L_XS}, v2\n s_mov_b32 s{sT+16}, 0\n s_mov_b32 s{sT}, 0\n s_waitcnt vmcnt({14 if OPT['OVL'] else 0})\n s_branch L_st1b")
a.label("L_st1")
a.wait(vm=0)
a.label("L_st1b")
a(f"""
v_xor_b32 v48, s{sTLO}, v48
v_xor_b32 v49, s{sTHI}, v49
v_or_b32 v50, v48, v49
v_and_b32 v50, 0xffff, v50
v_cmp_ne_u32 vcc, 0, v50
s_cbranch_vccz L_st2
s_add_u32 s{sT}, s{sT}, 1
s_cmp_ge_u32 s{sT}, {OPT['POLLMAX']}
s_cbranch_scc1 L_st2
global_load_dwordx2 v[48:49], v42, {P(sWS)} sc1
s_branch L_st1
""")
a.label("L_st2")
a.reset()
FX = 116
a(f"v_rcp_f32 v50, v49")
for i in range(4):
    a(f"v_lshlrev_b32 v{FX+2*i}, 16, v{44+i}\n v_and_b32 v{FX+2*i+1}, 0xffff0000, v{44+i}")
a(f"v_mul_f32 v51, -v48, v50")
for i in range(4):
    a(f"v_pk_fma_f32 {vr(FX+2*i,2)}, {vr(FX+2*i,2)}, v[50:51], v[50:51] op_sel:[0,0,1] op_sel_hi:[1,0,1]")
for i in range(4): a(f"v_cvt_pk_bf16_f32 v{44+i}, v{FX+2*i}, v{FX+2*i+1}")
a(f"""
ds_write_b128 v41, v[44:47]
s_mov_b64 exec, 1
ds_write_b32 v{vMI}, v112 offset:{M_XS}
s_mov_b64 exec, -1
""")
stamp(10)
a("s_branch L_x1d" if OPT["OVL"] else "s_branch L_xt2")
a.label("L_hop2c")
lds_spin(18, vMI, M_RT, 1)
a.label("L_hop2b")
a(f"s_mov_b32 s{sFFN}, 0")
if not OPT["GO"]: sleep(OPT["H2B"] - OPT["H2A"])
a.label("L_hop2")
a.reset()
a(f"""
ds_read_b96 v[16:18], v{vMI} offset:{M_RT}
v_readfirstlane_b32 s{sIDX}, v17
v_readfirstlane_b32 s{sKEY}, v18
s_lshr_b32 s{sT}, s{sIDX}, 8
s_add_u32 s{sT}, s{sT}, 6
s_and_b32 s{sT}, s{sT}, 7
s_lshr_b32 s{sT}, s{sT}, 2
s_xor_b32 s{sT}, s{sT}, 1
s_cmp_eq_u32 s{sT}, s{sHS}
s_cbranch_scc1 L_h1
""")
endpgm()
a.label("L_h1")
a(f"""
s_and_b32 s{sTB}, s{sTAG}, 0xff
s_bfe_u32 s{sTB+1}, s{sTAG}, 0x80008
s_bfe_u32 s{sTB+2}, s{sTAG}, 0x80010
s_lshr_b32 s{sTB+3}, s{sTAG}, 24
s_lshr_b32 s{sT}, s{sCG}, 2
s_mul_i32 s{sT}, s{sT}, {PQ}
s_and_b32 s{sT+2}, s{sCG}, 3
s_lshl_b32 s{sT+2}, s{sT+2}, 4
s_add_u32 s{sT}, s{sT}, s{sT+2}
s_add_u32 s{sT}, s{sT}, {WS_PART}
v_lshl_add_u32 v20, v1, 6, s{sT}
v_add_u32 v21, 4096, v20
v_add_u32 v22, 8192, v20
v_add_u32 v23, 12288, v20
v_mov_b32 v36, s{sTB}
v_mov_b32 v37, s{sTB+1}
v_mov_b32 v38, s{sTB+2}
v_mov_b32 v39, s{sTB+3}
s_and_b32 s{sT}, s{sKEY}, 0xfffff800
s_xor_b32 s{sT+2}, s{sT}, 0x80000000
s_not_b32 s{sT+3}, s{sT}
s_bitcmp1_b32 s{sT}, 31
s_cselect_b32 s{sT}, s{sT+2}, s{sT+3}
v_mov_b32 v44, s{sT}
v_mul_f32 v44, 0xbfb8aa3b, v44
v_exp_f32 v44, v44
s_mov_b32 s{sT+1}, 0
v_add_f32 v44, 1.0, v44
v_rcp_f32 v44, v44
s_lshl_b32 s{sT}, s{sIDX}, 10
s_lshl_b32 s{sT+2}, s{sCG}, 3
s_add_u32 s{sT}, s{sT}, s{sT+2}
v_lshrrev_b32 v45, 4, v1
v_and_b32 v46, 1, v45
v_lshrrev_b32 v45, 1, v45
v_lshl_add_u32 v45, v46, 1, v45
v_lshl_add_u32 v46, v45, 2, v{vMI}
v_lshl_add_u32 v45, v45, 1, s{sT}
""")
if OPT["GO"]:
    a(f"""
    v_min_u32 v47, 6, v1
    v_lshlrev_b32 v47, 11, v47
    s_and_b32 s{sT}, s{sCG}, {OPT['GOM']}
    s_lshl_b32 s{sT}, s{sT}, 7
    s_add_u32 s{sT}, s{sT}, {WS_GO}
    v_add_u32 v47, s{sT}, v47
    """)
    a(f"s_cmp_eq_u32 s{sFFN}, 0\n s_cbranch_scc1 L_g1")
    sleep(OPT["H2A"] - OPT["GOD"] - 6)
    a.label("L_g1")
    a(f"""
    global_load_dword v24, v47, {P(sWS)} sc1
    s_add_u32 s{sT+1}, s{sT+1}, 1
    v_cmp_ne_u32 vcc, s{sTAG}, v24
    s_cbranch_vccz L_g2
    s_cmp_lt_u32 s{sT+1}, {OPT['POLLMAX']}
    s_sleep 3
    s_cbranch_scc1 L_g1
    """)
    a.label("L_g2")
    sleep(OPT["GOD"])
    a(f"s_mov_b32 s{sT+1}, 0\n s_branch L_h2")
sleep(OPT["H2A"] - 2)
a.label("L_h2")
a(f"""
global_load_dwordx4 v[24:27], v20, {P(sWS)} sc1
global_load_dwordx4 v[28:31], v21, {P(sWS)} sc1
global_load_dwordx4 v[32:35], v22, {P(sWS)} sc1
s_mov_b32 exec_hi, 0
global_load_dwordx4 v[36:39], v23, {P(sWS)} sc1
s_mov_b32 exec_hi, -1
s_add_u32 s{sT+1}, s{sT+1}, 1
""")
a.wait(vm=0)
for i in range(4): a(f"v_xor_b32 v{40+i}, v{24+i}, v{28+i}")
for i in range(4): a(f"v_xor_b32 v{48+i}, v{32+i}, v{36+i}")
for i in range(4): a(f"v_xor_b32 v{16+i}, s{sTB+i}, v{24+i}")
a(f"""
v_or3_b32 v40, v40, v41, v42
v_or3_b32 v48, v48, v49, v50
v_or3_b32 v16, v16, v17, v18
v_xor_b32 v41, v24, v32
v_xor_b32 v42, v25, v33
v_xor_b32 v49, v26, v34
v_xor_b32 v50, v27, v35
v_or3_b32 v40, v40, v43, v48
v_or3_b32 v16, v16, v19, v51
v_or3_b32 v41, v41, v42, v49
v_or3_b32 v40, v40, v16, v50
v_or_b32 v40, v40, v41
v_and_b32 v40, 0xff, v40
v_cmp_ne_u32 vcc, 0, v40
s_cbranch_vccz L_h3
s_cmp_lt_u32 s{sT+1}, {OPT['POLLMAX']}
s_sleep {OPT['BKO']}
s_cbranch_scc1 L_h2
""")
a.label("L_h3")
stamp(8)
if STAMPS: a(f"s_mov_b32 s{SS(11)}, s{sT+1}")
a(f"""
v_pk_add_f32 v[24:25], v[24:25], v[28:29]
v_pk_add_f32 v[26:27], v[26:27], v[30:31]
v_pk_add_f32 v[32:33], v[32:33], v[36:37]
v_pk_add_f32 v[34:35], v[34:35], v[38:39]
v_pk_add_f32 v[24:25], v[24:25], v[32:33]
v_pk_add_f32 v[26:27], v[26:27], v[34:35]
v_permlane32_swap_b32 v24, v25
v_permlane32_swap_b32 v26, v27
v_add_f32 v24, v24, v25
v_add_f32 v26, v26, v27
v_permlane16_swap_b32 v24, v26
v_add_f32 v24, v24, v26
""")
for st in DPP4: a(f"v_add_f32_dpp v24, v24, v24 {st} row_mask:0xf bank_mask:0xf bound_ctrl:0")
lds_spin(18, vMI, M_SV, 1)
a(f"""
ds_read_b32 v25, v46 offset:{M_SAVE}
v_fma_f32 v25, v24, v44, v25
v_cvt_pk_bf16_f32 v25, v25, v25
s_mov_b32 exec_lo, 0x80008000
s_mov_b32 exec_hi, 0x80008000
global_store_short v45, v25, {P(sOUT)}
""")
stamp(9)
endpgm()
a.label("L_xt")
a.reset()
XT, ST = 64, 96
sE = sT + 2
sJ = sT + 6
a(f"s_sub_u32 s{sUNIT}, s{sUNIT}, 2\n v_subrev_u32 v{vFL}, 2, v{vFL}")
for i in range(4):
    a(f"""
    s_bfe_u32 s{sE+i}, s{sTAG}, {0x30000 + 6*i}
    s_bfe_u32 s{sT}, s{sTAG}, {0x30000 + 6*i + 3}
    s_lshl_b32 s{sT}, s{sT}, 16
    s_or_b32 s{sE+i}, s{sE+i}, s{sT}
    """)
vUW, vTOK, vSTA, vYR, vUR, vOA = 24, 25, 26, 27, 28, 29
a(f"""
s_cmp_eq_u32 s{sHS}, 0
s_cselect_b32 s{sJ}, 0, 512
s_cselect_b32 s{sJ+2}, 512, 0
s_add_u32 s{sJ+1}, s{sJ}, 256
s_add_u32 s{sJ+2}, s{sJ+2}, 1024
s_add_u32 s{sJ+3}, s{sJ+2}, 256
s_lshl_b32 s{sT}, s{sCG}, 14
s_lshl_b32 s{sT+1}, s{sUNIT}, 10
s_add_u32 s{sT}, s{sT}, s{sT+1}
s_add_u32 s{sT}, s{sT}, {WS_XT + 4096}
v_add_u32 v20, s{sT}, v2
v_add_u32 v21, 0x2000, v20
v_and_b32 v17, 3, v1
v_mul_u32_u24 v17, {USTR}, v17
v_lshrrev_b32 v16, 2, v1
v_lshl_add_u32 v17, v16, 4, v17
s_lshl_b32 s{sT}, s{sUNIT}, 8
s_add_u32 s{sT}, s{sT}, {L_U + 512}
v_add_u32 v{vUW}, s{sT}, v17
s_lshl_b32 s{sT}, s{sUNIT}, 6
v_add_u32 v{vTOK}, s{sT}, v1
v_lshlrev_b32 v{vSTA}, 3, v{vTOK}
v_add_u32 v{vSTA}, {WS_STAT}, v{vSTA}
v_and_b32 v16, 3, v1
v_mul_u32_u24 v16, {YJ}, v16
v_bfe_u32 v17, v1, 2, 2
v_lshl_add_u32 v16, v17, 6, v16
v_lshrrev_b32 v17, 4, v{vTOK}
v_lshl_add_u32 v{vYR}, v17, 2, v16
v_lshlrev_b32 v{vUR}, 1, v{vTOK}
v_add_u32 v{vUR}, {L_U + 512}, v{vUR}
s_lshl_b32 s{sT}, s{sCG}, 3
v_lshl_add_u32 v{vOA}, v{vTOK}, 10, s{sT}
""")
for q in range(4):
    a(f"s_lshl_b32 s{sT}, s{sJ+q}, 3\n v_add_u32 v{30+q}, s{sT}, v{vSTA}")
if OPT["BE"] == 2:
    a(f"""
    s_cmp_eq_u32 s{sUNIT}, 0
    s_cbranch_scc1 L_notab
    v_add_u32 v16, L_tab-L_pc, v2
    s_mov_b32 m0, {L_TAB}
    v_add_u32 v17, 4096, v16
    """)
    for i in range(4): a(f"global_load_lds_dwordx4 v16, {P(sPC)} offset:{1024*i}")
    a(f"s_mov_b32 m0, {L_TAB + 4096}")
    for i in range(2): a(f"global_load_lds_dwordx4 v17, {P(sPC)} offset:{1024*i}")
    a.label("L_notab")
a(f"""
v_mov_b32 v42, {WS_STAT}
s_mov_b32 s{sT+16}, 0
s_cmp_eq_u32 s{sHS}, {OPT['LNHS']}
s_cselect_b32 s{sT}, 1, s{sUNIT}
s_cmp_eq_u32 s{sT}, 0
s_cbranch_scc1 L_rpoll
""")
lds_spin(18, vMI, M_RT, 1, width=2)
a(f"v_readfirstlane_b32 s{sIDX}, v19")
a.label("L_xt1")
sleep(OPT["XTDLY"])
a.label("L_xt2")
a.reset()
if OPT["GP"] != 3:
    a(f"s_cmp_lg_u32 s{sHS}, {OPT['LNHS']}\n s_cbranch_scc1 L_xt3\n s_setprio {OPT['GP']}")
    a.label("L_xt3")
stamp(4)
a(f"s_mov_b32 s{sT+1}, 0")
def stl():
    for i in range(8):
        a(f"global_load_dwordx2 {vr(ST+2*i,2)}, v{30+i//2}, {P(sWS)} offset:{(i%2)*1024} sc1")
a.label("L_x1")
for i in range(8):
    if i == 6: a(f"s_cmp_eq_u32 s{sHS}, 1\n s_cbranch_scc1 L_x1b")
    a(f"global_load_dwordx4 {vr(XT+4*i,4)}, v{20+i//4}, {P(sWS)} offset:{(i%4)*2048-4096} sc1")
a.label("L_x1b")
stl()
a(f"s_cmp_lg_u32 s{sT+16}, 0\n s_cbranch_scc1 L_st0")
a.label("L_x1d")
a(f"s_add_u32 s{sT+1}, s{sT+1}, 1")
a.vmq = []
for i in range(0, 8, 2):
    if i == 6: a(f"s_cmp_eq_u32 s{sHS}, 1\n s_cbranch_scc1 L_x1c")
    a(f"s_waitcnt vmcnt({8 + max(4-i,0)})")
    for j in range(8): a(f"v_xor_b32 v{XT+4*i+j}, s{sE+j%4}, v{XT+4*i+j}")
    for k in range(2): a(f"ds_write_b128 v{vUW}, {vr(XT+4*i+4*k,4)} offset:{512*(i+k)}")
    for k in range(2):
        b = XT + 4 * i + 4 * k
        if i + k == 0: a(f"v_or3_b32 v16, v{b}, v{b+1}, v{b+2}\n v_mov_b32 v17, v{b+3}")
        else: a(f"v_or3_b32 v16, v16, v{b}, v{b+1}\n v_or3_b32 v17, v17, v{b+2}, v{b+3}")
a.label("L_x1c")
a(f"""
v_or_b32 v16, v16, v17
v_and_b32 v16, 0x70007, v16
v_cmp_ne_u32 vcc, 0, v16
s_cbranch_vccz L_x2
s_cmp_lt_u32 s{sT+1}, {OPT['POLLMAX']}
s_waitcnt vmcnt(0)
s_sleep {OPT['BKO']}
s_cbranch_scc1 L_x1
""")
a.label("L_x2")
a(f"v_mov_b32 v16, 1\n ds_write_b8 v{vFL}, v16 offset:{M_U}")
if STAMPS: a(f"s_mov_b32 s{SS(11)}, s{sT+1}")
stamp(5)
a(f"s_mov_b32 s{sT+1}, 0")
a.label("L_x3")
a.wait(vm=0)
for i in range(8):
    a(f"v_xor_b32 v{ST+2*i}, s{sTLO}, v{ST+2*i}\n v_xor_b32 v{ST+2*i+1}, s{sTHI}, v{ST+2*i+1}")
    a(f"v_or3_b32 v17, {'0' if i == 0 else 'v17'}, v{ST+2*i}, v{ST+2*i+1}")
a(f"""
v_and_b32 v17, 0xffff, v17
v_cmp_ne_u32 vcc, 0, v17
s_cbranch_vccz L_x4
s_add_u32 s{sT+1}, s{sT+1}, 1
s_cmp_ge_u32 s{sT+1}, {OPT['POLLMAX']}
s_cbranch_scc1 L_x4
""")
stl()
a("s_branch L_x3")
a.label("L_x4")
a.reset()
a(f"s_setprio {OPT['EP']}")
stamp(2)
INV, XRC = 36, 128
sOB = sT + 12
a(f"s_lshl_b32 s{sT}, s{sUNIT}, 6\n s_sub_u32 s{sIDX}, s{sIDX}, s{sT}")
lds_spin(18, vMI, M_U, 0x0101)
slow = []
for q in range(4):
    a(f"s_lshl_b32 s{sT}, s{sJ+q}, 1\n v_add_u32 v30, s{sT}, v{vUR}")
    for h in range(2):
        for c in range(4): a(f"ds_read_u16_d16 v{XRC+4*h+c}, v30 offset:{c*USTR + h*256}")
    a(f"s_lshl_b32 s{sT}, s{sJ+q}, 10\n s_add_u32 s{sOB}, s{sOUT}, s{sT}\n s_addc_u32 s{sOB+1}, s{sOUT+1}, 0")
    a(f"s_add_u32 s{sOB+2}, s{sOB}, 0x20000\n s_addc_u32 s{sOB+3}, s{sOB+1}, 0")
    a(f"s_sub_u32 s{sT+10}, s{sIDX}, s{sJ+q}\n s_sub_u32 s{sT+11}, s{sT+10}, 128")
    for h in range(2):
        for c in range(4):
            a(f"v_fma_mix_f32 v{XRC+4*h+c}, v{XRC+4*h+c}, v{ST+4*q+2*h+1}, v{ST+4*q+2*h} op_sel_hi:[1,0,0]")
    lds_spin(18, vMI, M_T + 4 * q, 0x01010101, hot=(q == 3 or OPT['HOT'] > 1))
    if q == 0: stamp(3)
    if q == 3: stamp(12)
    for h in range(2):
        for c in range(4):
            a(f"ds_read_b32 v{112+8*h+c}, v{vYR} offset:{L_KT + c*KT_SZ + q*YQ + h*32}")
    if q == 0: a(f"ds_read_b128 {vr(INV,4)}, v{vMI} offset:{M_INV}")
    for h in range(2):
        y, u, i = 112 + 8 * h, 116 + 8 * h, 2 * q + h
        for c in range(4):
            a(f"v_fma_f32 v{y+c}, v{y+c}, v{INV+c}, v{XRC+4*h+c}")
        a(f"v_cvt_pk_bf16_f32 v{u}, v{y}, v{y+1}\n v_cvt_pk_bf16_f32 v{u+1}, v{y+2}, v{y+3}")
        Ls, Lb = a.newlabel("save"), a.newlabel("saved")
        a(f"s_cmp_lt_u32 s{sT+10+h}, 64\n s_cbranch_scc1 {Ls}")
        a.label(Lb)
        a(f"global_store_dwordx2 v{vOA}, {vr(u,2)}, {P(sOB+2*h)}\n s_mov_b64 exec, -1")
        slow.append((Ls, Lb, y, h))
    stamp(6 + q)
endpgm()
for (Ls, Lb, y, h) in slow:
    a.label(Ls)
    a(f"""
    s_lshl_b64 exec, 1, s{sT+10+h}
    ds_write_b128 v{vMI}, {vr(y,4)} offset:{M_SAVE}
    ds_write_b32 v{vMI}, v16 offset:{M_SV}
    s_not_b64 exec, exec
    s_branch {Lb}
    """)

a.raw(".p2align 6")
a.label("L_conv")
a.reset()
a.smem_any = True
a.vmq = [{("v", 255)}]
PRM, BAND = 4, 12
KW, T2, T3, ACC, DT, BX2, BX3, URING = 36, 104, 128, 144, 160, 176, 208, 224
NRING = 6
vKTA, vWA, vWT2, vWT3, vKWB, vT, vKW, vTAB, vU, vCF, vK0 = 248, 249, 250, 251, 252, 253, 254, 11, 2, 3, 10
sCH, sLD, sDS, sKWB, sUB = sT + 2, sT + 3, sT + 4, sT + 5, sT + 9
a(f"""
s_lshl_b32 s{sCH}, s{sCG}, 2
s_add_u32 s{sCH}, s{sCH}, s{sWAVE}
s_lshl_b32 s{sT+6}, s{sCH}, 8
v_lshl_add_u32 v36, v1, 2, s{sT+6}
s_lshr_b32 s{sT+6}, s{sCH}, 1
s_lshl_b32 s{sT+6}, s{sT+6}, 2
""")
a.wait(lgkm=0)
for i, s_ in enumerate((sARE, sAIM, sBRE, sBIM, sCRE, sCIM)):
    a(f"global_load_dword v{PRM+i}, v36, {P(s_)}{NTP}")
a(f"""
s_load_dword s{sLD}, {P(sLDT)}, s{sT+6}
s_load_dword s{sDS}, {P(sDSK)}, s{sT+6}
v_add_u32 v{vTAB}, L_tab-L_pc, v2
v_add_u32 v{URING}, 4096, v{vTAB}
""")
bandl = [f"global_load_dwordx4 {vr(BAND+4*i,4)}, v{vTAB if i < 4 else URING}, {P(sPC)} offset:{(i%4)*1024}" for i in range(6)]
if OPT["BE"] == 1:
    for t in bandl: a(t)
def wpf(L_skip, mode):
    if mode == 1: a(f"s_cmp_ge_u32 s{sWAVE}, 2\n s_cbranch_scc1 {L_skip}")
    if mode == 2: a(f"s_cmp_lt_u32 s{sWAVE}, 2\n s_cbranch_scc1 {L_skip}")
    a(f"""
    s_cmp_lg_u32 s{sHS}, {OPT['LNHS']}
    s_cbranch_scc1 {L_skip}
    s_cmp_ge_u32 s{sCG}, 112
    s_cbranch_scc1 {L_skip}
    s_bitcmp0_b32 s{sWAVE}, 0
    s_cselect_b32 s{sT+10}, s{sWG}, s{sWU}
    s_cselect_b32 s{sT+11}, s{sWG+1}, s{sWU+1}
    s_lshr_b32 s{sT+7}, s{sCG}, 4
    s_lshl_b32 s{sT+7}, s{sT+7}, 9
    s_and_b32 s{sT+8}, s{sCG}, 15
    s_lshr_b32 s{sT+12}, s{sWAVE}, 1
    s_lshl_b32 s{sT+12}, s{sT+12}, 4
    s_add_u32 s{sT+8}, s{sT+8}, s{sT+12}
    s_mul_i32 s{sT+8}, s{sT+8}, {16*3584}
    s_add_u32 s{sT+7}, s{sT+7}, s{sT+8}
    v_lshrrev_b32 v38, 2, v1
    v_mul_u32_u24 v38, 3584, v38
    v_and_b32 v39, 3, v1
    v_lshl_add_u32 v38, v39, 7, v38
    v_add_u32 v38, s{sT+7}, v38
    global_load_dword v{URING+1}, v38, {P(sT+10)}{NTF}
    """)
if OPT["PFW"] and OPT["PFE"]: wpf("L_w1", 0 if OPT["PFE"] == 1 else 1); a.label("L_w1")
a(f"""
s_mul_i32 s{sKWB}, s{sWAVE}, {KW_SZ}
s_add_u32 s{sKWB}, s{sKWB}, {L_KW}
s_mul_i32 s{sT+7}, s{sWAVE}, {KT_SZ}
s_mov_b32 m0, s{sT+7}
v_and_b32 v42, 31, v1
v_lshrrev_b32 v43, 5, v1
v_mul_u32_u24 v{vKTA}, {ROWP}, v42
v_lshl_add_u32 v{vKTA}, v43, 4, v{vKTA}
v_add_u32 v{vKTA}, s{sT+7}, v{vKTA}
v_mov_b32 v40, 0
v_mov_b32 v41, 0
v_mov_b32 v42, 0
v_mov_b32 v43, 0
v_add_u32 v39, s{sKWB}, v2
ds_write_b128 v39, v[40:43]
ds_write_b128 v39, v[40:43] offset:768
s_mul_i32 s{sUB}, s{sWAVE}, {USTR}
s_add_u32 s{sUB}, s{sUB}, {L_U}
v_lshl_add_u32 v39, v1, 3, s{sUB}
ds_write_b64 v39, v[40:41]
v_lshrrev_b32 v38, 4, v1
v_mul_u32_u24 v38, {KW_NS}, v38
v_and_b32 v39, 15, v1
v_lshl_add_u32 v38, v39, 3, v38
v_cmp_lt_u32 vcc, 8, v39
s_add_u32 s{sT+7}, s{sKWB}, {KW_N}
v_add_u32 v38, s{sT+7}, v38
v_add_u32 v39, {1104 - 72}, v38
v_cndmask_b32 v38, v38, v39, vcc
ds_write_b64 v38, v[40:41]
v_cmp_eq_u32 vcc, 0, v1
s_barrier
""")
late = f"""
v_and_b32 v40, 15, v1
v_lshrrev_b32 v41, 4, v1
v_and_b32 v42, 31, v1
v_lshrrev_b32 v43, 5, v1
v_and_b32 v44, 1, v1
v_mov_b32 v{vKWB}, s{sKWB}
s_add_u32 s{sT+7}, s{sKWB}, {KW_N + 1088}
v_sub_u32 v{vWA}, s{sT+7}, v2
v_lshlrev_b32 v45, 8, v44
v_lshrrev_b32 v46, 1, v1
v_lshlrev_b32 v46, 2, v46
v_sub_u32 v45, v45, v46
s_add_u32 s{sT+7}, s{sKWB}, {47*4}
v_add_u32 v{vWT2}, s{sT+7}, v45
v_lshrrev_b32 v45, 1, v42
v_lshl_add_u32 v45, v43, 5, v45
v_lshlrev_b32 v45, 2, v45
v_lshlrev_b32 v46, 1, v44
v_sub_u32 v45, v46, v45
s_add_u32 s{sT+7}, s{sKWB}, {512 + 47*4}
v_add_u32 v{vWT3}, s{sT+7}, v45
v_lshlrev_b32 v45, 2, v41
v_sub_u32 v46, v45, v40
v_lshlrev_b32 v46, 2, v46
v_mul_u32_u24 v45, {KW_T1}, v44
v_sub_u32 v46, v46, v45
s_add_u32 s{sT+7}, s{sKWB}, {60 + KW_T1}
v_add_u32 v{vT}, s{sT+7}, v46
v_and_b32 v45, 3, v1
v_mul_u32_u24 v45, {KW_NS}, v45
v_lshl_add_u32 v45, v41, 4, v45
v_and_b32 v46, 12, v1
v_lshlrev_b32 v46, 1, v46
v_sub_u32 v45, v45, v46
s_add_u32 s{sT+7}, s{sKWB}, {KW_N + 1064 - 1024}
v_add_u32 v{vKW}, s{sT+7}, v45
v_lshlrev_b32 v{vU}, 5, v40
v_lshl_add_u32 v{vU}, v41, 4, v{vU}
v_add_u32 v{vU}, s{sUB}, v{vU}
v_lshlrev_b32 v45, 2, v1
v_add_u32 v45, {L_MISC + M_DUMMY}, v45
s_add_u32 s{sT+7}, s{sWAVE}, {L_MISC}
v_mov_b32 v46, s{sT+7}
v_cndmask_b32 v{vCF}, v45, v46, vcc
""".strip().split("\n")
stamp(10)
a.wait(lgkm=0)
DTv, K1, K2, ONE = 82, 83, 84, 85
a(f"""
s_lshl_b32 s{sT+7}, s{sLD}, 16
s_and_b32 s{sLD}, s{sLD}, 0xffff0000
s_lshl_b32 s{sT+8}, s{sDS}, 16
s_and_b32 s{sDS}, s{sDS}, 0xffff0000
s_bitcmp1_b32 s{sCH}, 0
s_cselect_b32 s{sLD}, s{sLD}, s{sT+7}
s_cselect_b32 s{sDS}, s{sDS}, s{sT+8}
v_mov_b32 v{DTv}, s{sLD}
v_mul_f32 v{DTv}, 0x3fb8aa3b, v{DTv}
v_exp_f32 v{DTv}, v{DTv}
v_mov_b32 v{ONE}, 0x3c00
v_cvt_pk_bf16_f32 v{DTv}, v{DTv}, v{DTv}
v_lshlrev_b32 v{DTv}, 16, v{DTv}
v_mul_f32 v{K1}, 0x3fb8aa3b, v{DTv}
v_mul_f32 v{K2}, 0x3e22f983, v{DTv}
v_add_f32 v{vK0}, 1.0, s{sDS}
v_and_b32 v86, 0x7fffffff, v{vK0}
v_cndmask_b32 v{vK0}, 0, v{vK0}, vcc
""")
NB = 6 if OPT["BE"] == 1 else 0
if OPT["PFW"]:
    if OPT["PFE"] == 0: wpf("L_wa", 0)
    if OPT["PFE"] == 2: wpf("L_w2", 2); a.label("L_w2")
    a(f"""
    s_cmp_lg_u32 s{sHS}, {OPT['LNHS']}
    s_cbranch_scc1 L_wa
    s_cmp_ge_u32 s{sCG}, 112
    s_cbranch_scc1 L_wa
    s_waitcnt vmcnt({NB + 1})
    s_branch L_wb
    """)
    a.label("L_wa")
a.wait(vm=NB)
a.label("L_wb")
a.vmq = [{("v", r) for r in range(BAND, BAND + 24)} | {("v", URING + 1)}]
sleep(OPT["KGDLY"])
if OPT["STAG"]:
    Ls = a.newlabel("stag"); a(f"s_mov_b32 s{sT+7}, s{sWAVE}"); a.label(Ls)
    a(f"s_cmp_eq_u32 s{sT+7}, 0\n s_cbranch_scc1 {Ls}x\n s_sleep {OPT['STAG']}\n s_sub_u32 s{sT+7}, s{sT+7}, 1\n s_branch {Ls}"); a.label(Ls + "x")
stamp(1)
def cyc(k):
    a.raw(f"; MARK {k}")
    if STAMPS == 1 and k in (5, 6, 7): stamp(k)
cyc(None)
Z = [36, 38]; W = [40, 42]; TB, TC = 44, 46
E1, E2, E8, E256, CUR, TMP, SV = 52, 54, 56, 58, 60, 62, 64
CV = list(range(88, 100)); cvi = [0]; pendw = []
def flushw():
    for (c, r) in pendw: a(f"ds_write_addtid_b32 v{c} offset:{r*ROWP}")
    pendw.clear()
def cmul(d, x, y):
    a(f"v_pk_mul_f32 {vr(TMP,2)}, {vr(x,2)}, {vr(y,2)} op_sel:[0,0] op_sel_hi:[1,0]")
    a(f"v_pk_fma_f32 {vr(d,2)}, {vr(x,2)}, {vr(y,2)}, {vr(TMP,2)} op_sel:[1,1,0] op_sel_hi:[0,1,1] neg_lo:[1,0,0]")
def put(rows, x, neg):
    c = CV[cvi[0] % len(CV)]; cvi[0] += 1
    a(f"v_cvt_pk_f16_f32 v{c}, v{x}, {'-' if neg else ''}v{x+1}")
    for r in rows: pendw.append((c, r))
    if len(pendw) >= OPT["KB"]: flushw()
def unp(d, src, hi):
    a(f"v_and_b32 v{d}, 0xffff0000, v{src}" if hi else f"v_lshlrev_b32 v{d}, 16, v{src}")
for s_ in range(2):
    unp(TB, PRM + 2, s_); unp(TB + 1, PRM + 3, s_); unp(TC, PRM + 4, s_); unp(TC + 1, PRM + 5, s_)
    unp(Z[s_], PRM, s_); unp(Z[s_] + 1, PRM + 1, s_)
    cmul(W[s_], TB, TC)
    a(f"v_mul_f32 v{Z[s_]}, v{Z[s_]}, v{K1}\n v_mul_f32 v{Z[s_]+1}, v{Z[s_]+1}, v{K2}")
SUM = 87
a(f"""
v_add_f32 v{SUM}, |v{W[0]}|, |v{W[0]+1}|
v_add_f32 v70, |v{W[1]}|, |v{W[1]+1}|
v_add_f32 v{SUM}, v{SUM}, v70
""")
red = [f"v_add_f32_dpp v{SUM}, v{SUM}, v{SUM} {st} row_mask:0xf bank_mask:0xf bound_ctrl:0" for st in DPP4]
red += [f"v_add_f32_dpp v{SUM}, v{SUM}, v{SUM} row_bcast:15 row_mask:0xa bank_mask:0xf", f"v_add_f32_dpp v{SUM}, v{SUM}, v{SUM} row_bcast:31 row_mask:0xc bank_mask:0xf"]
def evalE(s_, extra, a=a):
    zr, zi = Z[s_], Z[s_] + 1
    ex = list(extra)
    def X():
        if ex: a(ex.pop(0))
    for (d, lit) in ((E8, "0x41000000"), (E1, None), (E256, "0x43800000")):
        if lit:
            a(f"v_mul_f32 v70, {lit}, v{zi}"); a(f"v_mul_f32 v72, {lit}, v{zr}"); X()
            a("v_fract_f32 v70, v70"); a("v_exp_f32 v72, v72")
        else:
            a(f"v_fract_f32 v70, v{zi}"); a(f"v_exp_f32 v72, v{zr}")
        a(f"v_cos_f32 v{d}, v70"); a(f"v_sin_f32 v{d+1}, v70"); X()
        a(f"v_pk_mul_f32 {vr(d,2)}, {vr(d,2)}, v[72:73] op_sel_hi:[1,0]"); X()
    while ex: X()
FR = 160
def ktread(kind):
    flushw()
    for k in range(8):
        base = FR + 4 * k + (32 if kind == "B" else 0)
        a(f"ds_read_b128 {vr(base,4)}, v{vKTA} offset:{32*k + (24*ROWP if kind == 'B' else 0)}")
def kmfma(k, first):
    a(f"v_mfma_f32_32x32x16_f16 {vr(ACC,16)}, {vr(FR+4*k,4)}, {vr(FR+32+4*k,4)}, {'0' if first else vr(ACC,16)}")
H16 = [None, 74, 75, 76]; G1, H2, T16 = 66, 68, 77
def qrows(hook):
    pendw.append((ONE, 24))
    if not OPT["Q16"]:
        put([25], E8, False)
        for j in range(2, 32):
            cmul(CUR, E8 if j == 2 else CUR, E8); put([24 + j], CUR, False); hook(j)
        return
    cmul(H2, E8, E8); cmul(CUR, H2, E8); cmul(G1, H2, H2)
    for v_, x in ((1, E8), (2, H2), (3, CUR)):
        a(f"v_cvt_pk_f16_f32 v{H16[v_]}, v{x}, v{x+1}"); pendw.append((H16[v_], 24 + v_))
    flushw(); hook(0)
    for u_ in range(1, 8):
        if u_ > 1: cmul(CUR, G1 if u_ == 2 else CUR, G1)
        g = CV[cvi[0] % len(CV)]; cvi[0] += 1
        x = G1 if u_ == 1 else CUR
        a(f"v_cvt_pk_f16_f32 v{g}, v{x}, v{x+1}"); pendw.append((g, 24 + 4 * u_))
        for v_ in (1, 2, 3):
            c = CV[cvi[0] % len(CV)]; cvi[0] += 1
            a(f"v_pk_mul_f16 v{T16}, v{g}, v{H16[v_]} op_sel:[0,0] op_sel_hi:[1,0]")
            a(f"v_pk_fma_f16 v{c}, v{g}, v{H16[v_]}, v{T16} op_sel:[1,1,0] op_sel_hi:[0,1,1] neg_lo:[1,0,0]")
            pendw.append((c, 24 + 4 * u_ + v_))
        flushw(); hook(u_)
def prows(s_):
    w = W[s_]
    put([0], w, True)
    for e in range(1, 8):
        cmul(CUR, w if e == 1 else CUR, E1); put([e if e < 4 else e + 4], CUR, True)
    cmul(E2, E1, E1)
    cmul(CUR, w, E256); put([4, 5], CUR, True)
    cmul(CUR, CUR, E2); put([6], CUR, True)
    cmul(SV, CUR, E2); put([7, 12, 13], SV, True)
    cmul(CUR, SV, E2); put([14], CUR, True)
    cmul(CUR, CUR, E2); put([15], CUR, True)
    cmul(SV, SV, E256); put([16], SV, True)
    cmul(CUR, CUR, E256); put([17], CUR, True)
    cmul(SV, SV, E256); put([20], SV, True)
    cmul(CUR, CUR, E256); put([21], CUR, True)
    for r in (18, 19, 22, 23):
        cmul(CUR, CUR, E256); put([r], CUR, True)
evalE(0, red)
sSUM = sT + 7
a(f"""
v_readlane_b32 s{sSUM}, v{SUM}, 63
v_fma_f32 v70, v{DTv}, s{sSUM}, v86
v_frexp_exp_i32_f32 v70, v70
v_sub_u32 v71, 14, v70
v_subrev_u32 v70, 14, v70
v_ldexp_f32 v72, v{DTv}, v71
v_ldexp_f32 v{vK0}, v{vK0}, v71
v_ldexp_f32 v70, 1.0, v70
s_lshl_b32 s{sT+8}, s{sWAVE}, 2
s_add_u32 s{sT+8}, s{sT+8}, {L_MISC + M_INV}
v_mov_b32 v71, s{sT+8}
v_pk_mul_f32 {vr(W[0],2)}, {vr(W[0],2)}, v[72:73] op_sel_hi:[1,0]
v_pk_mul_f32 {vr(W[1],2)}, {vr(W[1],2)}, v[72:73] op_sel_hi:[1,0]
s_mov_b64 exec, 1
ds_write_b32 v71, v70
s_mov_b64 exec, -1
""")
cyc(5)
qrows(lambda j: None); prows(0)
cyc(6)
def kpipe(first, fill, pre):
    flushw()
    def rd(k):
        for kind in range(2): a(f"ds_read_b128 {vr(FR+4*k+32*kind,4)}, v{vKTA} offset:{32*k + 24*ROWP*kind}")
    rd(0); rd(1)
    fill = list(fill)
    for t in fill[:pre]: a(t)
    fill = fill[pre:]
    for k in range(8):
        a.prewait({("v", FR + 4 * k + j) for j in range(4)} | {("v", FR + 32 + 4 * k + j) for j in range(4)})
        kmfma(k, first and k == 0)
        if k + 2 < 8: rd(k + 2)
        w = 0
        while fill and w < (3 if k + 2 < 8 else 6):
            t = fill.pop(0); a(t); w += 0 if t.strip().startswith("s_") else 2 if any(x in t for x in ("exp", "sin", "cos")) else 1
    for t in fill: a(t)
ev = []; evalE(1, [], a=ev.append)
kpipe(True, ev, 7)
a.raw("; MARK 61")
qrows(lambda j: None)
prows(1)
cyc(7)
kpipe(False, late + ([f'v_lshlrev_b32 v{vTAB}, 4, v1', f'v_add_u32 v{vTAB}, {L_TAB}, v{vTAB}'] if OPT['BE'] == 2 else []), 14) if OPT['BE'] else kpipe(False, bandl + late, 6 + 14)
stamp(2)
cyc(9)
QA, QB, QC, QD = 40, 44, 48, 52
K = lambda i: ACC + i
a(f"""
v_add_f32 v{K(0)}, v{K(0)}, v{vK0}
v_mov_b32_dpp v36, v{K(7)} wave_shr:1 row_mask:0xf bank_mask:0xf bound_ctrl:0
v_cvt_pk_f16_f32 v{QA}, v{K(7)}, v{K(6)}
v_cvt_pk_f16_f32 v{QB}, v{K(6)}, v{K(5)}
v_cvt_pk_f16_f32 v{QA+1}, v{K(5)}, v{K(4)}
v_cvt_pk_f16_f32 v{QA+2}, v{K(3)}, v{K(2)}
v_cvt_pk_f16_f32 v{QA+3}, v{K(1)}, v{K(0)}
v_cvt_pk_f16_f32 v{QB+1}, v{K(4)}, v{K(3)}
v_cvt_pk_f16_f32 v{QB+2}, v{K(2)}, v{K(1)}
v_cvt_pk_f16_f32 v{QB+3}, v{K(0)}, v36
v_mov_b32_dpp v{QC+3}, v{QA} wave_shr:1 row_mask:0xf bank_mask:0xf bound_ctrl:0
v_mov_b32_dpp v{QD+3}, v{QB} wave_shr:1 row_mask:0xf bank_mask:0xf bound_ctrl:0
v_mov_b32 v{QC}, v{QA+1}
v_mov_b32 v{QC+1}, v{QA+2}
v_mov_b32 v{QC+2}, v{QA+3}
v_mov_b32 v{QD}, v{QB+1}
v_mov_b32 v{QD+1}, v{QB+2}
v_mov_b32 v{QD+2}, v{QB+3}
v_cvt_pk_f16_f32 v57, v{K(7)}, v{K(7)}
v_cvt_pk_f16_f32 v56, 0, v{K(7)}
v_cvt_pk_f16_f32 v58, v{K(8)}, v{K(9)}
v_cvt_pk_f16_f32 v59, v{K(10)}, v{K(11)}
v_cvt_pk_f16_f32 v60, v{K(9)}, v{K(9)}
ds_write_b128 v{vWA}, {vr(QA,4)} offset:{3*KW_NS}
ds_write_b128 v{vWA}, {vr(QB,4)} offset:{2*KW_NS}
ds_write_b128 v{vWA}, {vr(QC,4)} offset:{KW_NS}
ds_write_b128 v{vWA}, {vr(QD,4)}
s_mov_b32 exec_lo, 0
s_mov_b32 exec_hi, 0x80000000
ds_write_b64 v{vKWB}, v[56:57] offset:{KW_N + 3*KW_NS + 72}
ds_write_b32 v{vKWB}, v57 offset:{KW_N + 2*KW_NS + 72}
ds_write_b32 v{vKWB}, v57 offset:{KW_N + 2*KW_NS + 76}
ds_write_b32 v{vKWB}, v56 offset:{KW_N + KW_NS + 68}
ds_write_b32 v{vKWB}, v57 offset:{KW_N + KW_NS + 72}
ds_write_b32 v{vKWB}, v{QA} offset:{KW_N + KW_NS + 76}
ds_write_b32 v{vKWB}, v57 offset:{KW_N + 68}
ds_write_b32 v{vKWB}, v57 offset:{KW_N + 72}
ds_write_b32 v{vKWB}, v{QB} offset:{KW_N + 76}
s_mov_b64 exec, -1
ds_write_b32 v{vWT2}, v58
ds_write_b32 v{vWT2}, v58 offset:{KW_T1}
ds_write_b16 v{vWT3}, v59 offset:64
ds_write_b16_d16_hi v{vWT3}, v59
ds_write_b16 v{vWT3}, v59 offset:{64 + KW_T1}
ds_write_b16_d16_hi v{vWT3}, v59 offset:{KW_T1}
v_readlane_b32 s{sT+8}, v60, 63
""")
a.raw("; MARK 91")
for mu in range(16, -1, -1):
    o = 1024 - 64 * mu
    a(f"ds_read_b64 {vr(KW+4*mu,2)}, v{vKW} offset:{o}\n ds_read_b64 {vr(KW+4*mu+2,2)}, v{vKW} offset:{o+8}")
lazy = []
for ab in range(2):
    for d in range(3):
        for h in range(2): lazy.append((T2 + 12 * ab + 4 * d, f"ds_read_b64 {vr(T2+12*ab+4*d+2*h,2)}, v{vT} offset:{4*(64*ab+16*d)+8*h}"))
for d in range(4):
    for h in range(2): lazy.append((T3 + 4 * d, f"ds_read_b64 {vr(T3+4*d+2*h,2)}, v{vT} offset:{4*(128+48-16*d)+8*h}"))
if not OPT["LAZY"]:
    for _, t in lazy: a(t)
    lazy = []
a(f"v_mov_b32 v{vK0}, {L_MISC}\n v_mov_b32 v{vKWB}, 1")
if OPT["BE"] != 2:
    for i in range(4): a(f"v_and_b32 v{BAND+20+i}, s{sT+8}, v{BAND+20+i}")
stamp(3)
cyc(11)
a(f"s_cmp_eq_u32 s{sHS}, 0\n s_cbranch_scc0 L_convY")
def uwait():
    if OPT["CP"]: a(f"s_setprio {OPT['CP']}")
    lds_spin(ACC, vK0, M_U, 0x0101, hot=True)
    stamp(4)
    cyc(12)

B3A, B5, B3B, B7, B9, SPK = [BAND + 4 * i for i in range(6)]
def conv_stream(tiles, order, ring, lazy):
    acc = {J: ACC + 4 * q for q, J in enumerate(tiles)}
    slot = {J: q for q, J in enumerate(tiles)}
    started = set()
    q2 = sorted({m[1] for m in order if m[0] == "box" and m[2] in "ab"})
    frag = {}
    for i, Qb in enumerate(q2):
        frag[(Qb, "a")] = BX2 + 8 * i; frag[(Qb, "b")] = BX2 + 8 * i + 4
    for Qb in range(4): frag[(Qb, "g")] = BX3 + 4 * Qb
    M = []
    for m in order:
        if m[0] == "near": M.append(dict(u=("U", 8 * m[1] - m[2]), J=m[1], A=KW + 4 * m[2]))
        elif m[0] == "sp": M.append(dict(u=("U", 8 * m[1] - 32), J=m[1], A=SPK))
        elif m[0] == "box":
            Qb, t = m[1], m[2]
            lo = {"a": (("U", 8 * Qb), B3A), "b": (("U", 8 * Qb), B3B), "g": (("U", 8 * Qb), B7)}[t]
            hi = {"a": (("U", 8 * Qb), B5), "b": (("W", Qb), B5), "g": (("W", Qb), B9)}[t]
            M.append(dict(u=lo[0], band=lo[1], half=0, f=(Qb, t))); M.append(dict(u=hi[0], band=hi[1], half=1, f=(Qb, t)))
        elif m[0] == "far":
            J, Qb, t = m[1], m[2], m[3]
            Bq = T3 + 4 * (J - 4 - Qb) if t == "g" else T2 + (12 if t == "b" else 0) + 4 * (Qb - (J - 4))
            M.append(dict(J=J, fin=(Qb, t), B=Bq))
    reads = []; cur = {}
    for i, m in enumerate(M):
        if "u" in m:
            k = m["u"]
            if k in cur and i - reads[cur[k]]["last"] <= 7: reads[cur[k]]["last"] = i
            else: cur[k] = len(reads); reads.append(dict(key=k, first=i, last=i))
            m["rd"] = cur[k]
    last_of = {}; firstB = {}
    for i, m in enumerate(M):
        if "J" in m: last_of[m["J"]] = i
        if "B" in m: firstB.setdefault(m["B"], i)
    lz = [(firstB[b], t) for b, t in lazy if b in firstB]
    pend_and = []
    if OPT["BE"] == 2:
        fb = {}
        for i, m in enumerate(M):
            if "band" in m: fb.setdefault(m["band"], i)
            if m.get("A") == SPK: fb.setdefault(SPK, i - 6)
        lz += [(i, f"ds_read_b128 {vr(b,4)}, v{vTAB} offset:{256*(b-BAND)}") for b, i in fb.items()]
        pend_and = [(fb[SPK] + 3, f"v_and_b32 v{SPK+j}, s{sT+8}, v{SPK+j}") for j in range(4)]
    lz.sort(key=lambda x: x[0])
    free = list(ring); nextr = 0; pend_cvt = []; pend_dump = []; dtfree = [0, 1]; dtof = {}; done_f = set()
    now = lambda: len(a.out)
    def issue_read():
        nonlocal nextr
        r = reads[nextr]; r["buf"] = free.pop(0); nextr += 1
        off = 480 + 64 * r["key"][1] if r["key"][0] == "U" else 464 + 512 * r["key"][1]
        a(f"ds_read_b128 {vr(r['buf'],4)}, v{vU} offset:{off}")
    def do_cvt():
        t, f, j = pend_cvt.pop(0); d = DT + 8 * dtof[f]
        a(f"v_cvt_pk_f16_f32 v{frag[f]+j}, v{d+j}, v{d+4+j}")
        if j == 3: dtfree.append(dtof[f]); done_f.add(f)
    def do_dump():
        t, txt, last = pend_dump.pop(0)
        a(txt)
        if last: stamp(8); cyc(13)
    issue_read()
    while lz and lz[0][0] <= 4: a(lz.pop(0)[1])
    for _ in range(2): issue_read()
    for i, m in enumerate(M):
        rg = set()
        if "rd" in m and m["rd"] < nextr: rg |= {("v", reads[m["rd"]]["buf"] + j) for j in range(4)}
        if "B" in m: rg |= {("v", m["B"] + j) for j in range(4)}
        if "band" in m: rg |= {("v", m["band"] + j) for j in range(4)}
        if pend_and and pend_and[0][0] <= i: rg |= {("v", SPK + j) for j in range(4)}
        a.prewait(rg)
        ds = va = dd = 0
        cvt_ok = lambda: pend_cvt and now() - pend_cvt[0][0] >= 8
        cvt_due = cvt_ok() and any("fin" in x and x["fin"] == pend_cvt[0][1] or x.get("half") == 0 for x in M[i:i + 5])
        rd_ok = lambda d: free and nextr < len(reads) and reads[nextr]["first"] - i <= d
        if rd_ok(8): issue_read(); ds += 1
        if not (cvt_due and ds == 0):
            if ds < 2 and lz and lz[0][0] - i <= 12: a(lz.pop(0)[1]); ds += 1; dd += 1
            if ds < 2 and rd_ok(7): issue_read(); ds += 1
            while ds < 2 and pend_dump and now() - pend_dump[0][0] >= 8: do_dump(); ds += 1
        while pend_and and pend_and[0][0] <= i and (va + ds < 2 or pend_and[0][0] + 1 < i): a(pend_and.pop(0)[1]); va += 1
        while va + ds < 2 and cvt_ok(): do_cvt(); va += 1
        if va == 0:
            if ds < 2 and rd_ok(99): issue_read(); ds += 1
            if ds < 2 and lz and not dd: a(lz.pop(0)[1]); ds += 1
        while lz and lz[0][0] - i <= 1: a(lz.pop(0)[1])
        if "fin" in m:
            while m["fin"] not in done_f: do_cvt()
        if "band" in m and m["half"] == 0:
            while not dtfree: do_cvt()
            dtof[m["f"]] = dtfree.pop(0)
        if "rd" in m:
            while m["rd"] >= nextr:
                assert free, "ring exhausted"
                issue_read()
        if "band" in m:
            d = DT + 8 * dtof[m["f"]] + 4 * m["half"]
            a(f"v_mfma_f32_16x16x32_f16 {vr(d,4)}, {vr(reads[m['rd']]['buf'],4)}, {vr(m['band'],4)}, 0")
            if m["half"] == 1:
                for j in range(4): pend_cvt.append((now(), m["f"], j))
        else:
            J = m["J"]; C = vr(acc[J], 4) if J in started else "0"; started.add(J)
            if "fin" in m: a(f"v_mfma_f32_16x16x32_f16 {vr(acc[J],4)}, {vr(frag[m['fin']],4)}, {vr(m['B'],4)}, {C}")
            else: a(f"v_mfma_f32_16x16x32_f16 {vr(acc[J],4)}, {vr(m['A'],4)}, {vr(reads[m['rd']]['buf'],4)}, {C}")
            if last_of[J] == i:
                for j in range(4): pend_dump.append((now(), f"ds_write_addtid_b32 v{acc[J]+j} offset:{YQ*slot[J] + YJ*j}", False))
                pend_dump.append((now(), f"ds_write_b8 v{vCF}, v{vKWB} offset:{M_T + 4*slot[J]}", slot[J] == 3))
        if "rd" in m and reads[m["rd"]]["last"] == i: free.append(reads[m["rd"]]["buf"])
    while pend_dump: do_dump()
    assert not lz
    return len(M), len(reads)

def near_at(n, tiles):
    return [("near", J, 8 * J - n) for J in tiles if 0 <= 8 * J - n <= min(16, 8 * J + 7)]
oX = []
extra = {0: [("box", 0, "g")], 8: [("box", 1, "g")]}
for n in range(-7, 9): oX += near_at(n, [0, 1]) + extra.get(n, [])
oX += [("box", 2, "a"), ("sp", 6), ("box", 2, "b"), ("far", 6, 0, "g"), ("far", 7, 0, "g"), ("box", 2, "g"), ("far", 6, 1, "g"), ("far", 7, 1, "g"),
       ("box", 3, "a"), ("sp", 7), ("box", 3, "b"), ("far", 6, 2, "a"), ("far", 6, 2, "b"), ("box", 3, "g")]
extra = {32: [("box", 4, "a"), ("far", 6, 2, "g"), ("far", 7, 2, "g")], 33: [("far", 6, 3, "a"), ("far", 7, 3, "a")], 34: [("far", 6, 3, "b"), ("far", 7, 3, "b")],
         35: [("far", 7, 3, "g")], 36: [("far", 6, 4, "a")], 37: [("far", 7, 4, "a")],
         40: [("box", 5, "a"), ("box", 5, "b")], 41: [("far", 6, 4, "b")], 42: [("far", 7, 4, "b")], 49: [("far", 7, 5, "a")], 50: [("far", 7, 5, "b")]}
for n in range(32, 57):
    oX += near_at(n, [6, 7]) + extra.get(n, [])
    if n == 32: oX += [("box", 4, "b")]
oY = []
extra = {0: [("box", 0, "a"), ("sp", 4), ("box", 0, "b")], 3: [("far", 2, 0, "a"), ("far", 3, 0, "a"), ("far", 4, 0, "a")],
         4: [("far", 2, 0, "b"), ("far", 3, 0, "b"), ("far", 4, 0, "b")], 5: [("box", 0, "g")],
         8: [("box", 1, "a"), ("sp", 5), ("box", 1, "b")], 9: [("far", 4, 0, "g")], 10: [("far", 5, 0, "g"), ("box", 1, "g")],
         12: [("far", 3, 1, "a")], 13: [("far", 3, 1, "b")], 14: [("far", 4, 1, "a")],
         16: [("box", 2, "a"), ("box", 2, "b")], 17: [("far", 4, 1, "b")], 18: [("far", 5, 1, "a")], 19: [("far", 5, 1, "b")], 20: [("far", 5, 1, "g")],
         21: [("far", 4, 2, "a")], 22: [("far", 4, 2, "b")],
         24: [("box", 3, "a"), ("box", 3, "b")], 28: [("far", 5, 2, "a")], 29: [("far", 5, 2, "b")], 33: [("far", 5, 3, "a")], 34: [("far", 5, 3, "b")]}
for n in range(0, 41): oY += near_at(n, [2, 3, 4, 5]) + extra.get(n, [])
def weave(near, ins):
    o = []
    for i, m in enumerate(near): o += ins.get(i, []) + [m]
    return o + ins.get(len(near), [])
N = lambda J, lo=0: [("near", J, mu) for mu in range(min(16, 8 * J + 7), lo - 1, -1)]
F = lambda J, Qb, t: ("far", J, Qb, t)
Bx = lambda Qb, t: ("box", Qb, t)
if OPT["SEQ"]:
    oY = weave(N(2), {1: [Bx(0, "a"), Bx(0, "b")], 10: [F(2, 0, "a")], 12: [F(2, 0, "b")]})
    oY += weave(N(3), {1: [Bx(1, "a"), Bx(1, "b")], 3: [F(3, 0, "a")], 5: [F(3, 0, "b")], 9: [F(3, 1, "a")], 11: [F(3, 1, "b")], 13: [Bx(0, "g"), ("sp", 4)]})
    oY += weave(N(4), {1: [Bx(2, "a"), Bx(2, "b")], 2: [F(4, 0, "a")], 3: [F(4, 0, "b")], 5: [F(4, 1, "a")], 7: [F(4, 1, "b")], 9: [F(4, 0, "g")], 11: [F(4, 2, "a")], 12: [F(4, 2, "b")], 13: [Bx(1, "g"), ("sp", 5)]})
    oY += weave(N(5), {1: [Bx(3, "a"), Bx(3, "b")], 2: [F(5, 1, "a")], 3: [F(5, 1, "b")], 5: [F(5, 2, "a")], 7: [F(5, 2, "b")], 9: [F(5, 0, "g")], 10: [F(5, 1, "g")], 12: [F(5, 3, "a")], 14: [F(5, 3, "b")]})
    oX = N(0) + [Bx(0, "g")]
    oX += weave(N(1), {16: [Bx(1, "g")]})
    oX += [Bx(2, "a"), ("sp", 6), Bx(2, "b"), F(6, 0, "g"), Bx(2, "g"), F(6, 1, "g"), Bx(3, "a"), ("sp", 7), Bx(3, "b")]
    oX += weave(N(6), {1: [Bx(4, "a"), Bx(4, "b")], 2: [F(6, 2, "a")], 3: [F(6, 2, "b")], 5: [F(6, 2, "g")], 6: [F(6, 3, "a")], 7: [F(6, 3, "b")], 10: [F(6, 4, "a")], 12: [F(6, 4, "b")], 13: [Bx(3, "g")]})
    oX += weave(N(7), {1: [Bx(5, "a"), Bx(5, "b")], 2: [F(7, 0, "g")], 3: [F(7, 1, "g")], 4: [F(7, 2, "g")], 5: [F(7, 3, "a")], 6: [F(7, 3, "b")], 7: [F(7, 4, "a")], 8: [F(7, 4, "b")], 9: [F(7, 3, "g")], 11: [F(7, 5, "a")], 13: [F(7, 5, "b")]})
def check(order, tiles):
    want = set()
    for J in tiles:
        for mu in range(min(16, 8 * J + 7) + 1): want.add(("near", J, mu))
        if J >= 4: want.add(("sp", J))
        for d in range(3):
            if J - 4 + d >= 0: want |= {("far", J, J - 4 + d, "a"), ("far", J, J - 4 + d, "b")}
        for d in range(4):
            if J - 4 - d >= 0: want.add(("far", J, J - 4 - d, "g"))
    got = [m for m in order if m[0] != "box"]
    assert len(got) == len(set(got)) and set(got) == want, (want ^ set(got))
    seen = set()
    for m in order:
        if m[0] == "box": seen.add((m[1], m[2]))
        if m[0] == "far": assert (m[2], m[3]) in seen, m
check(oX, [0, 1, 6, 7]); check(oY, [2, 3, 4, 5])
sv = (list(a.vmq), list(a.dsq), list(a.hist))
RING = [URING + 4 * i for i in range(6)] + [248, 4]
if not OPT["LAZYX"]:
    for _, t in lazy: a(t)
uwait()
nx = conv_stream([0, 1, 6, 7], oX, RING, lazy if OPT["LAZYX"] else [])
endpgm(True)
a.raw(".p2align 3")
a.label("L_convY")
a.vmq, a.dsq, a.hist = sv
uwait()
ny = conv_stream([2, 3, 4, 5], oY, RING + [216, 220, 136, 140], lazy)
endpgm(True)
if STAMPS:
    a.label("L_flush")
    a.wait(vm=0, lgkm=0)
    a("s_memrealtime s[100:101]"); a.wait(lgkm=0)
    a("s_mov_b64 exec, -1\n v_mov_b32 v2, 0")
    for k in range(16): a(f"v_writelane_b32 v2, s{SS(k)}, {k}")
    a(f"s_lshl_b32 s{sT}, s2, 3\n s_add_u32 s{sT}, s{sT}, s{sWAVE}\n s_lshl_b32 s{sT}, s{sT}, 6\n s_add_u32 s{sT}, s{sT}, {WS_STAMP}")
    a(f"v_and_b32 v3, 63, v0\n v_lshlrev_b32 v3, 2, v3\n v_add_u32 v3, s{sT}, v3")
    a("s_mov_b64 exec, 0xffff")
    a(f"global_store_dword v3, v2, {P(sWS)}")
    a(f"v_mov_b32 v4, s{sPC}\n v_mov_b32 v5, s{sPC+1}\n v_mov_b32 v6, 0x480000\n global_store_dwordx2 v6, v[4:5], {P(sWS)}")
a.label("L_exit")
a("s_endpgm")
a.raw(".p2align 7")
a.label("L_tab")
for (start, w, one) in ((11, 3, 0x3c00), (6, 5, 0x3c00), (3, 3, 0x3c00), (5, 7, 0x3c00), (4, 9, 0x3c00), (12, 2, 0xffff)):
    for l in range(64):
        r, s_ = l & 15, l >> 4
        e = [one if r + start <= 8 * s_ + i < r + start + w else 0 for i in range(8)]
        a.raw("    .long " + ", ".join(hex(e[2 * j] | e[2 * j + 1] << 16) for j in range(4)))
a.label("L_end")
a.raw(f""".section .rodata,"a"
.p2align 6
.amdhsa_kernel {NAME}
  .amdhsa_next_free_vgpr 256
  .amdhsa_next_free_sgpr 102
  .amdhsa_accum_offset 256
  .amdhsa_group_segment_fixed_size 0
  .amdhsa_kernarg_size 136
  .amdhsa_user_sgpr_count 2
  .amdhsa_user_sgpr_kernarg_segment_ptr 1
  .amdhsa_system_sgpr_workgroup_id_x 1
  .amdhsa_float_denorm_mode_32 3
.end_amdhsa_kernel""")
open(sys.argv[1], "w").write(a.text())
print("LDS", LDS_SIZE, "nops", a.nops, "X mfma/reads", nx, "Y", ny, file=sys.stderr)
```
